```python
import torch

def _softmax(x, axis=-1):
    return torch.softmax(x, dim=axis)
def _gelu(x):
    return torch.nn.functional.gelu(x, approximate="tanh")
def _silu(x):
    return torch.nn.functional.silu(x)
def _sigmoid(x):
    return torch.sigmoid(x)
def _layernorm(x, axis=-1, eps=1e-5):
    m = x.mean(dim=axis, keepdim=True)
    v = x.var(dim=axis, keepdim=True, unbiased=False)
    return (x - m) / torch.sqrt(v + eps)
def _scatter_add(tgt, idx, src, axis=0):
    return tgt.clone().index_add_(axis, idx, src)
def _segment_sum(src, seg, n):
    out = torch.zeros((n,) + src.shape[1:], dtype=src.dtype)
    return out.index_add_(0, seg, src)
def _pad(x, pw):
    flat = tuple(v for pair in reversed(pw) for v in pair)
    return torch.nn.functional.pad(x, flat)

kernel_name = 'concat_heads__linear_attn_block__ssm_conv_s4__prompt'

def setup_inputs():

    _w = (lambda a: (lambda t: t.to(torch.bfloat16) if t.is_floating_point() else t)(torch.as_tensor(a)))
    def _A_setup():
        B, S, D = 1, 2048, 1024
        return {
            "x": _w((lambda *s: torch.randn(*s, dtype=torch.bfloat16) * 0.05)(B, S, D)),
            "wqkv": _w((lambda *s: torch.randn(*s, dtype=torch.bfloat16) * 0.8)(D, 3 * D)),
            "wo": _w((lambda *s: torch.randn(*s, dtype=torch.bfloat16) * 0.05)(D, D)),
        }
    _A_in = _A_setup()

    def _B_setup():
        B, L, D, N = 1, 2048, 1024, 128
        A_re = -(lambda _x: torch.exp(torch.as_tensor(_x)))((lambda *s: torch.randn(*s, dtype=torch.bfloat16) * 6.4)(D, N))
        A_im = torch.pi * (lambda *s: torch.randn(*s, dtype=torch.bfloat16) * 0.05)(D, N)
        B_re = (lambda *s: torch.randn(*s, dtype=torch.bfloat16) * 0.2)(D, N)
        B_im = (lambda *s: torch.randn(*s, dtype=torch.bfloat16) * 0.2)(D, N)
        C_re = (lambda *s: torch.randn(*s, dtype=torch.bfloat16) * 0.2)(D, N)
        C_im = (lambda *s: torch.randn(*s, dtype=torch.bfloat16) * 0.2)(D, N)
        log_dt = (lambda *s: torch.randn(*s, dtype=torch.bfloat16) * 0.05)(D) * 0.5 - 4.0
        Dskip = (lambda *s: torch.randn(*s, dtype=torch.bfloat16) * 0.05)(D)
        return {
            "u": _w((lambda *s: torch.randn(*s, dtype=torch.bfloat16) * 0.05)(B, L, D)),
            "A_re": _w(A_re),
            "A_im": _w(A_im),
            "B_re": _w(B_re),
            "B_im": _w(B_im),
            "C_re": _w(C_re),
            "C_im": _w(C_im),
            "log_dt": _w(log_dt),
            "Dskip": _w(Dskip),
        }
    _B_in = _B_setup()

    return {
        "A_x": _A_in["x"],
        "A_wqkv": _A_in["wqkv"],
        "A_wo": _A_in["wo"],
        "B_u": _B_in["u"],
        "B_A_re": _B_in["A_re"],
        "B_A_im": _B_in["A_im"],
        "B_B_re": _B_in["B_re"],
        "B_B_im": _B_in["B_im"],
        "B_C_re": _B_in["C_re"],
        "B_C_im": _B_in["C_im"],
        "B_log_dt": _B_in["log_dt"],
        "B_Dskip": _B_in["Dskip"],
    }

def reference(A_x, A_wqkv, A_wo, B_u, B_A_re, B_A_im, B_B_re, B_B_im, B_C_re, B_C_im, B_log_dt, B_Dskip):
    def _A_ref(x, wqkv, wo):
        B, S, D = x.shape
        H = 32; Dh = D // H
        qkv = (lambda x, *d: x.permute(*d))((x @ wqkv).reshape(B, S, 3, H, Dh), 2, 0, 3, 1, 4)
        q, k, v = qkv[0], qkv[1], qkv[2]
        phi = lambda t: torch.where(t > 0, t + 1, torch.exp(t)) + 1e-6
        pq, pk = phi(q), phi(k)
        kv = torch.einsum("bhsd,bhse->bhde", pk, v)
        z = torch.einsum("bhsd->bhd", pk)
        num = torch.einsum("bhqd,bhde->bhqe", pq, kv)
        den = torch.einsum("bhqd,bhd->bhq", pq, z)[..., None] + 1e-6
        o = num / den
        return (lambda x, *d: x.permute(*d))(o, 0, 2, 1, 3).reshape(B, S, D) @ wo

    def _B_ref(u, A_re, A_im, B_re, B_im, C_re, C_im, log_dt, Dskip):
        Bsz, L, D = u.shape
        dt = torch.exp(log_dt)[:, None]
        A = A_re + 1j * A_im
        Bc = B_re + 1j * B_im
        Cc = C_re + 1j * C_im
        logdA = dt * A
        dB = dt * Bc
        l = (lambda x, dt: x.to(dt))(torch.arange(L), A_re.dtype)
        P = torch.exp(logdA[:, :, None] * l[None, None, :])
        K = torch.einsum("dn,dnl,dn->dl", Cc, P, dB).real
        L2 = 2 * L
        Kp = _pad(K, ((0, 0), (0, L)))
        up = (lambda x, *d: x.permute(*d))(u, 0, 2, 1)
        up = _pad(up, ((0, 0), (0, 0), (0, L)))
        Kf = (lambda x, axes=(-2,-1): torch.fft.rfft2(x.float(), dim=axes))(Kp[:, None, :], axes=(-2, -1))
        Uf = (lambda x, axes=(-2,-1): torch.fft.rfft2(x.float(), dim=axes))(up[:, :, None, :], axes=(-2, -1))
        Yf = Uf * Kf[None, :, :, :]
        y = (lambda x, s, axes=(-2,-1): torch.fft.irfft2(x, s=s, dim=axes).to(torch.bfloat16))(Yf, (1, L2), axes=(-2, -1))[:, :, 0, :L]
        y = (lambda x, *d: x.permute(*d))(y, 0, 2, 1) + u * Dskip[None, None, :]
        return y

    a = _A_ref(A_x, A_wqkv, A_wo)
    b = _B_ref(B_u, B_A_re, B_A_im, B_B_re, B_B_im, B_C_re, B_C_im, B_log_dt, B_Dskip)
    return torch.concatenate([a, b], axis=-1)
```

```python
import re


def V(n, c=1):
    return f"v{n}" if c == 1 else f"v[{n}:{n + c - 1}]"


def A(n, c=1):
    return f"a{n}" if c == 1 else f"a[{n}:{n + c - 1}]"


def S(n, c=1):
    return f"s{n}" if c == 1 else f"s[{n}:{n + c - 1}]"


_REG = re.compile(r"(?<![\w.])([vas])(?:(\d+)|\[(\d+):(\d+)\])(?![\w])")


def regs_of(tok):
    out = set()
    for m in _REG.finditer(tok):
        k = m.group(1)
        if m.group(2) is not None:
            out.add((k, int(m.group(2))))
        else:
            for i in range(int(m.group(3)), int(m.group(4)) + 1):
                out.add((k, i))
    t = tok.strip()
    if re.search(r"\bvcc(_lo|_hi)?\b", t):
        out.add(("x", "vcc"))
    if re.search(r"\bexec\b", t):
        out.add(("x", "exec"))
    if re.search(r"\bm0\b", t):
        out.add(("x", "m0"))
    return out


TRANS = ("v_exp_f32", "v_log_f32", "v_rcp_f32", "v_rsq_f32", "v_sqrt_f32", "v_sin_f32", "v_cos_f32",
         "v_rcp_iflag_f32")


class Ins:
    __slots__ = ("text", "op", "defs", "uses", "kind", "label", "target", "passes", "srcc", "srcab",
                 "wait_vm", "wait_lgkm", "nops", "wide_store", "data", "ops", "isdpp", "dma")

    def __init__(self, text):
        self.text = text
        self.label = None
        self.target = None
        self.defs = set()
        self.uses = set()
        self.kind = "other"
        self.passes = 0
        self.srcc = set()
        self.srcab = set()
        self.wait_vm = None
        self.wait_lgkm = None
        self.nops = 0
        self.wide_store = False
        self.data = set()
        self.isdpp = False
        self.dma = False
        t = text.split(";")[0].strip()
        if not t:
            self.kind = "comment"
            self.op = ""
            return
        if t.endswith(":"):
            self.kind = "label"
            self.label = t[:-1]
            self.op = ""
            return
        if t.startswith("."):
            self.kind = "directive"
            self.op = t
            return
        sp = t.split(None, 1)
        op = sp[0]
        self.op = op
        rest = sp[1] if len(sp) > 1 else ""
        ops = [o.strip() for o in rest.split(",")] if rest else []
        self.ops = ops
        R = [regs_of(o) for o in ops]
        allr = set().union(*R) if R else set()
        base = re.sub(r"_e(32|64)$|_dpp$|_sdwa$", "", op)
        if op.startswith("v_mfma"):
            self.kind = "mfma"
            self.defs = R[0]
            self.srcab = R[1] | R[2]
            self.srcc = R[3]
            self.uses = self.srcab | self.srcc
            if "32x32x16" in op:
                self.passes = 8
            elif "16x16x32" in op:
                self.passes = 4
            else:
                raise ValueError("unknown mfma " + op)
        elif op.startswith("v_"):
            self.kind = "valu"
            self.isdpp = ("row_" in rest) or ("quad_perm" in rest) or ("wave_" in rest) or op.endswith("_dpp")
            if base.startswith("v_cmp"):
                self.defs = set(R[0])
                self.uses = set().union(*R[1:])
                if base.startswith("v_cmpx"):
                    self.defs.add(("x", "exec"))
            elif base in ("v_add_co_u32", "v_sub_co_u32", "v_addc_co_u32", "v_subb_co_u32"):
                self.defs = R[0] | R[1]
                self.uses = set().union(*R[2:])
            elif base.startswith("v_permlane") and "swap" in base:
                self.defs = R[0] | R[1]
                self.uses = R[0] | R[1]
            elif base == "v_nop":
                pass
            else:
                self.defs = set(R[0])
                self.uses = set().union(*R[1:]) if len(R) > 1 else set()
                if base in ("v_fmac_f32", "v_pk_fmac_f16", "v_writelane_b32", "v_dot2c_f32_bf16") \
                        or (self.isdpp and not ("quad_perm" in rest and "row_mask:0xf bank_mask:0xf" in rest)) \
                        or "sdwa" in op or "dst_unused" in rest:
                    self.uses |= R[0]
            if base in TRANS:
                self.kind = "trans"
        elif op.startswith("ds_"):
            self.kind = "ds"
            if op.startswith("ds_read") or op.startswith("ds_bpermute") or op.startswith("ds_permute") \
                    or op.startswith("ds_swizzle") or "_rtn" in op:
                self.defs = set(R[0])
                self.uses = set().union(*R[1:])
            else:
                self.uses = allr
            if "addtid" in op:
                self.uses = self.uses | {("x", "m0")}
        elif op.startswith("buffer_") or op.startswith("global_"):
            self.kind = "vmem"
            if op in ("buffer_wbl2", "buffer_inv"):
                pass
            elif re.search(r"\blds\b", rest) or "_lds_" in op:
                self.uses = allr | {("x", "m0")}
                self.dma = True
            elif "_load_" in op:
                self.defs = set(R[0])
                self.uses = set().union(*R[1:])
            elif "_atomic_" in op:
                ret = re.search(r"\bsc0\b", rest) is not None
                self.uses = allr
                if ret:
                    self.defs = set(R[0])
                    if op.startswith("global_"):
                        self.uses = set().union(*R[1:])
            else:
                self.uses = allr
                self.data = R[0] if op.startswith("buffer_") else R[1]
                self.wide_store = op.endswith("x3") or op.endswith("x4")
        elif op.startswith("s_load") or op.startswith("s_buffer_load") or op in ("s_memtime", "s_memrealtime"):
            self.kind = "smem"
            self.defs = set(R[0])
            self.uses = set().union(*R[1:]) if len(R) > 1 else set()
        elif op == "s_waitcnt":
            self.kind = "wait"
            m = re.search(r"vmcnt\((\d+)\)", rest)
            self.wait_vm = int(m.group(1)) if m else None
            m = re.search(r"lgkmcnt\((\d+)\)", rest)
            self.wait_lgkm = int(m.group(1)) if m else None
        elif op == "s_nop":
            self.kind = "nop"
            self.nops = int(rest, 0) + 1
        elif op.startswith("s_cbranch") or op == "s_branch":
            self.kind = "branch"
            self.target = rest.strip()
            if "vcc" in op:
                self.uses = {("x", "vcc")}
        elif op == "s_endpgm":
            self.kind = "end"
        elif op in ("s_barrier", "s_setprio", "s_sleep"):
            self.kind = "other"
        elif op.startswith("s_cmp") or op.startswith("s_bitcmp"):
            self.kind = "salu"
            self.uses = allr
        elif op.startswith("s_"):
            self.kind = "salu"
            self.defs = set(R[0]) if R else set()
            self.uses = set().union(*R[1:]) if len(R) > 1 else set()
            if "saveexec" in op:
                self.defs.add(("x", "exec"))
            if op in ("s_addk_i32", "s_mulk_i32"):
                self.uses |= R[0]
        else:
            raise ValueError("cannot parse: " + text)

    def real(self):
        return self.kind not in ("comment", "label", "directive")


def _vg(rs):
    return {r for r in rs if r[0] in "va"}


def _sg(rs):
    return {r for r in rs if r[0] == "s" or r == ("x", "vcc")}


def hazard_need(p, c):
    need = 0
    pv = p.kind in ("valu", "trans")
    cv = c.kind in ("valu", "trans")
    if pv:
        dv = _vg(p.defs)
        ds = _sg(p.defs)
        if c.kind == "mfma" and dv & c.uses:
            need = max(need, 2)
        if cv:
            if dv & c.uses:
                if c.isdpp or c.op.startswith("v_permlane"):
                    need = max(need, 2)
                if c.op.startswith("v_readlane") or c.op.startswith("v_readfirstlane"):
                    need = max(need, 1)
                if p.kind == "trans":
                    need = max(need, 1)
                if ("op_sel" in p.text and not p.op.startswith("v_pk_")) or "sdwa" in p.text:
                    need = max(need, 1)
            if ds & c.uses:
                need = max(need, 4 if (c.op.startswith("v_readlane") or c.op.startswith("v_writelane")) else 2)
        if c.kind == "vmem" and ds & c.uses:
            need = max(need, 5)
        if c.kind in ("salu", "smem") and ds & c.uses:
            need = max(need, 1)
        if c.kind == "branch" and ds & c.uses:
            need = max(need, 1)
        if ("x", "exec") in p.defs:
            if c.kind == "mfma" or c.op.startswith("v_readlane") or c.op.startswith("v_readfirstlane") \
                    or c.op.startswith("v_permlane"):
                need = max(need, 4)
            if c.isdpp:
                need = max(need, 5)
    if p.kind == "salu" and ("x", "m0") in p.defs and ("x", "m0") in c.uses and c.kind in ("vmem", "ds"):
        need = max(need, 1)
    if p.kind == "vmem" and p.wide_store and (p.data & c.defs):
        need = max(need, 2)
    if p.kind == "mfma":
        big = {4: 8, 8: 12}[p.passes]
        if c.kind == "mfma":
            if p.defs & c.srcab:
                need = max(need, big)
            if p.defs & c.srcc:
                if not (p.defs == c.srcc and p.passes == c.passes):
                    need = max(need, {4: 6, 8: 10}[p.passes])
            elif p.defs & c.defs:
                need = max(need, big)
        elif c.kind in ("valu", "trans", "vmem", "ds"):
            if p.defs & (c.uses | c.defs):
                need = max(need, big)
            if cv and (p.srcc & c.defs):
                need = max(need, {4: 3, 8: 7}[p.passes])
    return need


class Asm:
    def __init__(self):
        self.ins = []

    def __call__(self, text):
        for line in text.split("\n"):
            line = line.strip()
            if line:
                self.ins.append(Ins(line))

    def label(self, name):
        self(name + ":")

    def _succs(self):
        ins = self.ins
        lab = {x.label: i for i, x in enumerate(ins) if x.kind == "label"}
        succ = []
        for i, x in enumerate(ins):
            s = []
            if x.kind == "end":
                pass
            elif x.kind == "branch":
                s.append(lab[x.target])
                if x.op != "s_branch":
                    s.append(i + 1)
            elif i + 1 < len(ins):
                s.append(i + 1)
            succ.append(s)
        return succ

    def insert_waits(self, entries=(0,)):
        ins = self.ins
        succ = self._succs()
        n = len(ins)
        need_vm = [None] * n
        need_lg = [None] * n
        isjoin = [x.kind == "label" for x in ins]

        def merge(old, new):
            ch = False
            for k in (0, 1):
                for r, d in new[k].items():
                    if r not in old[k] or d < old[k][r]:
                        old[k][r] = d
                        ch = True
            if new[2] and not old[2]:
                old[2] = True
                ch = True
            return ch

        changed = True
        rounds = 0
        while changed:
            changed = False
            rounds += 1
            assert rounds < 50
            at = {}
            work = [(e, {}, {}, False) for e in entries]
            while work:
                i, vm, lg, hass = work.pop()
                while True:
                    x = ins[i]
                    if isjoin[i]:
                        if i in at:
                            if not merge(at[i], (vm, lg, hass)):
                                break
                        else:
                            at[i] = [dict(vm), dict(lg), hass]
                        vm, lg, hass = dict(at[i][0]), dict(at[i][1]), at[i][2]
                    if x.real():
                        tv = x.uses if x.kind == "vmem" else (x.uses | x.defs)
                        ds = [vm[r] for r in tv if r in vm]
                        if ds:
                            w = min(min(ds), 62)
                            if need_vm[i] is None or w < need_vm[i]:
                                need_vm[i] = w
                                changed = True
                        tl = x.uses if ((x.kind == "ds" and not hass) or x.kind == "smem") else (x.uses | x.defs)
                        ds = [lg[r] for r in tl if r in lg]
                        if ds:
                            w = 0 if hass else min(min(ds), 14)
                            if need_lg[i] is None or w < need_lg[i]:
                                need_lg[i] = w
                                changed = True
                        for c in (need_vm[i], x.wait_vm):
                            if c is not None:
                                vm = {r: d for r, d in vm.items() if d < c}
                        for c in (need_lg[i], x.wait_lgkm):
                            if c is not None:
                                if c == 0:
                                    lg = {}
                                    hass = False
                                elif not hass:
                                    lg = {r: d for r, d in lg.items() if d < c}
                        if x.kind == "vmem":
                            vm = {r: min(d + 1, 64) for r, d in vm.items()}
                            for r in x.defs:
                                vm[r] = 0
                        elif x.kind in ("ds", "smem"):
                            lg = {r: min(d + 1, 16) for r, d in lg.items()}
                            for r in x.defs:
                                lg[r] = 0
                            if x.kind == "smem":
                                hass = True
                    s = succ[i]
                    if not s:
                        break
                    for t in s[1:]:
                        work.append((t, dict(vm), dict(lg), hass))
                    i = s[0]
        out = []
        for i, x in enumerate(ins):
            parts = []
            if need_vm[i] is not None:
                parts.append(f"vmcnt({min(need_vm[i], 62)})")
            if need_lg[i] is not None:
                parts.append(f"lgkmcnt({min(need_lg[i], 14)})")
            if parts:
                out.append(Ins("s_waitcnt " + " ".join(parts)))
            out.append(x)
        self.ins = out

    def insert_nops(self, verbose=False):
        total = 0
        while True:
            ins = self.ins
            succ = self._succs()
            pred = [[] for _ in ins]
            for i, s in enumerate(succ):
                for t in s:
                    pred[t].append(i)
            add = {}
            for i, c in enumerate(ins):
                if not c.real() or c.kind in ("nop", "wait", "end"):
                    continue
                worst = 0
                stack = [(p, 0) for p in pred[i]]
                seen = {}
                while stack:
                    j, d = stack.pop()
                    if d >= 20 or seen.get(j, 99) <= d:
                        continue
                    seen[j] = d
                    p = ins[j]
                    if p.real():
                        h = hazard_need(p, c)
                        if h - d > worst:
                            worst = h - d
                            if verbose:
                                print("hazard", p.text, "->", c.text, h, d)
                        step = p.nops if p.kind == "nop" else 1
                        step += add.get(j, 0)
                    else:
                        step = 0
                    for q in pred[j]:
                        stack.append((q, d + step))
                if worst:
                    add[i] = worst
            if not add:
                break
            out = []
            for i, x in enumerate(ins):
                if i in add:
                    k = add[i]
                    total += k
                    while k > 0:
                        t = min(k, 16)
                        out.append(Ins(f"s_nop {t - 1}"))
                        k -= t
                out.append(x)
            self.ins = out
        return total

    def finish(self, entries=(0,), verbose=False):
        self.insert_waits(entries)
        self.insert_nops(verbose)

    def text(self):
        o = []
        for x in self.ins:
            o.append(x.text if x.kind in ("label", "directive") else "  " + x.text)
        return "\n".join(o) + "\n"


def interleave(main, fill, start=0, every=1, per=1):
    out = []
    f = list(fill)
    for i, m in enumerate(main):
        out.append(m)
        if i >= start and (i - start) % every == 0:
            for _ in range(per):
                if f:
                    out.append(f.pop(0))
    out += f
    return out
```

```python
import sys, struct, math
from asmgen import *

NAME = "concat_heads__linear_attn_block__ssm_conv_s4__prompt_kernel"


def fbits(x):
    return "0x%08x" % struct.unpack("<I", struct.pack("<f", x))[0]


LOG2E = 1.4426950408889634
EPS = 1e-6

WS_F1, WS_F2, WS_FY = 0, 4096, 8192
WS_ZP = 65536
WS_KVP = 1 << 20
WS_UT = 4 << 20
WS_YT = 8 << 20
WS_OF = 12 << 20
WS_PROF = 16 << 20
WS_SIZE = 20 << 20

SLOT = 40960
L_SCR = 122880
SCR = 8704
L_MISC = 157696
L_UC = SLOT
UC = 9152
UCS = 4576
RCS = 4224
L_EX = 0
LDS_BYTES = 163840
LF_P1, LF_P2, LF_WA, LF_WB = L_MISC, L_MISC + 16, L_MISC + 32, L_MISC + 36
WO_E1 = [2 * SLOT + 4096 * i for i in range(10)] + [77824, 159744]
WO_E2 = [8192 + 4096 * i for i in range(8)]
WO_LATE = []
for j in range(3):
    for w in range(4):
        WO_LATE.append([L_SCR + SCR * w, L_SCR + SCR * w + 4096, L_UC + UC * w][j])
WO_SLOTS = WO_E1 + WO_E2 + WO_LATE
assert len(WO_SLOTS) == 32

pX, pW, pWo, pU, pAre, pAim, pBre, pBim, pCre, pCim, pLdt, pDsk, pOut, pDbg, pWs = range(8, 38, 2)
rX, rW, rWS, rO, rWo, rU = 40, 44, 48, 52, 56, 60
sWave, sRT, sHP, sRT2, sCT = 3, 4, 5, 6, 7
SPIN = 20000


def srd(a, r, p, size):
    a(f"s_mov_b32 s{r}, s{p}\ns_mov_b32 s{r+1}, s{p+1}\ns_mov_b32 s{r+2}, {size}\ns_mov_b32 s{r+3}, 0x20000")


def MF(d, x, y, c=None):
    c = V(d, 4) if c is None else c
    return f"v_mfma_f32_16x16x32_bf16 {V(d,4)}, {V(x,4)}, {V(y,4)}, {c}"


class Gen:
    def __init__(self, prof=False, **opt):
        self.a = Asm()
        self.prof = prof
        self.opt = opt
        self.nlab = 0

    def lab(self, base):
        self.nlab += 1
        return f"L_{base}_{self.nlab}"

    def stamp(self, idx):
        if not self.prof:
            return
        a = self.a
        a("s_memrealtime s[68:69]")
        a("s_waitcnt lgkmcnt(0)")
        a(f"s_mov_b32 s{72+idx}, s68")

    def dump_stamps(self):
        if not self.prof:
            return
        a = self.a
        a("s_waitcnt vmcnt(0)")
        self.stamp(15)
        for i in range(16):
            a(f"v_mov_b32 v{16+i}, s{72+i}")
        a(f"s_lshl_b32 s68, s2, 3\ns_add_u32 s68, s68, s{sWave}\ns_lshl_b32 s68, s68, 6\ns_add_u32 s68, s68, {WS_PROF}")
        a("v_mov_b32 v3, 0")
        for i in range(4):
            a(f"buffer_store_dwordx4 {V(16+4*i,4)}, v3, {S(rWS,4)}, s68 offen offset:{16*i}")

    def poll_global(self, voff, soff, vtmp, scnt):
        a = self.a
        l = self.lab("poll")
        d = self.lab("polld")
        a(f"s_mov_b32 s{scnt}, {SPIN}")
        a.label(l)
        a(f"buffer_load_dword v{vtmp}, v{voff}, {S(rWS,4)}, s{soff} offen sc1")
        a(f"s_sub_u32 s{scnt}, s{scnt}, 1")
        a(f"s_cbranch_scc1 {d}")
        a(f"v_cmp_ne_u32 vcc, 1, v{vtmp}")
        a(f"s_cbranch_vccnz {l}")
        a.label(d)

    def poll_lds(self, vaddr, off, val, vtmp):
        a = self.a
        l = self.lab("lpoll")
        a.label(l)
        a(f"ds_read_b32 v{vtmp}, v{vaddr} offset:{off}")
        a(f"v_cmp_ne_u32 vcc, {val}, v{vtmp}")
        a(f"s_cbranch_vccnz {l}")

    def prologue(self):
        a = self.a
        a("s_cmp_ge_u32 s2, 256")
        a("s_cbranch_scc1 L_end")
        a("s_load_dwordx16 s[8:23], s[0:1], 0")
        a("s_load_dwordx8 s[24:31], s[0:1], 64")
        a("s_load_dwordx4 s[32:35], s[0:1], 96")
        a("s_load_dwordx2 s[36:37], s[0:1], 112")
        if self.prof:
            a("s_memrealtime s[68:69]")
            for i in range(1, 16):
                a(f"s_mov_b32 s{72+i}, 0")
        a("v_lshrrev_b32 v1, 6, v0")
        a("v_and_b32 v2, 63, v0")
        a(f"v_readfirstlane_b32 s{sWave}, v1")
        a("s_and_b32 s64, s2, 7")
        a("s_lshr_b32 s65, s2, 3")
        a(f"s_and_b32 s{sRT}, s64, 1\ns_lshl_b32 s{sRT}, s{sRT}, 3\ns_and_b32 s66, s65, 7\ns_add_u32 s{sRT}, s{sRT}, s66")
        a(f"s_lshr_b32 s{sHP}, s64, 1\ns_lshl_b32 s{sHP}, s{sHP}, 2\ns_lshr_b32 s66, s65, 3\ns_add_u32 s{sHP}, s{sHP}, s66")
        a(f"s_lshl_b32 s{sRT2}, s64, 1\ns_and_b32 s66, s65, 1\ns_add_u32 s{sRT2}, s{sRT2}, s66")
        a(f"s_lshr_b32 s{sCT}, s65, 1")
        a(f"s_cmp_ge_u32 s{sWave}, 4")
        a("s_cbranch_scc1 L_helper")

    def phi(self, regs, tmp, sL, vC, sE):
        out = []
        n = len(regs)
        G = 4
        for g in range(0, n, G):
            rr = regs[g:g + G]
            t = [tmp + i for i in range(len(rr))]
            for r, x in zip(rr, t):
                out.append(f"v_fma_f32 v{x}, v{r}, s{sL}, v{vC}")
            for r, x in zip(rr, t):
                out.append(f"v_exp_f32_e64 v{x}, v{x} clamp")
                out.append(f"v_max_f32 v{r}, s{sE}, v{r}")
            for r, x in zip(rr, t):
                out.append(f"v_add_f32 v{r}, v{r}, v{x}")
        return out

    def compute(self):
        a = self.a
        acc = 100
        FA = [8, 48]
        vXA, vXB, vWA, vWB = 88, 90, 92, 94
        sHI, sMI, sSl, sIt = 64, 65, 66, 67
        AQ = lambda mt, nt: acc + (mt * 2 + nt) * 4
        AK = lambda mt, nt: acc + 32 + (mt * 2 + nt) * 4
        AV = lambda mt, nt: acc + 64 + (mt * 2 + nt) * 4
        a("s_setprio 3")
        a("s_getpc_b64 s[88:89]")
        a("v_lshlrev_b32 v3, 7, v0")
        a("v_min_u32 v3, CODE_LEFT, v3")
        a("global_load_dword v7, v3, s[88:89]")
        a(f"s_and_b32 s{sHI}, s{sWave}, 1")
        a(f"s_lshr_b32 s{sMI}, s{sWave}, 1")
        a("v_and_b32 v3, 15, v2")
        a("v_lshrrev_b32 v4, 4, v2")
        a("v_lshrrev_b32 v5, 1, v3")
        a("v_xor_b32 v5, v5, v4")
        a("v_lshlrev_b32 v5, 4, v5")
        a("v_lshl_add_u32 v5, v3, 7, v5")
        a(f"s_lshl_b32 s88, s{sMI}, 13")
        a(f"v_add_u32 v{vXB}, s88, v5")
        a(f"v_xor_b32 v{vXB+1}, 64, v{vXB}")
        a("v_lshrrev_b32 v3, 2, v2\nv_and_b32 v3, 3, v3")
        a("v_lshl_add_u32 v5, v4, 3, v3")
        a("v_lshlrev_b32 v5, 7, v5")
        a("v_lshrrev_b32 v3, 1, v3")
        a(f"v_xor_b32 v6, s{sHI}, v4\nv_and_b32 v6, 1, v6")
        a("v_lshl_add_u32 v3, v6, 1, v3")
        a("v_lshl_add_u32 v5, v3, 5, v5")
        a("v_and_b32 v3, 3, v2")
        a("v_lshl_add_u32 v5, v3, 3, v5")
        a(f"v_add_u32 v{vWB}, 16384, v5")
        a(f"v_xor_b32 v{vWB+1}, 32, v{vWB}")
        sE, sL = 90, 91
        a(f"s_mov_b32 s{sE}, {fbits(EPS)}")
        a(f"s_mov_b32 s{sL}, {fbits(LOG2E)}")
        for i in range(64):
            a(f"v_mov_b32 v{acc+i}, s{sE}")
        for i in range(64, 96):
            a(f"v_mov_b32 v{acc+i}, 0")
        a(f"v_lshlrev_b32 v3, 2, v2\nv_add_u32 v3, {L_MISC}, v3")
        a(f"ds_write_b32 v3, v{acc+64}")
        a("s_waitcnt lgkmcnt(0)")
        if self.prof:
            a("s_mov_b32 s72, s68")
        srd(a, rWS, pWs, WS_SIZE)
        srd(a, rO, pOut, 8 << 20)

        def reads(fs, ks):
            f = FA[fs]
            r = []
            X = lambda m: r.append(f"ds_read_b128 {V(f+4*m,4)}, v{vXA+ks} offset:{m*2048}")

            def W(sec, nt):
                for t in range(2):
                    r.append(f"ds_read_b64_tr_b16 {V(f+16+sec*8+nt*4+2*t,2)}, v{vWA+nt} offset:{sec*8192+ks*4096+t*512}")
            X(0); W(1, 0); X(1); X(2); X(3); W(1, 1); W(2, 0); W(2, 1); W(0, 0); W(0, 1)
            return r

        def mfmas(fs):
            f = FA[fs]
            m = []
            i = 0
            for sec in (1, 2, 0):
                for nt in range(2):
                    for mt in (range(4) if i % 2 == 0 else range(3, -1, -1)):
                        c = acc + sec * 32 + (mt * 2 + nt) * 4
                        xa, wa = f + 4 * mt, f + 16 + sec * 8 + nt * 4
                        m.append(MF(c, xa, wa) if sec else MF(c, wa, xa))
                    i += 1
            return m

        sa = [f"v_add_u32 v{vXA+i}, s{sSl}, v{vXB+i}" for i in range(2)] + \
             [f"v_add_u32 v{vWA+i}, s{sSl}, v{vWB+i}" for i in range(2)]
        sEvt = 96
        a(f"s_cmp_eq_u32 s{sWave}, 0\ns_cselect_b32 s{sEvt}, 5, 64\ns_mov_b32 s97, {SPIN}")
        a("s_and_b32 s88, s2, 3\ns_lshl_b32 s88, s88, 6")
        a("v_mov_b32 v96, s88\nv_mov_b32 v97, 1\nv_and_b32 v98, 3, v2\nv_lshlrev_b32 v98, 6, v98\nv_mov_b32 v99, 0")
        a(f"s_mov_b32 s{sSl}, 0\ns_mov_b32 s{sIt}, 0")
        for l in sa:
            a(l)
        a("s_barrier")
        self.stamp(1)
        for l in reads(0, 0):
            a(l)
        a(".p2align 3")
        a.label("L_cloop")
        sal = [f"s_add_u32 s{sSl}, s{sSl}, {SLOT}", f"s_cmp_eq_u32 s{sSl}, {3*SLOT}",
               f"s_cselect_b32 s{sSl}, 0, s{sSl}", f"s_add_u32 s{sIt}, s{sIt}, 1", f"s_cmp_eq_u32 s{sIt}, 16"]
        for l in interleave(mfmas(0), reads(1, 1) + sal, 0, 1, 1):
            a(l)
        a("s_waitcnt lgkmcnt(0)")
        m = mfmas(1)
        a(m[0]); a(sa[0]); a(m[1]); a(sa[2]); a(m[2])
        a("s_barrier")
        a("s_cbranch_scc1 L_cexit")
        rr = reads(0, 0)
        for l in interleave(m[3:], rr[:3] + [sa[3]] + rr[3:] + [sa[1], f"s_cmp_lg_u32 s{sIt}, s{sEvt}"], 0, 1, 1):
            a(l)
        a("s_cbranch_scc1 L_cloop")
        a(f"s_cmp_eq_u32 s{sIt}, 10")
        a("s_cbranch_scc1 L_ev10")
        a(f"s_cmp_eq_u32 s{sIt}, 11")
        a("s_cbranch_scc1 L_ev11")
        a("s_mov_b64 exec, 1")
        a(f"global_atomic_add v96, v97, {S(pDbg,2)} sc1")
        a("s_mov_b64 exec, -1")
        a(f"s_mov_b32 s{sEvt}, 10")
        a("s_branch L_cloop")
        a.label("L_ev10")
        a(f"global_load_dword v99, v98, {S(pDbg,2)} sc1")
        a(f"s_mov_b32 s{sEvt}, 11")
        a("s_branch L_cloop")
        a.label("L_ev11")
        a("v_cmp_ne_u32 vcc, 64, v99")
        a("s_cbranch_vccz L_cloop")
        a("s_sub_u32 s97, s97, 1")
        a("s_cbranch_scc1 L_cloop")
        a(f"global_load_dword v99, v98, {S(pDbg,2)} sc1")
        a("s_branch L_ev11")
        a.label("L_cexit")
        vC, vOne, vL16, vEx, vLF, vZo, vFo = 8, 12, 9, 10, 11, 16, 17
        sHead, sT0, sT1 = 92, 93, 94
        pre = [f"v_mov_b32 v{vC}, {fbits(-EPS*LOG2E)}"]
        pre += [f"v_mov_b32 v{vOne+i}, 0x3f803f80" for i in range(4)]
        pre += [f"v_lshlrev_b32 v{vL16}, 4, v2",
                f"s_lshl_b32 s{sHead}, s{sHP}, 1", f"s_add_u32 s{sHead}, s{sHead}, s{sHI}",
                f"s_lshl_b32 s{sT0}, s{sWave}, 11", f"v_add_u32 v{vEx}, s{sT0}, v{vL16}",
                f"s_lshl_b32 s{sT0}, s{sWave}, 2", f"s_add_u32 s{sT0}, s{sT0}, {L_MISC}", f"v_mov_b32 v{vLF}, s{sT0}",
                "v_and_b32 v3, 15, v2", "v_lshlrev_b32 v5, 5, v4", f"v_lshl_add_u32 v{vZo}, v3, 26, v5",
                f"v_lshlrev_b32 v{vFo}, 26, v2"]
        for l in interleave(m[3:], pre, 0, 1, 1):
            a(l)
        self.stamp(2)
        KF = lambda ch, dt: 20 + (ch * 2 + dt) * 4
        VF = lambda ch, et: 36 + (ch * 2 + et) * 4
        D = lambda dt, et: 52 + (et * 2 + dt) * 4
        Z = lambda dt: 68 + dt * 4
        tmp = 76
        for ch in range(2):
            for et in range(2):
                for h in range(2):
                    s = AV(2 * ch + h, et)
                    a(f"v_cvt_pk_bf16_f32 v{VF(ch,et)+2*h}, v{s}, v{s+1}")
                    a(f"v_cvt_pk_bf16_f32 v{VF(ch,et)+2*h+1}, v{s+2}, v{s+3}")
            for dt in range(2):
                for h in range(2):
                    s = AK(2 * ch + h, dt)
                    for l in self.phi([s, s + 1, s + 2, s + 3], tmp, sL, vC, sE):
                        a(l)
                    a(f"v_cvt_pk_bf16_f32 v{KF(ch,dt)+2*h}, v{s}, v{s+1}")
                    a(f"v_cvt_pk_bf16_f32 v{KF(ch,dt)+2*h+1}, v{s+2}, v{s+3}")
                c0 = "0" if ch == 0 else None
                a(MF(D(dt, 0), KF(ch, dt), VF(ch, 0), c0))
                a(MF(D(dt, 1), KF(ch, dt), VF(ch, 1), c0))
                a(MF(Z(dt), KF(ch, dt), vOne, c0))
        RX = 80
        PK = 20
        a(f"v_xor_b32 v5, 4096, v{vEx}")
        a(f"v_xor_b32 v6, 8, v{vLF}")
        a("v_mov_b32 v7, 1")
        a(f"s_lshl_b32 s{sT0}, s{sRT}, 1\ns_add_u32 s{sT0}, s{sT0}, s{sMI}")
        a(f"s_lshl_b32 s{sT1}, s{sHead}, 5\ns_add_u32 s{sT1}, s{sT1}, s{sT0}")
        a(f"s_lshl_b32 s95, s{sT1}, 2")
        a(f"s_lshl_b32 s{sT1}, s{sT1}, 7\ns_add_u32 s{sT1}, s{sT1}, {WS_ZP}")
        a(f"s_lshl_b32 s96, s{sHead}, 1\ns_add_u32 s96, s96, s{sMI}\ns_lshl_b32 s96, s96, 14\ns_add_u32 s96, s96, {WS_KVP}")
        a(f"s_lshl_b32 s{sT0}, s{sRT}, 10\ns_add_u32 s{sT0}, s{sT0}, s96")
        a(f"s_cmp_eq_u32 s{sMI}, 0")
        a("s_cbranch_scc0 L_ex1")
        for mi in range(2):
            if mi == 1:
                a.label("L_ex1")
            a(f"ds_write_b128 v{vEx}, {V(D(0,1-mi),4)} offset:{L_EX}")
            a(f"ds_write_b128 v{vEx}, {V(D(1,1-mi),4)} offset:{L_EX+1024}")
            a(f"ds_write_b32 v{vLF}, v7")
            a(f"buffer_store_dwordx4 {V(Z(0),4)}, v{vZo}, {S(rWS,4)}, s{sT1} offen sc1")
            a(f"buffer_store_dwordx4 {V(Z(1),4)}, v{vZo}, {S(rWS,4)}, s{sT1} offen offset:16 sc1")
            self.poll_lds(6, 0, 1, 3)
            a(f"ds_read_b128 {V(RX,4)}, v5 offset:{L_EX}")
            a(f"ds_read_b128 {V(RX+4,4)}, v5 offset:{L_EX+1024}")
            for i in range(0, 8, 2):
                a(f"v_pk_add_f32 {V(RX+i,2)}, {V(RX+i,2)}, {V(D(0,mi)+i,2)}")
            if mi == 0:
                a("s_branch L_ex2")
        a.label("L_ex2")
        for i in range(4):
            a(f"v_cvt_pk_bf16_f32 v{PK+i}, v{RX+2*i}, v{RX+2*i+1}")
        a(f"buffer_store_dwordx4 {V(PK,4)}, v{vL16}, {S(rWS,4)}, s{sT0} offen sc1")
        self.stamp(3)
        PQ = lambda mt: 24 + mt * 4
        for mt in range(4):
            for nt in range(2):
                s = AQ(mt, nt)
                for l in self.phi([s, s + 1, s + 2, s + 3], tmp, sL, vC, sE):
                    a(l)
                a(f"v_cvt_pk_bf16_f32 v{PQ(mt)+2*nt}, v{s}, v{s+1}")
                a(f"v_cvt_pk_bf16_f32 v{PQ(mt)+2*nt+1}, v{s+2}, v{s+3}")
        a("s_waitcnt vmcnt(0)")
        a(f"buffer_store_dword v7, v{vFo}, {S(rWS,4)}, s95 offen sc1")
        self.stamp(4)
        SEL = 40
        vPo, vZi, vEps = 46, 47, 48
        a("v_and_b32 v3, 15, v2")
        a(f"v_lshlrev_b32 v5, 5, v4\nv_lshl_add_u32 v{vZi}, v3, 7, v5")
        a("v_lshlrev_b32 v5, 2, v4\nv_sub_u32 v5, v3, v5")
        a("v_mov_b32 v18, 0x3f80\nv_mov_b32 v19, 0x3f800000")
        for i in (0, 1, 4, 5):
            a(f"v_mov_b32 v{SEL+i}, 0")
        for j in range(2):
            a(f"v_cmp_eq_u32 vcc, {2*j}, v5")
            a(f"v_cndmask_b32 v{SEL+2+j}, v{SEL}, v18, vcc")
            a(f"v_cmp_eq_u32 vcc, {2*j+1}, v5")
            a(f"v_cndmask_b32 v{SEL+2+j}, v{SEL+2+j}, v19, vcc")
        for i in range(4):
            a(f"v_mov_b32 v{vEps+i}, s{sE}")
        a(f"v_and_b32 v{vPo}, 31, v2\nv_lshlrev_b32 v{vPo}, 2, v{vPo}")
        a(f"s_lshl_b32 s{sT0}, s{sHead}, 7")
        a(f"s_lshl_b32 s{sT1}, s{sHead}, 12\ns_add_u32 s{sT1}, s{sT1}, {WS_ZP}")
        self.poll_global(vPo, sT0, 3, 97)
        self.stamp(5)
        PF = 100
        ZL = 164
        for i in range(4):
            a(f"buffer_load_dwordx4 {V(ZL+4*i,4)}, v{vZi}, {S(rWS,4)}, s{sT1} offen offset:{(i>>1)*2048+(i&1)*16} sc1")
        for i in range(16):
            if i and i % 4 == 0:
                a("s_add_u32 s96, s96, 4096")
            a(f"buffer_load_dwordx4 {V(PF+4*i,4)}, v{vL16}, {S(rWS,4)}, s96 offen offset:{(i%4)*1024} sc1")
        a(f"s_lshl_b32 s{sT0}, s{sRT}, 1\ns_add_u32 s{sT0}, s{sT0}, s{sMI}")
        a(f"s_lshl_b32 s95, s{sT0}, 5\ns_add_u32 s95, s95, s{sHead}\ns_lshl_b32 s95, s95, 2\ns_add_u32 s95, s95, {WS_F2}")
        a(f"s_lshl_b32 s{sT0}, s{sT0}, 7\ns_add_u32 s{sT0}, s{sT0}, s{sHead}\ns_lshl_b32 s{sT0}, s{sT0}, 10\ns_add_u32 s{sT0}, s{sT0}, {WS_OF}")
        for i in range(0, 8, 2):
            a(f"v_pk_add_f32 {V(ZL+i,2)}, {V(ZL+i,2)}, {V(ZL+8+i,2)}")
        for sh in (8, 4, 2, 1):
            for i in range(8):
                a(f"v_add_f32_dpp v{ZL+i}, v{ZL+i}, v{ZL+i} row_ror:{sh} row_mask:0xf bank_mask:0xf")
        ZF = 52
        for i in range(4):
            a(f"v_cvt_pk_bf16_f32 v{ZF+i}, v{ZL+2*i}, v{ZL+2*i+1}")
        SD = 56
        for i in range(16):
            a(MF(SD, SEL + 2, PF + 4 * i, "0" if i == 0 else None))
            a(MF(SD + 4, SEL, PF + 4 * i, "0" if i == 0 else None))
        DEN = lambda mt: 72 + 4 * mt
        for mt in range(4):
            a(MF(DEN(mt), ZF, PQ(mt), V(vEps, 4)))
        for i in range(4):
            a(f"v_cvt_pk_bf16_f32 v{PK+i}, v{SD+2*i}, v{SD+2*i+1}")
        a(f"s_lshl_b32 s{sT1}, s{sHI}, 11")
        a(f"v_add_u32 v18, s{sT1}, v{vL16}")
        a(f"ds_write_b128 v{vEx}, {V(PK,4)} offset:{L_EX}")
        a(f"ds_write_b32 v{vLF}, v7 offset:16")
        for mt in range(4):
            a(f"v_rcp_f32 v{DEN(mt)}, v{DEN(mt)}")
        self.poll_lds(6, 16, 1, 3)
        KV = 64
        a(f"ds_read_b128 {V(KV,4)}, v18 offset:{L_EX}")
        a(f"ds_read_b128 {V(KV+4,4)}, v18 offset:{L_EX+4096}")
        NUM = lambda mt, et: 100 + (mt * 2 + et) * 4
        for mt in range(4):
            for et in range(2):
                a(MF(NUM(mt, et), KV + 4 * et, PQ(mt), "0"))
        OFR = lambda mt: 132 + 4 * mt
        for mt in range(4):
            for i in range(0, 8, 2):
                a(f"v_pk_mul_f32 {V(NUM(mt,0)+i,2)}, {V(NUM(mt,0)+i,2)}, {V(DEN(mt),2)} op_sel_hi:[1,0]")
            for i in range(4):
                a(f"v_cvt_pk_bf16_f32 v{OFR(mt)+i}, v{NUM(mt,0)+2*i}, v{NUM(mt,0)+2*i+1}")
            a(f"buffer_store_dwordx4 {V(OFR(mt),4)}, v{vL16}, {S(rWS,4)}, s{sT0} offen sc1")
            if mt < 3:
                a(f"s_add_u32 s{sT0}, s{sT0}, 32768")
        self.stamp(6)
        WB = 20
        a("v_lshrrev_b32 v3, 2, v2")
        a("v_lshrrev_b32 v5, 1, v3\nv_and_b32 v5, 3, v5")
        a("v_lshlrev_b32 v5, 5, v5\nv_lshl_add_u32 v5, v3, 7, v5")
        a("v_and_b32 v3, 3, v2\nv_lshl_add_u32 v5, v3, 3, v5")
        for nt in range(4):
            a(f"v_xor_b32 v{WB+nt}, {32*nt}, v5")
            for win in (1, 2):
                a(f"v_add_u32 v{WB+4*win+nt}, {win*61440}, v{WB+nt}")
        sO0, sO1 = 98, 99
        a(f"s_lshl_b32 s{sO0}, s{sRT2}, 2\ns_add_u32 s{sO0}, s{sO0}, s{sWave}\ns_lshl_b32 s{sO0}, s{sO0}, 16\ns_add_u32 s{sO0}, s{sO0}, {WS_OF}")
        a(f"s_add_u32 s{sO1}, s{sO0}, 32768")
        a(f"s_lshl_b32 s{sT1}, s{sRT2}, 1\ns_add_u32 s{sT1}, s{sT1}, s{sMI}\ns_lshl_b32 s{sT1}, s{sT1}, 7\ns_add_u32 s{sT1}, s{sT1}, {WS_F2}")
        a(f"v_mov_b32 v18, {L_MISC}")
        a("s_waitcnt vmcnt(0)")
        a(f"buffer_store_dword v7, v{vFo}, {S(rWS,4)}, s95 offen sc1")
        self.stamp(7)
        self.poll_global(vPo, sT1, 3, 97)
        self.stamp(8)
        OR = 128
        OA = 32
        WF = [64, 80]

        def oload(h):
            r = []
            if h and h % 4 == 0:
                r.append(f"s_add_u32 s{sO0}, s{sO0}, 4096")
                r.append(f"s_add_u32 s{sO1}, s{sO1}, 4096")
            for m_ in range(2):
                r.append(f"buffer_load_dwordx4 {V(OR+(h%16)*8+4*m_,4)}, v{vL16}, {S(rWS,4)}, s{sO0+m_} offen offset:{(h%4)*1024} sc1")
            return r

        def wreads(h):
            base = WO_SLOTS[h]
            win = min(base // 61440, 2)
            off = base - win * 61440
            assert off + 2048 < 65536
            r = []
            for nt in range(4):
                for t in range(2):
                    r.append(f"ds_read_b64_tr_b16 {V(WF[h&1]+4*nt+2*t,2)}, v{WB+4*win+nt} offset:{off+2048*t}")
            return r

        for h in range(16):
            for l in oload(h):
                a(l)
        self.poll_lds(18, LF_WA - L_MISC, 4, 3)
        for l in wreads(0):
            a(l)
        NE = len(WO_E1) + len(WO_E2)
        for h in range(32):
            if h + 1 == NE:
                self.poll_lds(18, LF_WB - L_MISC, 4, 3)
            mm = []
            for nt in range(4):
                for m_ in ((0, 1) if nt % 2 == 0 else (1, 0)):
                    mm.append(MF(OA + (m_ * 4 + nt) * 4, WF[h & 1] + 4 * nt, OR + (h % 16) * 8 + 4 * m_, "0" if h == 0 else None))
            fill = wreads(h + 1) if h < 31 else []
            for l in interleave(mm, fill, 0, 1, 1):
                a(l)
            if h + 16 < 32:
                for l in oload(h + 16):
                    a(l)
        self.stamp(9)
        a("v_and_b32 v3, 15, v2")
        a("v_and_b32 v5, 1, v4\nv_lshlrev_b32 v5, 5, v5")
        a("v_lshrrev_b32 v6, 1, v4\nv_lshl_add_u32 v5, v6, 4, v5")
        a("v_lshl_add_u32 v5, v3, 12, v5")
        a(f"s_lshl_b32 s{sT0}, s{sRT2}, 2\ns_add_u32 s{sT0}, s{sT0}, s{sWave}\ns_lshl_b32 s{sT0}, s{sT0}, 17")
        a(f"s_lshl_b32 s{sT1}, s{sCT}, 7\ns_add_u32 s{sT0}, s{sT0}, s{sT1}")
        a(f"s_add_u32 s{sT1}, s{sT0}, 65536")
        ST = 64
        for m_ in range(2):
            for j in range(2):
                s = OA + (m_ * 4 + 2 * j) * 4
                d = ST + (m_ * 2 + j) * 4
                for i in range(4):
                    a(f"v_cvt_pk_bf16_f32 v{d+i}, v{s+2*i}, v{s+2*i+1}")
        for m_ in range(2):
            for j in range(2):
                d = ST + (m_ * 2 + j) * 4
                a(f"v_permlane16_swap_b32 v{d}, v{d+2}")
                a(f"v_permlane16_swap_b32 v{d+1}, v{d+3}")
                a(f"buffer_store_dwordx4 {V(d,4)}, v5, {S(rO,4)}, s{sT0+m_} offen offset:{64*j}")
        self.dump_stamps()
        a("s_endpgm")

    def helper(self):
        a = self.a
        sW4, sXo, sWo_, sLb, sT0, sT1, sD, sScr, sUc = 64, 65, 66, 67, 88, 89, 90, 91, 92
        vX, vW, vWo, vL16, vFo = 8, 9, 10, 11, 7
        a.label("L_helper")
        a(f"s_sub_u32 s{sW4}, s{sWave}, 4")
        a("v_lshrrev_b32 v3, 3, v2")
        a(f"s_lshl_b32 s{sT0}, s{sW4}, 3")
        a(f"v_add_u32 v4, s{sT0}, v3")
        a("v_lshrrev_b32 v5, 1, v4\nv_xor_b32 v5, v5, v2\nv_and_b32 v5, 7, v5\nv_lshlrev_b32 v5, 4, v5")
        a(f"v_lshl_add_u32 v{vX}, v4, 11, v5")
        a("v_and_b32 v5, 2, v4\nv_lshrrev_b32 v6, 1, v4\nv_and_b32 v6, 4, v6\nv_or_b32 v5, v5, v6")
        a("v_xor_b32 v5, v5, v2\nv_and_b32 v5, 7, v5\nv_lshlrev_b32 v5, 4, v5")
        a(f"v_mul_u32_u24 v6, 6144, v4\nv_add_u32 v{vW}, v6, v5")
        a(f"s_lshl_b32 s{sXo}, s{sRT}, 18")
        a(f"s_lshl_b32 s{sWo_}, s{sHP}, 7")
        a(f"s_lshl_b32 s{sLb}, s{sW4}, 10")
        a("s_waitcnt lgkmcnt(0)")
        if self.prof:
            a("s_mov_b32 s72, s68")
        srd(a, rX, pX, 4 << 20)
        srd(a, rW, pW, 6 << 20)

        vmq = []

        def emit(l, tag=None):
            n0 = len(a.ins)
            a(l)
            for x in a.ins[n0:]:
                if x.kind == "vmem":
                    vmq.append(tag)

        def wait_tag(tag):
            last = max(i for i, t in enumerate(vmq) if t == tag)
            a(f"s_waitcnt vmcnt({len(vmq)-1-last})")

        def stage(k):
            sl = (k % 3) * SLOT
            for j in range(4):
                emit(f"s_add_u32 m0, s{sLb}, {sl+j*4096}")
                emit(f"s_add_u32 s{sT0}, s{sXo}, {k*128+j*32*2048}")
                emit(f"buffer_load_dwordx4 v{vX}, {S(rX,4)}, s{sT0} offen lds", ("st", k))
            for sec in range(3):
                for j in range(2):
                    emit(f"s_add_u32 m0, s{sLb}, {sl+16384+sec*8192+j*4096}")
                    emit(f"s_add_u32 s{sT0}, s{sWo_}, {(k*64+j*32)*6144+sec*2048}")
                    emit(f"buffer_load_dwordx4 v{vW}, {S(rW,4)}, s{sT0} offen lds", ("st", k))

        stage(0)
        stage(1)
        srd(a, rWS, pWs, WS_SIZE)
        srd(a, rO, pOut, 8 << 20)
        srd(a, rWo, pWo, 2 << 20)
        srd(a, rU, pU, 4 << 20)
        a(f"s_lshl_b32 s{sD}, s2, 2\ns_add_u32 s{sD}, s{sD}, s{sW4}")
        a(f"s_mul_i32 s{sScr}, s{sW4}, {SCR}\ns_add_u32 s{sScr}, s{sScr}, {L_SCR}")
        a(f"s_mul_i32 s{sUc}, s{sW4}, {UC}\ns_add_u32 s{sUc}, s{sUc}, {L_UC}")
        a(f"v_lshlrev_b32 v{vL16}, 4, v2")
        a(f"v_lshlrev_b32 v{vFo}, 26, v2")
        a("v_and_b32 v5, 6, v3\nv_xor_b32 v5, v5, v2\nv_and_b32 v5, 7, v5\nv_lshlrev_b32 v5, 4, v5")
        a(f"v_lshl_add_u32 v{vWo}, v3, 11, v5")

        side = [[] for _ in range(16)]
        sST, sDG, sT2 = 93, 94, 95
        PR = 12
        s0 = side[0]
        s0 += [f"s_lshl_b32 s{sT1}, s{sD}, 8", f"v_lshl_add_u32 v4, v2, 2, s{sT1}"]
        for i, p in enumerate((pAre, pAim, pBre, pBim, pCre, pCim)):
            s0.append(f"global_load_dword v{PR+i}, v4, {S(p,2)}")
        s0 += [f"s_lshl_b32 s{sT1}, s{sD}, 1", f"v_mov_b32 v5, s{sT1}",
               f"global_load_ushort v{PR+6}, v5, {S(pLdt,2)}", f"global_load_ushort v{PR+7}, v5, {S(pDsk,2)}"]
        s0 += [f"s_lshr_b32 s{sST}, s2, 4", f"s_and_b32 s{sDG}, s2, 15",
               "v_and_b32 v5, 7, v2", "v_lshlrev_b32 v5, 4, v5", "v_lshl_add_u32 v5, v3, 11, v5",
               f"s_lshl_b32 s{sT1}, s{sST}, 2", f"s_add_u32 s{sT1}, s{sT1}, s{sW4}", f"s_lshl_b32 s{sT1}, s{sT1}, 16",
               f"s_lshl_b32 s{sT2}, s{sDG}, 7", f"s_add_u32 s{sT1}, s{sT1}, s{sT2}"]
        for j in range(4):
            s0 += [f"s_add_u32 m0, s{sScr}, {j*1024}", f"s_add_u32 s{sT2}, s{sT1}, {j*8*2048}",
                   (f"buffer_load_dwordx4 v5, {S(rU,4)}, s{sT2} offen lds", "ut")]
        s0 += [f"v_mov_b32 v{20+i}, 0" for i in range(4)]
        s0 += [f"s_lshl_b32 s{sT1}, s{sD}, 4",
               f"buffer_store_dwordx4 v[20:23], v{vFo}, {S(rWS,4)}, s{sT1} offen sc1"]
        s2 = side[2]
        UTR = 96
        s2 += [("WAIT", "ut"),
               "v_lshrrev_b32 v4, 4, v2", "v_lshrrev_b32 v5, 2, v2", "v_and_b32 v5, 3, v5",
               "v_lshl_add_u32 v5, v4, 3, v5", "v_and_b32 v6, 3, v2", "v_lshlrev_b32 v6, 3, v6",
               "v_lshl_add_u32 v5, v5, 7, v6", f"v_add_u32 v5, s{sScr}, v5"]
        for k in range(4):
            for t in range(2):
                s2.append(f"ds_read_b64_tr_b16 {V(UTR+4*k+2*t,2)}, v5 offset:{32*k+512*t}")
        s2 += ["v_and_b32 v6, 15, v2", "v_lshlrev_b32 v6, 12, v6", "v_lshl_add_u32 v6, v4, 4, v6",
               f"s_lshl_b32 s{sT1}, s{sST}, 2", f"s_add_u32 s{sT1}, s{sT1}, s{sW4}", f"s_lshl_b32 s{sT1}, s{sT1}, 6",
               f"s_lshl_b32 s{sT2}, s{sDG}, 18", f"s_add_u32 s{sT1}, s{sT1}, s{sT2}"]
        for k in range(4):
            s2 += [f"s_add_u32 s{sT2}, s{sT1}, {WS_UT+k*65536}",
                   f"buffer_store_dwordx4 {V(UTR+4*k,4)}, v6, {S(rWS,4)}, s{sT2} offen sc1"]
        kg = []
        vDt, vTW, vTR = 20, 21, 22
        ST = lambda n, i: 24 + n * 32 + 2 * i
        CV = 88
        kg += [f"v_lshlrev_b32 v{vDt}, 16, v{PR+6}", f"v_mul_f32 v{vDt}, {fbits(LOG2E)}, v{vDt}",
               f"v_exp_f32 v{vDt}, v{vDt}",
               f"v_lshl_add_u32 v{vTW}, v2, 3, s{sScr}",
               "v_and_b32 v4, 15, v2", "v_mul_u32_u24 v4, 544, v4", "v_and_b32 v5, 48, v2",
               f"v_add3_u32 v{vTR}, v4, v5, s{sScr}",
               f"v_cvt_pk_bf16_f32 v{vDt}, v{vDt}, v{vDt}", f"v_lshlrev_b32 v{vDt}, 16, v{vDt}"]
        for i in range(3):
            for c in range(2):
                kg.append(f"v_lshlrev_b32 v{ST(0,i)+c}, 16, v{PR+2*i+c}")
                kg.append(f"v_and_b32 v{ST(1,i)+c}, 0xffff0000, v{PR+2*i+c}")
        for n in range(2):
            for i in range(2):
                for c in range(2):
                    kg.append(f"v_mul_f32 v{ST(n,i)+c}, v{vDt}, v{ST(n,i)+c}")
        for n in range(2):
            kg.append(f"v_mul_f32 v{ST(n,0)}, {fbits(LOG2E)}, v{ST(n,0)}")
            kg.append(f"v_mul_f32 v{ST(n,0)+1}, {fbits(1/(2*math.pi))}, v{ST(n,0)+1}")

        def cmul(dst, x, y):
            return [[f"v_pk_mul_f32 {V(ST(n,dst),2)}, {V(ST(n,x),2)}, {V(ST(n,y),2)} op_sel_hi:[1,0]" for n in range(2)],
                    [f"v_pk_fma_f32 {V(ST(n,dst),2)}, {V(ST(n,x),2)}, {V(ST(n,y),2)}, {V(ST(n,dst),2)} op_sel:[1,1,0] op_sel_hi:[0,1,1] neg_lo:[1,0,0]" for n in range(2)]]

        def CM(dst, x, y):
            p = cmul(dst, x, y)
            return p[0] + p[1]

        kg += CM(6, 2, 1)
        for zi, L in ((3, 1.0), (4, 8.0), (5, 256.0)):
            for n in range(2):
                kg.append(f"v_mul_f32 v{ST(n,12)}, {fbits(L)}, v{ST(n,0)}")
                kg.append(f"v_mul_f32 v{ST(n,12)+1}, {fbits(L)}, v{ST(n,0)+1}")
            for n in range(2):
                kg.append(f"v_fract_f32 v{ST(n,12)+1}, v{ST(n,12)+1}")
                kg.append(f"v_exp_f32 v{ST(n,12)}, v{ST(n,12)}")
            for n in range(2):
                kg.append(f"v_cos_f32 v{ST(n,zi)}, v{ST(n,12)+1}")
                kg.append(f"v_sin_f32 v{ST(n,zi)+1}, v{ST(n,12)+1}")
            for n in range(2):
                kg.append(f"v_pk_mul_f32 {V(ST(n,zi),2)}, {V(ST(n,zi),2)}, {V(ST(n,12),2)} op_sel_hi:[1,0]")
        cvn = [0]

        def row(r, pair, neg):
            c = CV + 2 * (cvn[0] % 4)
            cvn[0] += 1
            o = [f"v_cvt_pk_bf16_f32 v{c+n}, v{ST(n,pair)}, {'-' if neg else ''}v{ST(n,pair)+1}" for n in range(2)]
            o.append(f"ds_write_b64 v{vTW}, {V(c,2)} offset:{r*544}")
            return o

        def frags(dst):
            return [f"ds_read_b128 {V(dst+4*f,4)}, v{vTR} offset:{64*f}" for f in range(8)]

        FT0, FT1, FS0, FS1 = 128, 160, 192, 224
        kg += row(0, 6, True)
        for j in range(4):
            kg += CM(10, 6 + j, 3) + row(2 * j + 1, 10, True)
            if j < 3:
                kg += CM(7 + j, 10, 3) + row(2 * j + 2, 7 + j, True)
        kg += CM(10, 6, 5) + row(8, 10, True)
        kg += CM(12, 7, 5) + row(9, 12, True)
        kg += CM(11, 8, 5) + row(10, 11, True)
        kg += CM(12, 9, 5) + row(11, 12, True)
        kg += CM(6, 10, 5) + row(12, 6, True)
        kg += CM(8, 11, 5) + row(13, 8, True)
        kg += CM(10, 6, 5) + row(14, 10, True)
        kg += CM(11, 8, 5) + row(15, 11, True)
        kg += frags(FT0)
        cur = 10
        for r in range(5):
            nxt = 6 if cur == 10 else 10
            kg += CM(nxt, cur, 5) + row(r, nxt, True)
            cur = nxt
        kg += frags(FT1)
        for n in range(2):
            kg += [f"v_mov_b32 v{ST(n,10)}, 1.0", f"v_mov_b32 v{ST(n,10)+1}, 0"]
        kg += row(0, 10, False) + row(1, 4, False)
        cur = 4
        for j in range(2, 32):
            nxt = 10 if cur != 10 else 11
            kg += CM(nxt, cur, 4) + row(j % 16, nxt, False)
            cur = nxt
            if j == 15:
                kg += frags(FS0)
        kg += frags(FS1)
        k0, k1 = 3, 13
        per = -(-len(kg) // (k1 - k0 + 1))
        for i in range(k0, k1 + 1):
            side[i] += kg[(i - k0) * per:(i - k0 + 1) * per]
        s12 = [f"s_lshl_b32 s{sT1}, s{sD}, 12", f"s_add_u32 s{sT1}, s{sT1}, {WS_UT}", f"s_sub_u32 s{sT2}, s{sT1}, 4"]
        for e in range(2):
            for k in range(4):
                s12.append(f"buffer_load_dwordx4 {V(UTR+16*e+4*k,4)}, v{vL16}, {S(rWS,4)}, s{sT2 if e == 0 else sT1} offen offset:{1024*k} sc1")
        side[12] = s12 + side[12]
        s14 = side[14]
        s14 += [f"v_mov_b32 v{24+i}, 0" for i in range(4)]
        s14 += [f"v_add_u32 v4, s{sUc}, v{vL16}", "v_min_u32 v5, 27, v2", f"v_lshl_add_u32 v5, v5, 4, s{sUc}",
                "v_cmp_eq_u32 vcc, 0, v2",
                "ds_write_b128 v5, v[24:27]", f"ds_write_b128 v5, v[24:27] offset:{UCS}",
                f"v_cndmask_b32 v{UTR}, v{UTR}, v24, vcc"]
        for e in range(2):
            for k in range(4):
                s14.append(f"ds_write_b128 v4, {V(UTR+16*e+4*k,4)} offset:{e*UCS+448+1024*k}")

        def wo_dma(h, piece_s, piece_imm, lds_s, lds_imm):
            emit(f"s_add_u32 m0, s{lds_s}, {lds_imm}")
            emit(f"s_add_u32 s{sT0}, s{piece_s}, {piece_imm}")
            emit(f"buffer_load_dwordx4 v{vWo}, {S(rWo,4)}, s{sT0} offen lds", "wo")

        def run_side(lst):
            for l in lst:
                if isinstance(l, tuple):
                    if l[0] == "WAIT":
                        wait_tag(l[1])
                    else:
                        emit(l[0], l[1])
                else:
                    emit(l)

        for k in range(16):
            wait_tag(("st", k))
            a("s_barrier")
            if k == 0:
                self.stamp(1)
            if k + 2 < 16:
                stage(k + 2)
            if k == 15:
                a(f"s_lshl_b32 s{sT1}, s{sW4}, 14\ns_lshl_b32 s{sT2}, s{sCT}, 7\ns_add_u32 s{sT1}, s{sT1}, s{sT2}")
                for h in range(len(WO_E1)):
                    wo_dma(h, sT1, h * 65536, sLb, WO_SLOTS[h])
            run_side(side[k])
        a("s_barrier")
        self.stamp(2)
        KD = lambda tt, st: 24 + (tt * 2 + st) * 4
        mm = []
        for tt in range(2):
            for st in range(2):
                for f in range(8):
                    mm.append(MF(KD(tt, st), (FT0, FT1)[tt] + 4 * f, (FS0, FS1)[st] + 4 * f, "0" if f == 0 else None))
        fill = []
        for h in range(len(WO_E1), len(WO_E1) + len(WO_E2)):
            fill.append(f"s_add_u32 m0, s{sLb}, {WO_SLOTS[h]}")
            fill.append(f"s_add_u32 s{sT0}, s{sT1}, {h*65536}")
            fill.append(f"buffer_load_dwordx4 v{vWo}, {S(rWo,4)}, s{sT0} offen lds")
        for l in interleave(mm, fill, 0, 1, 1):
            emit(l, "wo")
        vA0, vA1, vA2, vSt = 40, 41, 42, 43
        a("v_and_b32 v4, 15, v2\nv_lshrrev_b32 v5, 4, v2")
        a("v_max_u32 v6, 1, v5\nv_sub_u32 v6, 6, v6")
        a(f"v_lshlrev_b32 v{vA0}, v6, v4")
        a(f"v_mov_b32 v{vSt}, 16\nv_lshlrev_b32 v{vSt}, v6, v{vSt}")
        a("v_lshlrev_b32 v6, 4, v5")
        a("v_lshlrev_b32 v44, 9, v5")
        a("v_cmp_gt_u32 vcc, 2, v5")
        a("v_cndmask_b32 v6, v44, v6, vcc")
        a(f"v_add3_u32 v{vA0}, v{vA0}, v6, s{sScr}")
        a("v_mov_b32 v6, 8\nv_mov_b32 v44, 256")
        a("v_cmp_eq_u32 vcc, 3, v5")
        a("v_cndmask_b32 v6, v6, v44, vcc")
        a(f"v_add_u32 v{vA1}, v{vA0}, v6")
        a("v_lshlrev_b32 v6, 9, v5\nv_lshl_add_u32 v6, v4, 2, v6")
        a(f"v_add_u32 v{vA2}, s{sScr}, v6")
        a(f"v_lshlrev_b32 v{PR+7}, 16, v{PR+7}\nv_mov_b32 v6, 0")
        a("v_cmp_eq_u32 vcc, 0, v2")
        a(f"v_cndmask_b32 v6, v6, v{PR+7}, vcc")
        a(f"v_add_f32 v{KD(0,0)}, v{KD(0,0)}, v6")
        TB = 16
        a(f"ds_write_b64 v{vA0}, {V(KD(0,0),2)} offset:{TB}")
        a(f"ds_write_b64 v{vA1}, {V(KD(0,0)+2,2)} offset:{TB}")
        a(f"v_add_u32 v{vA0}, v{vA0}, v{vSt}\nv_add_u32 v{vA1}, v{vA1}, v{vSt}")
        a(f"ds_write_b64 v{vA0}, {V(KD(0,1),2)} offset:{TB}")
        a(f"ds_write_b64 v{vA1}, {V(KD(0,1)+2,2)} offset:{TB}")
        for st in range(2):
            for r in range(4):
                a(f"ds_write_b32 v{vA2}, v{KD(1,st)+r} offset:{TB+2048+128*r+64*st}")
        R0, RP0, RP1 = 48, 52, 53
        RR = lambda r: 54 + 4 * (r - 1)
        a(f"v_add_u32 v4, s{sScr}, v{vL16}")
        a(f"ds_read_b128 {V(R0,4)}, v4 offset:{TB}")
        a(f"ds_read_b32 v{RP0}, v4 offset:{TB-4}")
        a(f"ds_read_b32 v{RP1}, v{vTW} offset:{TB+1024-4}")
        for r in (1, 2, 3):
            a(f"ds_read_b64 {V(RR(r),2)}, v{vTW} offset:{TB+512+512*r}")
            a(f"ds_read_b32 v{RR(r)+2}, v{vTW} offset:{TB+512+512*r+8}")
        a(f"s_add_u32 s{sT0}, s{sScr}, 2048")
        a(f"v_lshlrev_b32 v4, 3, v2\nv_sub_u32 v4, s{sT0}, v4")
        a(f"v_sub_u32 v5, s{sT0}, v{vL16}")
        a(f"v_lshlrev_b32 v6, 5, v2\nv_sub_u32 v6, s{sT0}, v6\nv_subrev_u32 v6, 32, v6")
        a(f"v_and_b32 v44, 15, v2\nv_lshl_add_u32 v44, v44, 2, s{sScr}\nv_mov_b32 v45, 0")
        a(f"v_cndmask_b32 v{RP0}, v{RP0}, v45, vcc")
        a(f"v_cndmask_b32 v{RP1}, v{RR(1)}, v{RP1}, vcc")
        E = [68]

        def blk(vals, vaddr, off):
            rv = vals[::-1]
            n = len(rv) // 2
            d = E[0]
            E[0] += max(n, 4)
            if E[0] > 96:
                d = 24
                E[0] = 24 + max(n, 4)
            for i in range(n):
                a(f"v_cvt_pk_bf16_f32 v{d+i}, v{rv[2*i]}, v{rv[2*i+1]}")
            if n == 2:
                a(f"ds_write_b64 v{vaddr}, {V(d,2)} offset:{off}")
            else:
                for i in range(0, n, 4):
                    a(f"ds_write_b128 v{vaddr}, {V(d+i,4)} offset:{off+4*i}")
        a("s_waitcnt lgkmcnt(0)")
        for g in (1, 0):
            o = g * RCS
            k = [R0, R0 + 1, R0 + 2, R0 + 3]
            blk(k if g else [RP0] + k[:3], 4, o + 2040)
            x, y, z = RR(1), RR(1) + 1, RR(1) + 2
            blk([x, x, y, z] if g else [RP1, x, x, y], 4, o + 1528)
            x, y, z = RR(2), RR(2) + 1, RR(2) + 2
            blk([x] * (4 - g) + [y] * 3 + [z] * (1 + g), 5, o + 1008)
            x, y, z = RR(3), RR(3) + 1, RR(3) + 2
            blk([x] * (6 - g) + [y] * 7 + [z] * (3 + g), 6, o)
            a(f"ds_write_b32 v44, v45 offset:{o+4096}")
        vKA, vUA = 12, 13
        CA = 96
        AS = [128, 192]
        BS = [160, 224]
        a("v_and_b32 v4, 1, v2\nv_and_b32 v5, 48, v2\nv_and_b32 v6, 14, v2")
        a(f"v_mul_u32_u24 v14, {RCS}, v4\nv_add3_u32 v14, v14, v5, s{sScr}")
        a(f"v_lshlrev_b32 v15, 2, v6\nv_sub_u32 v14, v14, v15\nv_add_u32 v{vKA}, 504, v14")
        a(f"v_mul_u32_u24 v14, {UCS}, v4\nv_add3_u32 v14, v14, v5, s{sUc}")
        a(f"v_lshl_add_u32 v14, v6, 5, v14\nv_add_u32 v{vUA}, 448, v14")
        for i in range(32):
            a(f"v_mov_b32 v{CA+i}, 0")

        def creads(s):
            r = []
            for i in range(8):
                ra = [f"ds_read_b64 {V(AS[s]+4*i+2*t,2)}, v{vKA} offset:{(7-i)*512+8*t}" for t in range(2)]
                rb = [f"ds_read_b128 {V(BS[s]+4*i,4)}, v{vUA} offset:{512*i}"]
                r += (ra + rb) if i == 0 else (rb + ra)
            r += [f"v_subrev_u32 v{vKA}, 64, v{vKA}", f"v_subrev_u32 v{vUA}, 64, v{vUA}"]
            return r

        def cmf(s):
            m = []
            for n in range(8):
                for p1 in range(n + 1):
                    m.append(MF(CA + 4 * n, AS[s] + 4 * p1, BS[s] + 4 * (n - p1)))
            return m
        self.stamp(3)
        for l in creads(0):
            a(l)
        a(f"s_mov_b32 s{sT2}, 0")
        a(".p2align 3")
        a.label("L_conv")
        for s in range(2):
            extra = [f"s_add_u32 s{sT2}, s{sT2}, 1", f"s_cmp_lt_u32 s{sT2}, 4"] if s == 1 else []
            for l in interleave(cmf(s), creads(1 - s) + extra, 0, 1, 1):
                a(l)
        a("s_cbranch_scc1 L_conv")
        a("s_waitcnt vmcnt(0) lgkmcnt(0)")
        a(f"v_mov_b32 v14, {L_MISC}\nv_mov_b32 v15, 1")
        a("s_mov_b64 exec, 1")
        a(f"ds_add_u32 v14, v15 offset:{LF_WA-L_MISC}")
        a("s_mov_b64 exec, -1")
        self.stamp(4)
        NE = len(WO_E1) + len(WO_E2)
        a(f"s_lshl_b32 s{sT1}, s{sW4}, 16\ns_lshl_b32 s{sT2}, s{sCT}, 7\ns_add_u32 s{sT1}, s{sT1}, s{sT2}")
        for j in range(3):
            for pc in range(4):
                wo_dma(0, sT1, (NE + 4 * j) * 65536 + pc * 16384, sScr if j < 2 else sUc, (4096 if j == 1 else 0) + pc * 1024)
        YS = 16
        a(f"s_lshl_b32 s{sT1}, s{sD}, 12\ns_add_u32 s{sT1}, s{sT1}, {WS_YT}")
        for k in range(4):
            for i in range(4):
                a(f"v_cvt_pk_bf16_f32 v{YS+4*k+i}, v{CA+8*k+2*i}, v{CA+8*k+2*i+1}")
            a(f"buffer_store_dwordx4 {V(YS+4*k,4)}, v{vL16}, {S(rWS,4)}, s{sT1} offen offset:{1024*k} sc1")
        vYi, vYw, vYr, vYo, vPo = 32, 33, 34, 35, 36
        a("v_lshrrev_b32 v4, 2, v2\nv_and_b32 v5, 3, v2\nv_lshlrev_b32 v6, 4, v5")
        a(f"v_lshl_add_u32 v{vYi}, v4, 12, v6")
        a(f"s_add_u32 s{sT0}, s{sUc}, 4096")
        a(f"v_lshrrev_b32 v6, 5, v2\nv_lshlrev_b32 v6, 4, v6\nv_add3_u32 v{vYw}, v{vL16}, v6, s{sT0}")
        a("v_lshrrev_b32 v6, 4, v2\nv_lshrrev_b32 v37, 1, v5\nv_lshl_add_u32 v6, v6, 1, v37")
        a("v_mul_u32_u24 v6, 528, v6\nv_and_b32 v37, 3, v4\nv_lshl_add_u32 v6, v37, 6, v6")
        a(f"v_and_b32 v37, 1, v2\nv_lshl_add_u32 v6, v37, 3, v6\nv_add_u32 v{vYr}, s{sT0}, v6")
        a("v_and_b32 v6, 4, v2\nv_lshlrev_b32 v6, 6, v6\nv_and_b32 v38, 2, v2\nv_lshl_add_u32 v6, v38, 1, v6")
        a(f"v_add_u32 v6, v6, v37\nv_lshlrev_b32 v38, 4, v3\nv_lshl_add_u32 v{vYo}, v6, 12, v38")
        a(f"v_lshlrev_b32 v{vPo}, 2, v2")
        a(f"s_lshl_b32 s{sT0}, s{sD}, 2\ns_add_u32 s{sT0}, s{sT0}, {WS_FY}")
        a(f"s_lshl_b32 s{sT1}, s{sDG}, 8\ns_add_u32 s{sT1}, s{sT1}, {WS_FY}")
        a("s_waitcnt vmcnt(0)")
        a(f"buffer_store_dword v15, v{vFo}, {S(rWS,4)}, s{sT0} offen sc1")
        a("s_mov_b64 exec, 1")
        a(f"ds_add_u32 v14, v15 offset:{LF_WB-L_MISC}")
        a("s_mov_b64 exec, -1")
        self.stamp(5)
        self.poll_global(vPo, sT1, 4, 96)
        self.stamp(6)
        a(f"s_lshl_b32 s{sT0}, s{sST}, 2\ns_add_u32 s{sT0}, s{sT0}, s{sW4}\ns_lshl_b32 s{sT0}, s{sT0}, 6")
        a(f"s_lshl_b32 s{sT1}, s{sDG}, 18\ns_add_u32 s{sT0}, s{sT0}, s{sT1}")
        YL = 40
        for k in range(4):
            a(f"s_add_u32 s{sT1}, s{sT0}, {WS_YT+k*65536}")
            a(f"buffer_load_dwordx4 {V(YL+4*k,4)}, v{vYi}, {S(rWS,4)}, s{sT1} offen sc1")
        a(f"s_lshr_b32 s{sT0}, s{sST}, 2\ns_lshl_b32 s{sT0}, s{sT0}, 6\ns_and_b32 s{sT1}, s{sST}, 3\ns_add_u32 s{sT0}, s{sT0}, s{sT1}")
        a(f"s_lshl_b32 s{sT1}, s{sW4}, 3\ns_add_u32 s{sT0}, s{sT0}, s{sT1}\ns_lshl_b32 s{sT0}, s{sT0}, 15")
        a(f"s_lshl_b32 s{sT1}, s{sDG}, 7\ns_add_u32 s{sT0}, s{sT0}, s{sT1}")
        for k in range(4):
            a(f"ds_write_b128 v{vYw}, {V(YL+4*k,4)} offset:{k*1056}")
        YT_ = 56
        for k in range(4):
            for t in range(2):
                a(f"ds_read_b64_tr_b16 {V(YT_+4*k+2*t,2)}, v{vYr} offset:{16*k+256*t}")
        for k in range(4):
            a(f"s_add_u32 s{sT1}, s{sT0}, {(2*(k&1)+32*(k>>1))*4096}")
            a(f"buffer_store_dwordx4 {V(YT_+4*k,4)}, v{vYo}, {S(rO,4)}, s{sT1} offen offset:2048")
        self.dump_stamps()
        a.label("L_end")
        a("s_endpgm")

    def build(self):
        self.prologue()
        self.compute()
        self.helper()
        self.a.finish()
        body = self.a.text()
        head = open("concat_heads__linear_attn_block__ssm_conv_s4__prompt.s.ref").read()
        lines = head.split("\n")
        cm = []
        for l in lines:
            if l.startswith("; @launch"):
                cm.append(f"; @launch grid=(256,1,1) block=(512,1,1) lds={LDS_BYTES}")
                break
            cm.append(l)
        txt = "\n".join(cm) + "\n"
        txt += f""".amdgcn_target "amdgcn-amd-amdhsa--gfx950"
.text
.globl {NAME}
.p2align 8
.type {NAME},@function
{NAME}:
"""
        txt += body.replace("CODE_LEFT", str(self.opt.get("code_left", 0)))
        txt += f""".section .rodata,"a"
.p2align 6
.amdhsa_kernel {NAME}
  .amdhsa_next_free_vgpr 256
  .amdhsa_next_free_sgpr 102
  .amdhsa_accum_offset 256
  .amdhsa_group_segment_fixed_size 0
  .amdhsa_kernarg_size 120
  .amdhsa_user_sgpr_count 2
  .amdhsa_user_sgpr_kernarg_segment_ptr 1
  .amdhsa_system_sgpr_workgroup_id_x 1
.end_amdhsa_kernel
"""
        return txt


def code_size(txt):
    import subprocess, tempfile, os
    d = tempfile.mkdtemp()
    open(d + "/k.s", "w").write(txt)
    r = subprocess.run(["clang", "-x", "assembler", "-target", "amdgcn-amd-amdhsa", "-mcpu=gfx950",
                        "-c", d + "/k.s", "-o", d + "/k.o"], capture_output=True, text=True)
    if r.returncode:
        print(r.stderr[:3000])
        raise SystemExit("assemble failed")
    o = subprocess.run(["llvm-objdump", "-h", d + "/k.o"], capture_output=True, text=True).stdout
    for l in o.split("\n"):
        p = l.split()
        if len(p) > 2 and p[1] == ".text":
            return int(p[2], 16)


def make(prof=False, **opt):
    t = Gen(prof, code_left=1024, **opt).build()
    n = code_size(t)
    assert n - 512 < 32768
    return Gen(prof, code_left=n - 512, **opt).build(), n


if __name__ == "__main__":
    t, n = make(False)
    out = sys.argv[1] if len(sys.argv) > 1 else "concat_heads__linear_attn_block__ssm_conv_s4__prompt.s"
    open(out, "w").write(t)
    print("wrote", out, "code bytes", n, "lines", t.count("\n"))
    t, n = make(True)
    open("prof.s", "w").write(t)
```

```python
import sys
from asmgen import *
N="concat_heads__linear_attn_block__ssm_conv_s4__prompt_kernel"
def diag(idx, mode, wave0, mult=10):
    a = Asm()
    a("s_cmp_ge_u32 s2, 1\ns_cbranch_scc1 L_dend")
    a("s_load_dwordx2 s[4:5], s[0:1], 112")
    a("s_waitcnt lgkmcnt(0)")
    a(f"s_mov_b32 s8, s4\ns_mov_b32 s9, s5\ns_mov_b32 s10, {20<<20}\ns_mov_b32 s11, 0x20000")
    a("v_lshlrev_b32 v1, 11, v0")
    a(f"s_mov_b32 s12, {16<<20}")
    for j in range(4):
        for w in range(4):
            a(f"buffer_load_dword v{8+j*4+w}, v1, s[8:11], s12 offen offset:{j*512+(wave0+w)*64}")
            a(f"buffer_load_dword v{24+j*4+w}, v1, s[8:11], s12 offen offset:{j*512+(wave0+w)*64+idx*4}")
    a("v_readfirstlane_b32 s13, v8")
    a("s_sub_u32 s13, s13, 0x1000")
    for i in range(32): a(f"v_subrev_u32 v{8+i}, s13, v{8+i}")
    for i in range(1,16):
        a(f"v_min_u32 v8, v8, v{8+i}")
        a(f"v_{'max_u32' if mode=='max' else 'add_u32'} v24, v24, v{24+i}")
    a("s_mov_b32 s14, -1\ns_mov_b32 s15, 0")
    for l in range(64):
        a(f"v_readlane_b32 s16, v8, {l}\nv_readlane_b32 s17, v24, {l}")
        a("s_min_u32 s14, s14, s16")
        a(f"s_{'max_u32' if mode=='max' else 'add_u32'} s15, s15, s17")
    if mode=='avg':
        a(f"s_lshl_b32 s14, s14, 10\ns_sub_u32 s15, s15, s14\ns_mul_i32 s15, s15, {mult}\ns_lshr_b32 s15, s15, 10")
    else:
        a(f"s_sub_u32 s15, s15, s14\ns_mul_i32 s15, s15, {mult}")
    a("s_min_u32 s15, s15, 100000")
    a("s_memrealtime s[18:19]\ns_waitcnt lgkmcnt(0)")
    a.label("L_spin")
    a("s_memrealtime s[20:21]\ns_waitcnt lgkmcnt(0)")
    a("s_sub_u32 s22, s20, s18\ns_cmp_lt_u32 s22, s15\ns_cbranch_scc1 L_spin")
    a.label("L_dend")
    a("s_endpgm")
    a.finish()
    return a.text()
kd = """.p2align 6
.amdhsa_kernel diag_kernel
  .amdhsa_next_free_vgpr 64
  .amdhsa_next_free_sgpr 32
  .amdhsa_accum_offset 64
  .amdhsa_group_segment_fixed_size 0
  .amdhsa_kernarg_size 120
  .amdhsa_user_sgpr_count 2
  .amdhsa_user_sgpr_kernarg_segment_ptr 1
  .amdhsa_system_sgpr_workgroup_id_x 1
.end_amdhsa_kernel
"""
def mk(src, name, idx, mode, wave0, mult=10):
    s=open(src).read()
    L="; @launch grid=(256,1,1) block=(512,1,1) lds=163840"
    M=f"; @launch kernel={N} grid=(256,1,1) block=(512,1,1) lds=163840"
    E="; @launch kernel=diag_kernel grid=(1,1,1) block=(64,1,1) lds=0"
    t=s.replace(L, M+"\n"+E)
    code=".p2align 8\n.globl diag_kernel\n.type diag_kernel,@function\ndiag_kernel:\n"+diag(idx,mode,wave0,mult)
    t=t.replace('.section .rodata,"a"', code+'.section .rodata,"a"')+kd
    open(name,'w').write(t)
if __name__=="__main__":
    spec = sys.argv[1:]
    for i,sp in enumerate(spec):
        idx,mode,w0,mult = sp.split(",")
        mk("prof.s", f"d{i}.s", int(idx), mode, int(w0), int(mult))
```

```python
import sys, struct, math
from asmgen import *

NAME = "concat_heads__linear_attn_block__ssm_conv_s4__prompt_kernel"


def fbits(x):
    return "0x%08x" % struct.unpack("<I", struct.pack("<f", x))[0]


LOG2E = 1.4426950408889634
EPS = 1e-6

CSTR = 8448
WS_ZP = 65536
WS_CNT = 512 << 10
WS_KVP = 1 << 20
WS_UT = 4 << 20
WS_YT = 8 << 20
WS_OF = 12 << 20
WS_PROF = 16 << 20
WS_SIZE = 20 << 20

SLOT = 40960
SL = lambda s: SLOT * (s + 1)
SCR = 8704
L_MISC = 34816
L_UC = SL(1)
UC = 9152
UCS = 4576
RCS = 4224
L_EX = (SL(1) + 36864, 36864)
L_EZ = L_MISC + 1024
LDS_BYTES = 163840
LF_P1, LF_P2, LF_OD = 0, 16, 32
LF_WA, LF_WB, LF_C1, LF_G1, LF_C2, LF_G2, LF_CY, LF_GY, LF_YG = 48, 52, 56, 60, 64, 68, 72, 76, 80
WO_E1 = [SL(2) + 4096 * i for i in range(10)]
WO_E2 = [SL(0) + 4096 * i for i in range(10)]
WO_LATE = [[SCR * w, SCR * w + 4096, L_UC + UC * w][j] for j in range(3) for w in range(4)]
WO_SLOTS = WO_E1 + WO_E2 + WO_LATE
NE = len(WO_E1) + len(WO_E2)
TB = 16

pX, pW, pWo, pU, pAre, pAim, pBre, pBim, pCre, pCim, pLdt, pDsk, pOut, pDbg, pWs = range(8, 38, 2)
rX, rW, rWS, rO, rWo, rU = 40, 44, 48, 52, 56, 60
sWave, sRT, sHP, sRT2, sCT = 3, 4, 5, 6, 7
SPIN = 20000


def srd(r, p, size):
    return f"s_mov_b32 s{r}, s{p}\ns_mov_b32 s{r+1}, s{p+1}\ns_mov_b32 s{r+2}, {size}\ns_mov_b32 s{r+3}, 0x20000"


def bfe(d, s, off, w):
    return f"s_bfe_u32 s{d}, s{s}, {hex((w << 16) | off)}"


def MF(d, x, y, c=None):
    c = V(d, 4) if c is None else c
    return f"v_mfma_f32_16x16x32_bf16 {V(d,4)}, {V(x,4)}, {V(y,4)}, {c}"


def CVT(d, x, y, neg=False):
    return f"v_cvt_pk_bf16_f32 v{d}, v{x}, {'-' if neg else ''}v{y}"


class Gen:
    def __init__(self, prof=0, **opt):
        self.a = Asm()
        self.prof = prof
        self.opt = opt
        self.nlab = 0
        self.sched = {}
        for part in opt.get("sched", "p=A0,S0,U,A1,T,t0,t1,t2,t3,S1").split("/"):
            k, v = part.split("=")
            self.sched[k if k == "p" else int(k)] = v.split(",")

    def o(self, k, d):
        return self.opt.get(k, d)

    def lab(self, base):
        self.nlab += 1
        return f"L_{base}_{self.nlab}"

    def out(self, lst):
        for l in lst:
            if isinstance(l, list):
                self.out(l)
            else:
                self.a(l)

    def stamp(self, idx, mode=1):
        if not self.prof or (self.prof != mode and idx != 15):
            return
        self.a(f"s_memrealtime s[68:69]\ns_waitcnt lgkmcnt(0)\ns_mov_b32 s{72+idx}, s68")

    def dump_stamps(self):
        if not self.prof:
            return
        a = self.a
        a("s_waitcnt vmcnt(0)")
        self.stamp(15)
        for i in range(16):
            a(f"v_mov_b32 v{16+i}, s{72+i}")
        a(f"s_lshl_b32 s68, s2, 3\ns_add_u32 s68, s68, s{sWave}\ns_lshl_b32 s68, s68, 6\ns_add_u32 s68, s68, {WS_PROF}")
        a("v_mov_b32 v3, 0")
        for i in range(4):
            a(f"buffer_store_dwordx4 {V(16+4*i,4)}, v3, {S(rWS,4)}, s68 offen offset:{16*i}")

    def arrive(self, vM, vOne, vFo, lf_cnt, soff, vtmp, slast):
        a = self.a
        l = self.lab("arr")
        a("s_waitcnt vmcnt(0)")
        a("s_mov_b64 exec, 1")
        a(f"ds_add_rtn_u32 v{vtmp}, v{vM}, v{vOne} offset:{lf_cnt}")
        a("s_mov_b64 exec, -1")
        a(f"v_readfirstlane_b32 s{slast}, v{vtmp}")
        a(f"s_cmp_lg_u32 s{slast}, 3")
        a(f"s_cbranch_scc1 {l}")
        a(f"buffer_atomic_add v{vOne}, v{vFo}, {S(rWS,4)}, s{soff} offen sc1")
        a.label(l)

    def await_(self, vM, vOne, vFo, lf_go, soff, vtmp, slast, scnt, stmp):
        a = self.a
        l, d, o, e = self.lab("poll"), self.lab("polld"), self.lab("pollo"), self.lab("polle")
        a(f"s_cmp_lg_u32 s{slast}, 3")
        a(f"s_cbranch_scc1 {o}")
        a(f"s_mov_b32 s{scnt}, {SPIN}")
        a.label(l)
        a(f"v_mov_b32 v{vtmp}, 0")
        a(f"buffer_atomic_add v{vtmp}, v{vFo}, {S(rWS,4)}, s{soff} offen sc0 sc1")
        a(f"s_sub_u32 s{scnt}, s{scnt}, 1")
        a(f"s_cbranch_scc1 {d}")
        a(f"v_readfirstlane_b32 s{stmp}, v{vtmp}")
        a(f"s_cmp_lt_u32 s{stmp}, 16")
        a(f"s_cbranch_scc1 {l}")
        a.label(d)
        a(f"ds_write_b32 v{vM}, v{vOne} offset:{lf_go}")
        a(f"s_branch {e}")
        a.label(o)
        self.poll_lds(vM, lf_go, 1, vtmp)
        a.label(e)

    def poll_lds(self, vaddr, off, val, vtmp):
        a = self.a
        l = self.lab("lpoll")
        a.label(l)
        a(f"ds_read_b32 v{vtmp}, v{vaddr} offset:{off}")
        a(f"v_cmp_ne_u32 vcc, {val}, v{vtmp}")
        a(f"s_cbranch_vccnz {l}")

    def lds_inc(self, vM, vOne, off):
        self.a(f"s_mov_b64 exec, 1\nds_add_u32 v{vM}, v{vOne} offset:{off}\ns_mov_b64 exec, -1")

    def ids2(self, t):
        if self.o("omap", 1) == 0:
            return [f"s_and_b32 s{sRT2}, s2, 7", bfe(t, 2, 3, 1), f"s_lshl1_add_u32 s{sRT2}, s{sRT2}, s{t}",
                    f"s_lshr_b32 s{sCT}, s2, 4"]
        return [bfe(sRT2, 2, 1, 2), bfe(t, 2, 3, 2), f"s_lshl2_add_u32 s{sRT2}, s{sRT2}, s{t}",
                f"s_and_b32 s{sCT}, s2, 1", f"s_lshr_b32 s{t}, s2, 5", f"s_lshl3_add_u32 s{sCT}, s{sCT}, s{t}"]

    def ids1(self, t):
        return [f"s_and_b32 s{sRT}, s2, 1", bfe(t, 2, 3, 3), f"s_lshl3_add_u32 s{sRT}, s{sRT}, s{t}",
                bfe(sHP, 2, 1, 2), f"s_lshr_b32 s{t}, s2, 6", f"s_lshl2_add_u32 s{sHP}, s{sHP}, s{t}"]

    PR, vDs = 80, 87

    def entry(self):
        a = self.a
        a("s_cmp_ge_u32 s2, 256")
        a("s_cbranch_scc1 L_end")
        a("s_load_dwordx16 s[8:23], s[0:1], 0")
        a("s_load_dwordx8 s[24:31], s[0:1], 64")
        a("s_load_dwordx4 s[32:35], s[0:1], 96")
        a("s_load_dwordx2 s[36:37], s[0:1], 112")
        if self.prof:
            a("s_memrealtime s[68:69]")
        a("s_getpc_b64 s[88:89]")
        a("s_and_b32 s90, s2, 56\ns_lshl_b32 s90, s90, 4")
        a("v_lshrrev_b32 v6, 4, v0\nv_lshl_add_u32 v6, v6, 10, s90")
        a("v_min_u32 v6, CODE_LEFT, v6")
        a("v_lshrrev_b32 v1, 6, v0")
        a("global_load_dword v7, v6, s[88:89]")
        a(f"v_readfirstlane_b32 s{sWave}, v1")
        a("v_and_b32 v2, 63, v0")
        a(f"s_cmp_ge_u32 s{sWave}, 4")
        a("s_cbranch_scc1 L_helper")
        a("s_lshl_b32 s91, s2, 10\nv_lshl_add_u32 v3, v0, 2, s91")
        a("s_lshl_b32 s91, s2, 3\nv_lshl_add_u32 v5, v1, 1, s91")
        a("s_waitcnt lgkmcnt(0)")
        a(f"global_load_ushort v{self.PR+6}, v5, {S(pLdt,2)}")
        for i, p in enumerate((pAre, pAim, pBre, pBim, pCre, pCim)):
            a(f"global_load_dword v{self.PR+i}, v3, {S(p,2)}")
        a(f"global_load_ushort v{self.vDs}, v5, {S(pDsk,2)}")
        a("s_branch L_compute")

    def prof_init(self):
        if self.prof:
            self.a("s_mov_b32 s72, s68")
            for i in range(1, 16):
                self.a(f"s_mov_b32 s{72+i}, 0")

    def kgen(self, sScr):
        a = self.a
        PR, vDs = self.PR, self.vDs
        vDt, vTR, vA0, vA1, vA2, vSt, vB0, vB1 = 68, 70, 71, 72, 73, 74, 75, 76
        ST = lambda n, i: 8 + n * 30 + 2 * i
        RT0, RS0, RS1, RT1 = 100, 132, 164, 196
        FT, FS = (RT0, 224), (RS0, RS1)
        KD = lambda tt, st: 208 + (tt * 2 + st) * 4
        a("v_and_b32 v3, 15, v2\nv_mul_u32_u24 v5, 544, v3\nv_and_b32 v6, 48, v2")
        a(f"v_add3_u32 v{vTR}, v5, v6, s{sScr}")
        a("v_max_u32 v6, 1, v4\nv_sub_u32 v6, 6, v6")
        a(f"v_lshlrev_b32 v{vA0}, v6, v3")
        a(f"v_mov_b32 v{vSt}, 16\nv_lshlrev_b32 v{vSt}, v6, v{vSt}")
        a("v_lshlrev_b32 v6, 4, v4\nv_lshlrev_b32 v5, 9, v4")
        a("v_cmp_gt_u32 vcc, 2, v4")
        a(f"v_lshl_add_u32 v{vA2}, v3, 2, v5\nv_add_u32 v{vA2}, s{sScr}, v{vA2}")
        a("v_cndmask_b32 v6, v5, v6, vcc")
        a(f"v_add3_u32 v{vA0}, v{vA0}, v6, s{sScr}")
        a("v_cmp_eq_u32 vcc, 3, v4")
        a("v_mov_b32 v6, 8\nv_mov_b32 v5, 256")
        a("v_cndmask_b32 v6, v6, v5, vcc")
        a(f"v_add_u32 v{vA1}, v{vA0}, v6")
        a(f"v_add_u32 v{vB0}, v{vA0}, v{vSt}\nv_add_u32 v{vB1}, v{vA1}, v{vSt}")
        a(f"s_mov_b32 m0, s{sScr}")
        a(f"v_mov_b32 v{RS0}, 0x3f80\nv_mov_b32 v{RS0+1}, 0x3f80")
        a("v_cmp_eq_u32 vcc, 0, v2")
        a(f"v_lshlrev_b32 v{vDt}, 16, v{PR+6}\nv_mul_f32 v{vDt}, {fbits(LOG2E)}, v{vDt}\nv_exp_f32 v{vDt}, v{vDt}")
        for i in range(3):
            for c in range(2):
                a(f"v_lshlrev_b32 v{ST(0,i)+c}, 16, v{PR+2*i+c}")
                a(f"v_and_b32 v{ST(1,i)+c}, 0xffff0000, v{PR+2*i+c}")
            if i == 0:
                a(f"v_cvt_pk_bf16_f32 v{vDt}, v{vDt}, v{vDt}\nv_lshlrev_b32 v{vDt}, 16, v{vDt}")
        self.stamp(11)
        for i in range(2):
            for n in range(2):
                a(f"v_pk_mul_f32 {V(ST(n,i),2)}, {V(ST(n,i),2)}, {V(vDt,2)} op_sel_hi:[1,0]")
        for n in range(2):
            a(f"v_mul_f32 v{ST(n,0)}, {fbits(LOG2E)}, v{ST(n,0)}")
            a(f"v_mul_f32 v{ST(n,0)+1}, {fbits(1/(2*math.pi))}, v{ST(n,0)+1}")
        pend = []
        lq = []
        soon = []
        nrow = [0]
        g0, rate = self.o("kg0", 99), self.o("kgr", 4)

        def CM(dst, x, y):
            lq.extend(soon)
            soon.clear()
            take = [lq.pop(0) for _ in range(min(rate, len(lq)))] if nrow[0] >= g0 else []
            seq = [f"v_pk_mul_f32 {V(ST(n,dst),2)}, {V(ST(n,x),2)}, {V(ST(n,y),2)} op_sel_hi:[1,0]" for n in range(2)]
            for c, w in pend:
                seq.append(c)
                soon.extend(w)
            pend.clear()
            seq += [f"v_pk_fma_f32 {V(ST(n,dst),2)}, {V(ST(n,x),2)}, {V(ST(n,y),2)}, {V(ST(n,dst),2)} "
                    f"op_sel:[1,1,0] op_sel_hi:[0,1,1] neg_lo:[1,0,0]" for n in range(2)]
            self.out(interleave(seq, take, 0, 1, 1))

        def wr(base, r, n):
            return f"ds_write_addtid_b32 v{base+2*r+n} offset:{r*544+n*256}"

        def rd(dst):
            return [f"ds_read_b128 {V(dst+4*f,4)}, v{vTR} offset:{64*f}" for f in range(8)]

        def row(base, r, pair, neg, pre=(), post=()):
            nrow[0] += 1
            for n in range(2):
                pend.append((CVT(base + 2 * r + n, ST(n, pair), ST(n, pair) + 1, neg),
                             (list(pre) if n == 0 else []) + [wr(base, r, n)] + (list(post) if n == 1 else [])))

        for zi, L, t in ((3, 1.0, 12), (4, 8.0, 13), (5, 256.0, 14)):
            for n in range(2):
                if L != 1.0:
                    a(f"v_mul_f32 v{ST(n,t)}, {fbits(L)}, v{ST(n,0)}")
                    a(f"v_mul_f32 v{ST(n,t)+1}, {fbits(L)}, v{ST(n,0)+1}")
            for n in range(2):
                src = t if L != 1.0 else 0
                a(f"v_fract_f32 v{ST(n,t)+1}, v{ST(n,src)+1}")
                a(f"v_exp_f32 v{ST(n,t)}, v{ST(n,src)}")
            for n in range(2):
                a(f"v_cos_f32 v{ST(n,zi)}, v{ST(n,t)+1}")
                a(f"v_sin_f32 v{ST(n,zi)+1}, v{ST(n,t)+1}")
        CM(6, 2, 1)
        for zi, t in ((3, 12), (4, 13), (5, 14)):
            for n in range(2):
                a(f"v_pk_mul_f32 {V(ST(n,zi),2)}, {V(ST(n,zi),2)}, {V(ST(n,t),2)} op_sel_hi:[1,0]")
        row(RT0, 0, 6, True)
        for j in range(4):
            CM(10, 6 + j, 3); row(RT0, 2 * j + 1, 10, True)
            if j < 3:
                CM(7 + j, 10, 3); row(RT0, 2 * j + 2, 7 + j, True)
        for dst, x, r in ((12, 7, 9), (10, 6, 8), (12, 9, 11), (11, 8, 10), (6, 10, 12), (8, 11, 13), (10, 6, 14), (11, 8, 15)):
            CM(dst, x, 5); row(RT0, r, dst, True, post=rd(FT[0]) if r == 15 else ())
        cur = 10
        for r in range(5):
            nxt = 6 if cur == 10 else 10
            CM(nxt, cur, 5); row(RT1, r, nxt, True, post=rd(FT[1]) if r == 4 else ())
            cur = nxt
        row(RS0, 1, 4, False, pre=[wr(RS0, 0, 0), wr(RS0, 0, 1)])
        cur = 4
        for j in range(2, 32):
            nxt = 10 if cur != 10 else 11
            CM(nxt, cur, 4)
            row(RS0 if j < 16 else RS1, j % 16, nxt, False, post=rd(FS[j >> 4]) if j % 16 == 15 else ())
            cur = nxt
        a(f"v_lshlrev_b32 v{vDs}, 16, v{vDs}\nv_mov_b32 v6, 0")
        lq.extend(soon)
        for c, w in pend:
            a(c)
            lq.extend(w)
        a(f"v_cndmask_b32 v{vDs}, v6, v{vDs}, vcc")
        self.stamp(12)
        if self.o("b0", 1) == 0:
            a("s_barrier")
            self.stamp(1)

        def mm(st):
            return [MF(KD(tt, st), FT[tt] + 4 * f, FS[st] + 4 * f, "0" if f == 0 else None) for tt in range(2) for f in range(8)]

        def tw(st):
            return [f"ds_write_b64 v{(vA0,vB0)[st]}, {V(KD(0,st),2)} offset:{TB}",
                    f"ds_write_b64 v{(vA1,vB1)[st]}, {V(KD(0,st)+2,2)} offset:{TB}"] + \
                   [f"ds_write_b32 v{vA2}, v{KD(1,st)+r} offset:{TB+2048+128*r+64*st}" for r in range(4)]
        nt = min(len(lq), 34)
        self.out(lq[:len(lq) - nt])
        self.out(interleave(mm(0), lq[len(lq) - nt:], 0, 1, -(-nt // 16)))
        a(f"v_add_f32 v{KD(0,0)}, v{KD(0,0)}, v{vDs}")
        self.out(interleave(mm(1), tw(0), 0, 2, 1))
        return tw(1)

    def phi(self, s, tmp, sL, vC, sE):
        out = [f"v_fma_f32 v{tmp+i}, v{s+i}, s{sL}, v{vC}" for i in range(4)]
        for i in range(4):
            out.append(f"v_exp_f32_e64 v{tmp+i}, v{tmp+i} clamp")
            out.append(f"v_max_f32 v{s+i}, s{sE}, v{s+i}")
        out += [f"v_add_f32 v{s+i}, v{s+i}, v{tmp+i}" for i in range(4)]
        return out

    def events(self):
        kT = [k for k, v in self.sched.items() if "t3" in v][0]
        kT = -1 if kT == "p" else kT
        e0 = kT + 3
        assert e0 < 12
        return (e0, 12, 13)

    def compute(self):
        a = self.a
        acc = 100
        FA = [8, 48]
        vXA, vXB, vWA, vWB = 88, 90, 92, 94
        sHI, sMI, sSl, sIt, sE, sL, sScr, sEvt = 64, 65, 66, 67, 90, 91, 92, 96
        AQ = lambda mt, nt: acc + (mt * 2 + nt) * 4
        AK = lambda mt, nt: acc + 32 + (mt * 2 + nt) * 4
        AV = lambda mt, nt: acc + 64 + (mt * 2 + nt) * 4
        a.label("L_compute")
        self.prof_init()
        a(f"v_lshlrev_b32 v3, 2, v2\nv_mov_b32 v5, 0\nds_write_b32 v3, v5 offset:{L_MISC}")
        self.out(self.ids1(88) + self.ids2(88))
        a(f"s_mul_i32 s{sScr}, s{sWave}, {SCR}")
        a(f"s_and_b32 s{sHI}, s{sWave}, 1\ns_lshr_b32 s{sMI}, s{sWave}, 1")
        a("v_and_b32 v3, 15, v2\nv_lshrrev_b32 v4, 4, v2\nv_lshrrev_b32 v5, 1, v3\nv_xor_b32 v5, v5, v4")
        a("v_lshlrev_b32 v5, 4, v5\nv_lshl_add_u32 v5, v3, 7, v5")
        a(f"s_lshl_b32 s88, s{sMI}, 13\nv_add_u32 v{vXB}, s88, v5\nv_xor_b32 v{vXB+1}, 64, v{vXB}")
        a("v_bfe_u32 v3, v2, 2, 2\nv_lshl_add_u32 v5, v4, 3, v3\nv_lshlrev_b32 v5, 7, v5\nv_lshrrev_b32 v3, 1, v3")
        a(f"v_xor_b32 v6, s{sHI}, v4\nv_and_b32 v6, 1, v6\nv_lshl_add_u32 v3, v6, 1, v3\nv_lshl_add_u32 v5, v3, 5, v5")
        a("v_and_b32 v3, 3, v2\nv_lshl_add_u32 v5, v3, 3, v5")
        a(f"v_add_u32 v{vWB}, 16384, v5\nv_xor_b32 v{vWB+1}, 32, v{vWB}")
        a(f"s_mov_b32 s{sE}, {fbits(EPS)}\ns_mov_b32 s{sL}, {fbits(LOG2E)}")
        a(srd(rWS, pWs, WS_SIZE))
        a(srd(rO, pOut, 8 << 20))
        vEp = 196

        def reads(fs, ks):
            f = FA[fs]
            r = []
            X = lambda m: r.append(f"ds_read_b128 {V(f+4*m,4)}, v{vXA+ks} offset:{m*2048}")

            def W(sec, nt):
                for t in range(2):
                    r.append(f"ds_read_b64_tr_b16 {V(f+16+sec*8+nt*4+2*t,2)}, v{vWA+nt} offset:{sec*8192+ks*4096+t*512}")
            X(0); W(1, 0); X(1); X(2); X(3); W(1, 1); W(2, 0); W(2, 1); W(0, 0); W(0, 1)
            return r

        def mfmas(fs, first=False):
            f = FA[fs]
            m = []
            i = 0
            for sec in (1, 2, 0):
                for nt in range(2):
                    for mt in (range(4) if i % 2 == 0 else range(3, -1, -1)):
                        c = acc + sec * 32 + (mt * 2 + nt) * 4
                        xa, wa = f + 4 * mt, f + 16 + sec * 8 + nt * 4
                        c0 = None if not first else ("0" if sec == 2 else V(vEp, 4))
                        m.append(MF(c, xa, wa, c0) if sec else MF(c, wa, xa, c0))
                    i += 1
            return m

        sa = [f"v_add_u32 v{vXA+i}, s{sSl}, v{vXB+i}" for i in range(2)] + \
             [f"v_add_u32 v{vWA+i}, s{sSl}, v{vWB+i}" for i in range(2)]
        EV = self.events()
        a(f"s_cmp_eq_u32 s{sWave}, 0\ns_cselect_b32 s{sEvt}, {EV[0]}, 15\ns_mov_b32 s97, {SPIN}")
        a("s_and_b32 s88, s2, 3\ns_lshl_b32 s88, s88, 6")
        a("v_mov_b32 v96, s88\nv_mov_b32 v97, 1\nv_lshlrev_b32 v98, 6, v3\nv_mov_b32 v99, 0")
        a(f"s_mov_b32 s{sSl}, {SL(0)}\ns_mov_b32 s{sIt}, 0")
        self.out(sa)
        tw1 = self.kgen(sScr)
        for i in range(4):
            a(f"v_mov_b32 v{vEp+i}, s{sE}")
        if self.o("b0", 1) == 1:
            a("s_barrier")
            self.stamp(1)
        a(f"s_setprio {self.o('prio', 3)}")
        self.out(reads(0, 0) + tw1)
        self.stamp(10)
        sal = [f"s_add_u32 s{sSl}, s{sSl}, {SLOT}", f"s_cmp_eq_u32 s{sSl}, {SL(3)}",
               f"s_cselect_b32 s{sSl}, {SL(0)}, s{sSl}", f"s_add_u32 s{sIt}, s{sIt}, 1"]
        self.out(interleave(mfmas(0, True), reads(1, 1) + sal, 0, 1, 1))
        a("s_branch L_cmid")
        a(".p2align 3")
        a.label("L_cloop")
        self.out(interleave(mfmas(0), reads(1, 1) + sal, 0, 1, 1))
        a.label("L_cmid")
        a("s_waitcnt lgkmcnt(0)")
        m0, m1 = mfmas(0), mfmas(1)
        self.out([m1[0], sa[0], m1[1], sa[2], m1[2]])
        a("s_barrier")
        rr = reads(0, 0)
        self.out(interleave(m1[3:], rr[:3] + [sa[3]] + rr[3:] + [sa[1], f"s_cmp_lt_u32 s{sIt}, s{sEvt}"], 0, 1, 1))
        a("s_cbranch_scc1 L_cloop")
        a(f"s_cmp_eq_u32 s{sIt}, 15")
        a("s_cbranch_scc1 L_cexit")
        a(f"s_cmp_eq_u32 s{sIt}, {EV[1]}")
        a("s_cbranch_scc1 L_ev1")
        a(f"s_cmp_eq_u32 s{sIt}, {EV[2]}")
        a("s_cbranch_scc1 L_ev2")
        a("s_mov_b64 exec, 1")
        a(f"global_atomic_add v96, v97, {S(pDbg,2)} sc1")
        a("s_mov_b64 exec, -1")
        a(f"s_mov_b32 s{sEvt}, {EV[1]}")
        a("s_branch L_cloop")
        a.label("L_ev1")
        a(f"global_load_dword v99, v98, {S(pDbg,2)} sc1")
        a(f"s_mov_b32 s{sEvt}, {EV[2]}")
        a("s_branch L_cloop")
        a.label("L_ev2")
        a(f"s_mov_b32 s{sEvt}, 15")
        a("v_cmp_gt_u32 vcc, 64, v99")
        a("s_cbranch_vccz L_cloop")
        a("s_sub_u32 s97, s97, 1")
        a("s_cbranch_scc1 L_cloop")
        a(f"global_load_dword v99, v98, {S(pDbg,2)} sc1")
        a("s_branch L_ev2")
        a.label("L_cexit")
        vC, vL16, vEx, vLF, vOne, vZo, vFo, vM, vPE, vPF, v1, vEz, vPz = 196, 197, 198, 199, 200, 204, 205, 206, 207, 96, 97, 98, 99
        sLast, sHead, sT0, sT1 = 70, 92, 93, 94
        self.out(interleave(m0[:16], reads(1, 1), 0, 1, 1))
        pre = [f"v_mov_b32 v{vM}, {L_MISC}", f"v_mov_b32 v{vC}, {fbits(-EPS*LOG2E)}",
               f"v_lshlrev_b32 v{vL16}, 4, v2", f"s_mov_b32 s{sT1}, {L_EX[1]}",
               f"s_cmp_eq_u32 s{sHI}, 0\ns_cselect_b32 s{sT1}, {L_EX[0]}, s{sT1}",
               f"s_lshl_b32 s{sT0}, s{sMI}, 11\ns_add_u32 s{sT0}, s{sT0}, s{sT1}", f"v_add_u32 v{vEx}, s{sT0}, v{vL16}",
               f"v_lshl_add_u32 v{vLF}, v1, 2, v{vM}", f"v_lshl_add_u32 v{vZo}, v4, 26, v{vL16}",
               f"v_lshlrev_b32 v{vFo}, 26, v2", f"v_lshlrev_b32 v{vEz}, 2, v0", f"v_xor_b32 v{vPz}, 512, v{vEz}"]
        pre += [f"v_mov_b32 v{vOne+i}, 0x3f803f80" for i in range(4)]
        self.out(interleave(m1[:4], pre[:8], 0, 1, 2))
        a("s_waitcnt lgkmcnt(0)")
        a(m1[4])
        a("s_barrier")
        self.out(interleave(m1[5:8], pre[8:], 0, 1, 2))
        self.stamp(2)
        KF = lambda ch, dt: 208 + (ch * 2 + dt) * 4
        VF = lambda ch, et: 224 + (ch * 2 + et) * 4
        D = lambda dt, et: 240 + (et * 2 + dt) * 4
        Z = lambda dt: 32 + dt * 4
        tmp, RX, PK = 40, 72, 44
        e1 = []
        for dt in range(2):
            for ch in range(2):
                for h in range(2):
                    s = AK(2 * ch + h, dt)
                    e1 += self.phi(s, tmp, sL, vC, sE)
                    e1 += [CVT(KF(ch, dt) + 2 * h, s, s + 1), CVT(KF(ch, dt) + 2 * h + 1, s + 2, s + 3)]
                if dt == 0:
                    for et in range(2):
                        for h in range(2):
                            s = AV(2 * ch + h, et)
                            e1 += [CVT(VF(ch, et) + 2 * h, s, s + 1), CVT(VF(ch, et) + 2 * h + 1, s + 2, s + 3)]
                c0 = "0" if ch == 0 else None
                e1.append(("M", [MF(D(dt, 0), KF(ch, dt), VF(ch, 0), c0), MF(D(dt, 1), KF(ch, dt), VF(ch, 1), c0),
                                 MF(Z(dt), vOne, KF(ch, dt), c0)]))
        sc = [f"s_lshl1_add_u32 s{sHead}, s{sHP}, s{sHI}\ns_lshl1_add_u32 s96, s{sHead}, s{sMI}",
              f"s_lshr_b32 s{sT0}, s{sRT}, 2\ns_lshl2_add_u32 s{sT1}, s96, s{sT0}",
              f"s_lshl_b32 s{sT1}, s{sT1}, 8\ns_and_b32 s{sT0}, s{sRT}, 3",
              f"s_lshl2_add_u32 s{sT1}, s{sT0}, s{sT1}\ns_add_u32 s{sT1}, s{sT1}, {WS_ZP}",
              f"s_lshl_b32 s96, s96, 14\ns_add_u32 s96, s96, {WS_KVP}",
              f"s_lshl_b32 s{sT0}, s{sRT}, 10\ns_add_u32 s{sT0}, s{sT0}, s96",
              f"v_xor_b32 v{vPE}, 2048, v{vEx}", f"v_xor_b32 v{vPF}, 8, v{vLF}"]
        pend = list(m1[8:16])
        cnt = 0
        for l in e1:
            if isinstance(l, tuple):
                pend += l[1]
                cnt = 0
                continue
            if pend and cnt >= 2:
                a(pend.pop(0))
                cnt = 0
            a(l)
            cnt += 2 if l.startswith("v_exp") else 1
        a(sc[0])
        self.out(interleave(pend, sc[1:], 0, 1, 1))
        a(f"s_cmp_eq_u32 s{sMI}, 0")
        a("s_cbranch_scc0 L_ex1")
        for mi in range(2):
            if mi == 1:
                a.label("L_ex1")
            a(f"ds_write_b128 v{vEx}, {V(D(0,1-mi),4)} offset:0")
            a(f"ds_write_b128 v{vEx}, {V(D(1,1-mi),4)} offset:1024")
            a(f"ds_write_b32 v{vEz}, v{Z(1-mi)} offset:{L_EZ}")
            a(f"ds_write_b32 v{vLF}, v{v1} offset:{LF_P1}")
            self.poll_lds(vPF, LF_P1, 1, 3)
            a(f"ds_read_b128 {V(RX,4)}, v{vPE} offset:0")
            a(f"ds_read_b128 {V(RX+4,4)}, v{vPE} offset:1024")
            a(f"ds_read_b32 v5, v{vPz} offset:{L_EZ}")
            for i in range(8):
                a(f"v_add_f32 v{RX+i}, v{RX+i}, v{D(0,mi)+i}")
            a(CVT(5, 5, Z(mi)))
            if mi == 0:
                a("s_branch L_ex2")
        a.label("L_ex2")
        for i in range(4):
            a(CVT(PK + i, RX + 2 * i, RX + 2 * i + 1))
        a(f"buffer_store_dword v5, v{vZo}, {S(rWS,4)}, s{sT1} offen sc1")
        a(f"buffer_store_dwordx4 {V(PK,4)}, v{vL16}, {S(rWS,4)}, s{sT0} offen sc1")
        self.stamp(3)
        SEL, vEps = 208, 216
        su = ["v_and_b32 v3, 15, v2", "v_lshlrev_b32 v6, 2, v4", "v_sub_u32 v6, v3, v6",
              "v_mov_b32 v220, 0x3f80", "v_mov_b32 v221, 0x3f800000"]
        su += [f"v_mov_b32 v{SEL+i}, 0" for i in (0, 1, 4, 5)]
        for j in range(2):
            su += [f"v_cmp_eq_u32 vcc, {2*j}, v6", f"v_mov_b32 v{vEps+2*j}, s{sE}",
                   f"v_cndmask_b32 v{SEL+2+j}, v{SEL}, v220, vcc",
                   f"v_cmp_eq_u32 vcc, {2*j+1}, v6", f"v_mov_b32 v{vEps+2*j+1}, s{sE}",
                   f"v_cndmask_b32 v{SEL+2+j}, v{SEL+2+j}, v221, vcc"]
        su += [f"s_mul_i32 s95, s{sHP}, {CSTR}\ns_add_u32 s95, s95, {WS_CNT}",
               f"s_lshl_b32 s{sT1}, s{sHead}, 11\ns_add_u32 s{sT1}, s{sT1}, {WS_ZP}",
               f"v_min_u32 v222, v{vEx}, v{vPE}",
               f"s_lshl1_add_u32 s{sT0}, s{sRT}, s{sMI}\ns_lshl_b32 s{sT0}, s{sT0}, 7",
               f"s_add_u32 s{sT0}, s{sT0}, s{sHead}\ns_lshl_b32 s{sT0}, s{sT0}, 10", f"s_add_u32 s{sT0}, s{sT0}, {WS_OF}"]
        self.out(interleave(m0[16:] + m1[16:], su, 0, 1, 2))
        PQ = lambda mt: 24 + mt * 4
        tmp, PK = 76, 20
        for mt in range(4):
            if mt == self.o("arr1", 1):
                self.arrive(vM, v1, vFo, LF_C1, 95, 3, sLast)
                self.stamp(4)
            for nt in range(2):
                s = AQ(mt, nt)
                self.out(self.phi(s, tmp, sL, vC, sE))
                self.out([CVT(PQ(mt) + 2 * nt, s, s + 1), CVT(PQ(mt) + 2 * nt + 1, s + 2, s + 3)])
        self.await_(vM, v1, vFo, LF_G1, 95, 3, sLast, 97, 71)
        self.stamp(5)
        PF, ZL, ZD, ZF, SD, KV = 132, 40, 48, 8, 56, 64
        DEN = lambda mt: 72 + 4 * mt
        for dt in range(2):
            a(f"buffer_load_dwordx4 {V(ZL+4*dt,4)}, v{vL16}, {S(rWS,4)}, s{sT1} offen offset:{1024*dt} sc1")
        lds_ = []
        for i in range(16):
            l = f"buffer_load_dwordx4 {V(PF+4*i,4)}, v{vL16}, {S(rWS,4)}, s96 offen offset:{(i%4)*1024} sc1"
            lds_.append(("s_add_u32 s96, s96, 4096\n" if i and i % 4 == 0 else "") + l)
        RL = self.o("rlead", 7)
        self.out(lds_[:RL])
        a(f"s_mul_i32 s95, s{sRT}, {CSTR}\ns_add_u32 s95, s95, {WS_CNT+16*CSTR}")
        self.out([MF(ZD, ZL, vOne, "0"), MF(ZD + 4, ZL + 4, vOne, "0")])
        zr = [[] for _ in range(32)]
        zr[3] = [CVT(ZF + i, ZD + 2 * i, ZD + 2 * i + 1) for i in range(4)]
        zr[5] = [MF(DEN(mt), ZF, PQ(mt), V(vEps, 4)) for mt in range(4)]
        zr[8] = [f"v_rcp_f32 v{DEN(mt)}, v{DEN(mt)}" for mt in range(2)]
        zr[9] = [f"v_rcp_f32 v{DEN(mt)}, v{DEN(mt)}" for mt in range(2, 4)]
        sq = []
        for mt in range(4):
            sq += [f"v_mul_f32 v{AQ(mt,0)+i}, v{AQ(mt,0)+i}, v{DEN(mt)}" for i in range(8)]
            sq += [CVT(PQ(mt) + i, AQ(mt, 0) + 2 * i, AQ(mt, 0) + 2 * i + 1) for i in range(4)]
        for g in range(16):
            zr[10 + g] = sq[3 * g:3 * g + 3]
        for i in range(16):
            a(MF(SD, SEL + 2, PF + 4 * i, "0" if i == 0 else None))
            self.out(zr[2 * i])
            a(MF(SD + 4, SEL, PF + 4 * i, "0" if i == 0 else None))
            if i + RL < 16:
                a(lds_[i + RL])
            self.out(zr[2 * i + 1])
        self.stamp(13, 3)
        for i in range(4):
            a(CVT(PK + i, SD + 2 * i, SD + 2 * i + 1))
        a(f"ds_write_b128 v{vEx}, {V(PK,4)} offset:0")
        a(f"ds_write_b32 v{vLF}, v{v1} offset:{LF_P2}")
        self.poll_lds(vPF, LF_P2, 1, 3)
        a(f"ds_read_b128 {V(KV,4)}, v222 offset:0")
        a(f"ds_read_b128 {V(KV+4,4)}, v222 offset:2048")
        NUM = lambda mt, et: 100 + (mt * 2 + et) * 4
        OFR = lambda mt: 132 + 4 * mt
        self.out([MF(NUM(mt, et), KV + 4 * et, PQ(mt), "0") for mt in range(4) for et in range(2)])
        for mt in range(4):
            for i in range(4):
                a(CVT(OFR(mt) + i, NUM(mt, 0) + 2 * i, NUM(mt, 0) + 2 * i + 1))
            a(f"buffer_store_dwordx4 {V(OFR(mt),4)}, v{vL16}, {S(rWS,4)}, s{sT0} offen sc1")
            if mt < 3:
                a(f"s_add_u32 s{sT0}, s{sT0}, 32768")
        a(f"ds_write_b32 v{vLF}, v{v1} offset:{LF_OD}")
        self.stamp(6)
        WB, vSo = 20, 8
        a("v_lshrrev_b32 v3, 2, v2\nv_bfe_u32 v5, v2, 3, 2")
        a("v_lshlrev_b32 v5, 5, v5\nv_lshl_add_u32 v5, v3, 7, v5")
        a(f"v_and_b32 v3, 3, v2\nv_lshl_add_u32 v{WB}, v3, 3, v5")
        for nt in range(4):
            if nt:
                a(f"v_xor_b32 v{WB+nt}, {32*nt}, v{WB}")
            for win in (1, 2):
                a(f"v_add_u32 v{WB+4*win+nt}, {win*61440}, v{WB+nt}")
        sO0, sO1 = 98, 99
        a(f"s_lshl2_add_u32 s88, s{sRT2}, s{sWave}\ns_lshl_b32 s{sO0}, s88, 16\ns_add_u32 s{sO0}, s{sO0}, {WS_OF}")
        a(f"s_add_u32 s{sO1}, s{sO0}, 32768")
        a(f"s_mul_i32 s96, s{sRT2}, {CSTR}\ns_add_u32 s96, s96, {WS_CNT+16*CSTR}")
        a("v_and_b32 v3, 15, v2\nv_and_b32 v5, 1, v4\nv_lshlrev_b32 v5, 5, v5")
        a(f"v_lshrrev_b32 v6, 1, v4\nv_lshl_add_u32 v5, v6, 4, v5\nv_lshl_add_u32 v{vSo}, v3, 12, v5")
        a(f"s_lshl_b32 s{sT0}, s88, 17\ns_lshl_b32 s{sT1}, s{sCT}, 7\ns_add_u32 s{sT0}, s{sT0}, s{sT1}")
        a(f"s_add_u32 s{sT1}, s{sT0}, 65536")
        self.arrive(vM, v1, vFo, LF_C2, 95, 3, sLast)
        self.stamp(7)
        self.await_(vM, v1, vFo, LF_G2, 96, 3, sLast, 97, 71)
        self.stamp(8)
        OR, OA, WF = 128, 32, [64, 80]

        def oload(h):
            r = []
            if h and h % 4 == 0:
                r += [f"s_add_u32 s{sO0}, s{sO0}, 4096", f"s_add_u32 s{sO1}, s{sO1}, 4096"]
            for m_ in range(2):
                r.append(f"buffer_load_dwordx4 {V(OR+(h%8)*8+4*m_,4)}, v{vL16}, {S(rWS,4)}, s{sO0+m_} offen offset:{(h%4)*1024} sc1")
            return r

        def wreads(h):
            base = WO_SLOTS[h]
            win = min(base // 61440, 2)
            off = base - win * 61440
            assert off + 2048 < 65536
            return [f"ds_read_b64_tr_b16 {V(WF[h&1]+4*nt+2*t,2)}, v{WB+4*win+nt} offset:{off+2048*t}"
                    for nt in range(4) for t in range(2)]

        LEAD = self.o("lead", 5)
        assert LEAD <= 7
        for h in range(LEAD):
            self.out(oload(h))
        self.poll_lds(vM, LF_WA, 4, 3)
        self.out(wreads(0))
        for h in range(32):
            if h + 1 == NE:
                self.poll_lds(vM, LF_WB, 4, 3)
            mm = [MF(OA + (m_ * 4 + nt) * 4, WF[h & 1] + 4 * nt, OR + (h % 8) * 8 + 4 * m_, "0" if h == 0 else None)
                  for nt in range(4) for m_ in ((0, 1) if nt % 2 == 0 else (1, 0))]
            rd = wreads(h + 1) if h < 31 else []
            ld = oload(h + LEAD) if h + LEAD < 32 else []
            if h == 1:
                self.stamp(13)
            if h == 16:
                self.stamp(14)
            gaps = [[] for _ in range(8)]
            g0, g1 = divmod(self.o("lg", 37), 10)
            for r_, g_ in zip(rd, range(8)):
                gaps[g_].append(r_)
            if ld:
                gaps[0] += ld[:-2]
                gaps[g0].append(ld[-2])
                gaps[g1].append(ld[-1])
            if h == self.o("yh", -1):
                gaps[0].append(f"ds_write_b32 v{vLF}, v{v1} offset:{LF_YG}")
            for m_, g_ in zip(mm, gaps):
                a(m_)
                self.out(g_)
        self.stamp(9)
        ST = 64
        for m_ in range(2):
            for j in range(2):
                s = OA + (m_ * 4 + 2 * j) * 4
                for i in range(4):
                    a(CVT(ST + (m_ * 2 + j) * 4 + i, s + 2 * i, s + 2 * i + 1))
        for m_ in range(2):
            for j in range(2):
                d = ST + (m_ * 2 + j) * 4
                a(f"v_permlane16_swap_b32 v{d}, v{d+2}")
                a(f"v_permlane16_swap_b32 v{d+1}, v{d+3}")
                a(f"buffer_store_dwordx4 {V(d,4)}, v{vSo}, {S(rO,4)}, s{sT0+m_} offen offset:{64*j}")
        self.dump_stamps()
        a.label("L_end")
        a("s_endpgm")

    def helper(self):
        a = self.a
        sched = self.sched
        sW4, sXo, sWo_, sLb = 64, 65, 66, 67
        sT0, sT1, sD, sScr, sUc, sST, sDG, sT2, sPX, sPW, sWB, sUo = range(88, 100)
        vFo, vX, vW, vWo, vL16, vPX, vPW, vU = 7, 8, 9, 10, 11, 12, 13, 14
        UTR, USG = 204, 4352
        vmq = []

        def emit(l, tag=None):
            n0 = len(a.ins)
            a(l)
            vmq.extend(tag for x in a.ins[n0:] if x.kind == "vmem")

        def wait_tag(tag):
            last = max(i for i, t in enumerate(vmq) if t == tag)
            a(f"s_waitcnt vmcnt({len(vmq)-1-last})")

        def run(lst):
            for l in lst:
                if isinstance(l, list):
                    run(l)
                elif isinstance(l, tuple):
                    if l[0] == "WAIT":
                        wait_tag(l[1])
                    else:
                        emit(l[0], l[1])
                else:
                    emit(l)

        uearly = "U" in sched["p"]
        explicit = {int(o[1:]) for v in sched.values() for o in v if o[0] == "S"}
        done = set()

        def once(key, lst):
            if key in done:
                return []
            done.add(key)
            return lst

        def setup_ring():
            return once("ring", self.ids1(sT0) + [
                "v_bfe_u32 v4, v0, 3, 5", "v_lshrrev_b32 v5, 1, v4", "v_xor_b32 v6, v5, v2", "v_and_b32 v6, 7, v6",
                "v_lshlrev_b32 v6, 4, v6", f"v_lshl_add_u32 v{vX}, v4, 11, v6",
                "v_and_b32 v5, 4, v5", "v_and_or_b32 v5, v4, 2, v5", "v_xor_b32 v5, v5, v2", "v_and_b32 v5, 7, v5",
                "v_mul_u32_u24 v6, 6144, v4", f"v_lshl_add_u32 v{vW}, v5, 4, v6",
                f"s_lshl_b32 s{sXo}, s{sRT}, 18", f"s_lshl_b32 s{sWo_}, s{sHP}, 7"])

        def setup_touch():
            return once("touch", [
                "v_and_b32 v5, 3, v2", "v_lshlrev_b32 v5, 7, v5", "v_lshrrev_b32 v6, 2, v2",
                f"v_lshl_add_u32 v{vPW}, v6, 11, v5", f"v_lshl_add_u32 v{vPX}, v3, 26, v{vPW}",
                "v_cmp_le_u32 vcc, 3, v6", "v_mov_b32 v5, 0x4000000",
                f"s_lshr_b32 s{sT0}, s2, 3", f"s_lshl2_add_u32 s{sT0}, s{sT0}, s{sW4}",
                f"s_and_b32 s{sT1}, s2, 1", bfe(sT2, 2, 1, 2),
                f"s_lshl1_add_u32 s{sPW}, s{sT0}, s{sT1}", f"s_mul_i32 s{sPW}, s{sPW}, 12", f"s_add_u32 s{sPW}, s{sPW}, s{sT2}",
                f"s_lshl_b32 s{sPW}, s{sPW}, 9",
                f"s_lshl2_add_u32 s{sPX}, s{sT1}, s{sT2}", f"s_lshl_b32 s{sPX}, s{sPX}, 7", f"s_add_u32 s{sPX}, s{sPX}, s{sT0}",
                f"s_lshl_b32 s{sPX}, s{sPX}, 12", f"v_cndmask_b32 v{vPW}, v{vPW}, v5, vcc"])

        def setup_u():
            return once("u", [
                f"s_lshr_b32 s{sST}, s2, 4", f"s_and_b32 s{sDG}, s2, 15",
                "v_and_b32 v5, 7, v2", "v_lshlrev_b32 v5, 4, v5", f"v_lshl_add_u32 v{vU}, v3, 11, v5",
                f"s_lshl2_add_u32 s{sUo}, s{sST}, s{sW4}", f"s_lshl_b32 s{sUo}, s{sUo}, 9", f"s_add_u32 s{sUo}, s{sUo}, s{sDG}",
                f"s_lshl_b32 s{sUo}, s{sUo}, 7"])

        def setup_t():
            return once("t", [
                srd(rWS, pWs, WS_SIZE), f"s_lshl2_add_u32 s{sD}, s2, s{sW4}", f"s_mul_i32 s{sScr}, s{sW4}, {SCR}",
                f"v_lshlrev_b32 v{vFo}, 26, v2", "v_lshrrev_b32 v4, 4, v2", "v_bfe_u32 v5, v2, 2, 2",
                f"v_lshl_add_u32 v5, v4, {5 if uearly else 3}, v5", "v_and_b32 v6, 3, v2", "v_lshlrev_b32 v6, 3, v6",
                f"s_add_u32 s{sT0}, s{sLb}, {SL(2)}" if uearly else f"s_add_u32 s{sT0}, s{sScr}, {USG}",
                "v_lshl_add_u32 v5, v5, 7, v6", f"v_add_u32 v17, s{sT0}, v5",
                "v_and_b32 v6, 15, v2", "v_lshlrev_b32 v5, 12, v6", "v_lshl_add_u32 v18, v4, 4, v5"])

        bX, bW, bO = 18, 20, 22

        def setup_sp():
            return once("sp", setup_touch() + kwait() + [
                f"s_add_u32 s{bX}, s{pX}, s{sPX}", f"s_addc_u32 s{bX+1}, s{pX+1}, 0",
                f"s_add_u32 s{bW}, s{pW}, s{sPW}", f"s_addc_u32 s{bW+1}, s{pW+1}, 0",
                f"s_lshl2_add_u32 s{sT0}, s2, s{sW4}", f"s_lshl_b32 s{sT0}, s{sT0}, 11",
                f"s_add_u32 s{bO}, s{pWo}, s{sT0}", f"s_addc_u32 s{bO+1}, s{pWo+1}, 0"])
        spq = []
        covered = {int(o[1]) for v in sched.values() for o in v if o[0] == "A"}
        for q in range(4):
            if q:
                adv = f"s_add_u32 s{bW}, s{bW}, {256*6144}\ns_addc_u32 s{bW+1}, s{bW+1}, 0\n"
            else:
                adv = ""
            if q in covered:
                spq.append(("adv", adv))
                continue
            wl = [f"s_load_dwordx2 s[16:17], {S(bW,2)}, {sec*2048+ln*128+60}" for sec in range(3) for ln in range(4)]
            xl = [f"s_load_dwordx2 s[16:17], {S(bX,2)}, {r*2048+q*512+ln*128+60}" for ln in range(4) for r in range(2)]
            spq.append(("adv", adv))
            spq += xl[:2] + wl + xl[2:]
        if not any("W" in v for v in sched.values()):
            spq += [f"s_load_dwordx2 s[16:17], {S(bO,2)}, {ln*128+60}" for ln in range(16)]

        def sp(n):
            r = []
            pre = ""
            while spq and len(r) < n:
                x = spq.pop(0)
                if isinstance(x, tuple):
                    pre += x[1]
                else:
                    r.append(pre + x)
                    pre = ""
            return r

        def kwait():
            return once("k", ["s_waitcnt lgkmcnt(0)", srd(rX, pX, 4 << 20), srd(rW, pW, 6 << 20)])

        def stage(k):
            sl = SL(k % 3)
            r = []
            for j in range(4):
                r.append([f"s_add_u32 m0, s{sLb}, {sl+j*4096}", f"s_add_u32 s{sT0}, s{sXo}, {k*128+j*32*2048}",
                          (f"buffer_load_dwordx4 v{vX}, {S(rX,4)}, s{sT0} offen lds", ("st", k))])
            for sec in range(3):
                for j in range(2):
                    r.append([f"s_add_u32 m0, s{sLb}, {sl+16384+sec*8192+j*4096}",
                              f"s_add_u32 s{sT0}, s{sWo_}, {(k*64+j*32)*6144+sec*2048}",
                              (f"buffer_load_dwordx4 v{vW}, {S(rW,4)}, s{sT0} offen lds", ("st", k))])
            return r

        def tok(o):
            if o[0] == "A":
                q = int(o[1])
                return setup_touch() + kwait() + [
                    f"s_add_u32 s{sT0}, s{sPX}, {q*512}", f"buffer_load_dword v16, v{vPX}, {S(rX,4)}, s{sT0} offen",
                    f"s_add_u32 s{sT0}, s{sPW}, {q*256*6144}", f"buffer_load_dword v16, v{vPW}, {S(rW,4)}, s{sT0} offen"]
            if o[0] == "S":
                return setup_ring() + kwait() + stage(int(o[1:]))
            if o[0] == "x":
                return setup_sp() + sp(int(o[1:]))
            if o == "U":
                r = setup_u() + kwait() + [srd(rU, pU, 4 << 20)]
                for j in range(4):
                    r += [f"s_add_u32 m0, s{sLb}, {SL(2)+j*4096}" if uearly else f"s_add_u32 m0, s{sScr}, {USG+j*1024}",
                          f"s_add_u32 s{sT0}, s{sUo}, {j*8*2048}",
                          (f"buffer_load_dwordx4 v{vU}, {S(rU,4)}, s{sT0} offen lds", "ut")]
                return r
            if o == "T":
                r = setup_t() + [("WAIT", "ut")]
                r += [f"ds_read_b64_tr_b16 {V(UTR+4*k+2*t,2)}, v17 offset:{32*k+512*t}" for k in range(4) for t in range(2)]
                r += [f"s_mul_i32 s{sT2}, s{sD}, {CSTR}", f"s_add_u32 s{sT2}, s{sT2}, {WS_CNT}",
                      f"s_cmp_lt_u32 s{sD}, 48\ns_cselect_b32 s{sT2}, s{sT2}, {WS_SIZE}", "v_mov_b32 v4, 0",
                      f"buffer_store_dword v4, v{vFo}, {S(rWS,4)}, s{sT2} offen sc1",
                      f"s_lshl2_add_u32 s{sUo}, s{sST}, s{sW4}", f"s_lshl_b32 s{sT2}, s{sDG}, 12",
                      f"s_add_u32 s{sUo}, s{sUo}, s{sT2}", f"s_lshl_b32 s{sUo}, s{sUo}, 6", "s_waitcnt lgkmcnt(0)"]
                return r
            if o[0] == "t":
                k = int(o[1])
                return [f"s_add_u32 s{sT2}, s{sUo}, {WS_UT+k*65536}",
                        f"buffer_store_dwordx4 {V(UTR+4*k,4)}, v18, {S(rWS,4)}, s{sT2} offen sc1"]
            if o == "W":
                return ["v_and_b32 v4, 15, v2", "v_lshlrev_b32 v4, 7, v4", f"s_lshl_b32 s{sT1}, s{sD}, 11",
                        f"buffer_load_dword v16, v4, {S(rWo,4)}, s{sT1} offen"]
            raise ValueError(o)

        a.label("L_helper")
        a(f"s_sub_u32 s{sW4}, s{sWave}, 4\ns_lshl_b32 s{sLb}, s{sW4}, 10\nv_lshrrev_b32 v3, 3, v2")
        flat = sched["p"] + sched.get(0, []) + ["S2"]
        assert "W" not in sched["p"]
        assert flat.index("T") < flat.index("S2") if uearly else "U" not in flat
        for o in sched["p"]:
            run(tok(o))
        run(setup_ring() + setup_touch() + setup_u() + setup_t() + setup_sp())
        self.prof_init()
        self.stamp(9)
        a(srd(rO, pOut, 8 << 20))
        a(srd(rWo, pWo, 2 << 20))
        a(f"v_lshlrev_b32 v{vL16}, 4, v2")

        vKA, vUA, vTW, vMy, vOob = 30, 31, 19, 27, 26
        R0, RP0, RP1 = 96, 100, 101
        RR = lambda r: 102 + 4 * (r - 1)
        ex = [f"v_add_u32 v20, s{sScr}, v{vL16}", f"v_lshl_add_u32 v{vTW}, v2, 3, s{sScr}",
              f"ds_read_b128 {V(R0,4)}, v20 offset:{TB}", f"ds_read_b32 v{RP0}, v20 offset:{TB-4}",
              f"ds_read_b32 v{RP1}, v{vTW} offset:{TB+1024-4}"]
        for r in (1, 2, 3):
            ex += [f"ds_read_b64 {V(RR(r),2)}, v{vTW} offset:{TB+512+512*r}",
                   f"ds_read_b32 v{RR(r)+2}, v{vTW} offset:{TB+512+512*r+8}"]
        ex += ["\n".join(self.ids2(sWB)), f"s_lshl_b32 s{sWB}, s{sCT}, 7",
               f"s_mul_i32 s{sUc}, s{sW4}, {UC}", f"s_add_u32 s{sUc}, s{sUc}, {L_UC}",
               "v_and_b32 v21, 6, v3", "v_xor_b32 v21, v21, v2", "v_and_b32 v21, 7, v21", "v_lshlrev_b32 v21, 4, v21",
               f"v_lshl_add_u32 v{vWo}, v3, 11, v21",
               "v_mov_b32 v21, 2048", f"v_add_u32 v21, s{sScr}, v21", "v_cmp_eq_u32 vcc, 0, v2",
               f"v_sub_u32 v22, v21, v{vL16}", f"v_sub_u32 v23, v22, v{vL16}", "v_subrev_u32 v23, 32, v23",
               "v_lshlrev_b32 v24, 3, v2", "v_sub_u32 v21, v21, v24",
               "v_and_b32 v24, 15, v2", f"v_lshl_add_u32 v24, v24, 2, s{sScr}", "v_mov_b32 v25, 0",
               "v_and_b32 v27, 1, v2", "v_and_b32 v28, 48, v2", "v_and_b32 v29, 14, v2",
               f"v_mul_u32_u24 v{vKA}, {RCS}, v27", f"v_add3_u32 v{vKA}, v{vKA}, v28, s{sScr}",
               "v_lshlrev_b32 v15, 2, v29", f"v_add_u32 v{vKA}, {504-448}, v{vKA}", f"v_sub_u32 v{vKA}, v{vKA}, v15",
               f"v_mul_u32_u24 v{vUA}, {UCS}, v27", f"v_add3_u32 v{vUA}, v{vUA}, v28, s{sUc}",
               f"v_lshl_add_u32 v{vUA}, v29, 5, v{vUA}",
               "v_mov_b32 v15, 1", f"v_mov_b32 v{vOob}, 0x4000000",
               f"v_mov_b32 v28, {L_MISC-16}", f"v_lshl_add_u32 v{vMy}, v1, 2, v28",
               f"v_cndmask_b32 v{RP0}, v{RP0}, v25, vcc", f"v_cndmask_b32 v{RP1}, v{RR(1)}, v{RP1}, vcc"]
        E = [192]
        exw = []

        def blk(vals, vaddr, off):
            rv = vals[::-1]
            n = len(rv) // 2
            d = E[0]
            E[0] += max(n, 4)
            ex.extend(CVT(d + i, rv[2 * i], rv[2 * i + 1]) for i in range(n))
            if n == 2:
                exw.append(f"ds_write_b64 v{vaddr}, {V(d,2)} offset:{off}")
            else:
                exw.extend(f"ds_write_b128 v{vaddr}, {V(d+i,4)} offset:{off+4*i}" for i in range(0, n, 4))
        for g in (1, 0):
            o = g * RCS
            k = [R0, R0 + 1, R0 + 2, R0 + 3]
            blk(k if g else [RP0] + k[:3], 21, o + 2040)
            x, y, z = RR(1), RR(1) + 1, RR(1) + 2
            blk([x, x, y, z] if g else [RP1, x, x, y], 21, o + 1528)
            x, y, z = RR(2), RR(2) + 1, RR(2) + 2
            blk([x] * (4 - g) + [y] * 3 + [z] * (1 + g), 22, o + 1008)
            x, y, z = RR(3), RR(3) + 1, RR(3) + 2
            blk([x] * (6 - g) + [y] * 7 + [z] * (3 + g), 23, o)
            exw.append(f"ds_write_b32 v24, v25 offset:{o+4096}")
        assert self.events()[0] < 12
        side = [[] for _ in range(14)]
        exr = [l for l in ex if l.startswith("ds_read")]
        exv = [l for l in ex if not l.startswith("ds_read")]
        nad = [i for i, l in enumerate(exv) if l.startswith("v_cndmask")][0]
        side[9], side[10] = exv[:nad // 2], exv[nad // 2:nad]
        side[12], side[13] = exr, exv[nad:]

        uc = [f"s_lshl_b32 s{sT1}, s{sD}, 12", f"s_add_u32 s{sT1}, s{sT1}, {WS_UT}", f"s_sub_u32 s{sT2}, s{sT1}, 4"]
        for e in range(2):
            uc += [f"s_add_u32 m0, s{sUc}, {e*UCS}",
                   (f"buffer_load_dwordx4 v{vOob}, {S(rWS,4)}, 0 offen lds", "uc"), f"s_add_u32 m0, s{sUc}, {e*UCS+448}"]
            for k in range(4):
                uc.append((f"buffer_load_dwordx4 v{vL16}, {S(rWS,4)}, s{sT2 if e == 0 else sT1} offen offset:{1024*k} sc1 lds", "uc"))
            if e == 0:
                uc += [f"s_add_u32 m0, s{sUc}, {452-256}", (f"buffer_load_dword v{vOob}, {S(rWS,4)}, 0 offen lds", "uc")]
        uc += [f"s_lshl_b32 s{sPX}, s{sW4}, 16", f"s_add_u32 s{sPX}, s{sPX}, s{sWB}",
               f"s_lshl_b32 s{sPW}, s{sW4}, 14", f"s_add_u32 s{sPW}, s{sPW}, s{sWB}", f"v_mov_b32 v14, {L_MISC}"]
        WL, CA = 40, 96
        wlate = [f"s_add_u32 s{sT0}, s{sPX}, {(NE+4*j)*65536+pc*16384}\n"
                 f"buffer_load_dwordx4 {V(WL+16*j+4*pc,4)}, v{vWo}, {S(rWo,4)}, s{sT0} offen"
                 for j in range(3) for pc in range(4)]

        def wo_dma(h):
            return (f"s_add_u32 m0, s{sLb}, {WO_SLOTS[h]}\ns_add_u32 s{sT0}, s{sPW}, {h*65536}\n"
                    f"buffer_load_dwordx4 v{vWo}, {S(rWo,4)}, s{sT0} offen lds")

        for k in range(16):
            wait_tag(("st", k))
            a("s_barrier")
            if k == 0:
                self.stamp(1)
            if k < 14:
                self.stamp(k + 1, 2)
                sd = list(side[k])
                for o in sched.get(k, []):
                    if o == "T" and not uearly:
                        sd = tok(o) + sd
                    else:
                        run(tok(o))
                if k + 2 not in explicit:
                    st = stage(k + 2)
                    if k < 12:
                        n = self.o("spr", 5)
                        st = interleave(st, sp(n), 0, max(1, 10 // n), 1) if n else st
                    run(interleave(st, sd, 0, 1, -(-len(sd) // len(st))))
                else:
                    run(sd)
            elif k == 14:
                self.stamp(7)
                run(uc)
            else:
                run([wo_dma(h) for h in range(len(WO_E1))])
                self.stamp(8)
        if [x for x in spq if not isinstance(x, tuple)]:
            print("note: scalar prefetches left:", len(spq))
        a("s_barrier")
        self.stamp(2)
        e2 = [wo_dma(h) for h in range(len(WO_E1), NE)]
        em = self.o("em", 0)
        if em == 0:
            run(interleave(wlate, exw, 0, 1, 1))
            paced = e2
        else:
            run(e2 + exw)
            paced = wlate
        wait_tag("uc")
        AS, BS = [128, 192], [160, 224]

        def creads(p0):
            s = p0 & 1
            r = []
            for i in range(8):
                ra = [f"ds_read_b64 {V(AS[s]+4*i+2*t,2)}, v{vKA} offset:{(7-i)*512+8*t+448-64*p0}" for t in range(2)]
                rb = [f"ds_read_b128 {V(BS[s]+4*i,4)}, v{vUA} offset:{512*i+448-64*p0}"]
                r += (ra + rb) if i == 0 else (rb + ra)
            return r

        def cmf(p0):
            s = p0 & 1
            return [MF(CA + 4 * n, AS[s] + 4 * p1, BS[s] + 4 * (n - p1), "0" if p0 == 0 and p1 == 0 else None)
                    for n in range(8) for p1 in range(n + 1)]

        self.out(creads(0))
        if self.o("cwait", 1):
            self.poll_lds(vMy, LF_P1, 1, 5)
        self.stamp(3)
        pause, dper = self.o("pause", 1), self.o("dper", 2)
        for p0 in range(8):
            fill = creads(p0 + 1) if p0 < 7 else []
            d, paced = paced[:dper], paced[dper:]
            if pause and p0 < 7:
                fill = fill + [f"ds_read_b32 v5, v14 offset:{LF_G1}", f"ds_read_b32 v6, v{vMy} offset:{LF_OD}"]
            if d:
                fill = interleave(fill, d, 2, len(fill) // len(d), 1)
            self.out(interleave(cmf(p0), fill, 0, 1, 1))
            if pause and p0 < 7:
                l = self.lab("cp")
                a("v_cmp_le_u32 vcc, v5, v6")
                a(f"s_cbranch_vccnz {l}")
                self.poll_lds(vMy, LF_OD, 1, 6)
                a.label(l)
        assert not paced
        self.stamp(4)
        YS = 128
        a("s_waitcnt vmcnt(0)")
        self.lds_inc(14, 15, LF_WA)
        a(f"s_lshl_b32 s{sT1}, s{sD}, 12\ns_add_u32 s{sT1}, s{sT1}, {WS_YT}")
        a(f"v_add_u32 v5, s{sUc}, v{vL16}")
        for k in range(4):
            for i in range(4):
                a(CVT(YS + 4 * k + i, CA + 8 * k + 2 * i, CA + 8 * k + 2 * i + 1))
            a(f"buffer_store_dwordx4 {V(YS+4*k,4)}, v{vL16}, {S(rWS,4)}, s{sT1} offen offset:{1024*k} sc1")
        for j in range(3):
            for pc in range(4):
                a(f"ds_write_b128 v{20 if j < 2 else 5}, {V(WL+16*j+4*pc,4)} offset:{(4096 if j == 1 else 0)+1024*pc}")
        self.lds_inc(14, 15, LF_WB)
        a(f"s_mul_i32 s{sT2}, s{sST}, {CSTR}\ns_add_u32 s{sT2}, s{sT2}, {WS_CNT+32*CSTR}")
        self.arrive(14, 15, vFo, LF_CY, sT2, 4, 70)
        self.stamp(5)
        vYi, vYw, vYr, vYo = 32, 33, 34, 35
        a("v_lshrrev_b32 v4, 2, v2\nv_and_b32 v5, 3, v2\nv_lshlrev_b32 v6, 4, v5")
        a(f"v_lshl_add_u32 v{vYi}, v4, 12, v6")
        a(f"s_add_u32 s{sT0}, s{sUc}, 4096")
        a(f"v_lshrrev_b32 v6, 5, v2\nv_lshlrev_b32 v6, 4, v6\nv_add3_u32 v{vYw}, v{vL16}, v6, s{sT0}")
        a("v_lshrrev_b32 v6, 4, v2\nv_lshrrev_b32 v37, 1, v5\nv_lshl_add_u32 v6, v6, 1, v37")
        a("v_mul_u32_u24 v6, 528, v6\nv_and_b32 v37, 3, v4\nv_lshl_add_u32 v6, v37, 6, v6")
        a(f"v_and_b32 v37, 1, v2\nv_lshl_add_u32 v6, v37, 3, v6\nv_add_u32 v{vYr}, s{sT0}, v6")
        a("v_and_b32 v6, 4, v2\nv_lshlrev_b32 v6, 6, v6\nv_and_b32 v38, 2, v2\nv_lshl_add_u32 v6, v38, 1, v6")
        a(f"v_add_u32 v6, v6, v37\nv_lshlrev_b32 v38, 4, v3\nv_lshl_add_u32 v{vYo}, v6, 12, v38")
        a(f"s_mul_i32 s{sT1}, s{sDG}, {CSTR}\ns_add_u32 s{sT1}, s{sT1}, {WS_CNT+32*CSTR}")
        if self.o("yh", -1) >= 0:
            self.poll_lds(vMy, LF_YG, 1, 4)
        self.await_(14, 15, vFo, LF_GY, sT1, 4, 70, 96, 71)
        self.stamp(6)
        YL, YT_ = 40, 56
        for k in range(4):
            a(f"s_add_u32 s{sT1}, s{sUo}, {WS_YT+k*65536}")
            a(f"buffer_load_dwordx4 {V(YL+4*k,4)}, v{vYi}, {S(rWS,4)}, s{sT1} offen sc1")
        a(f"s_lshr_b32 s{sT0}, s{sST}, 2\ns_lshl3_add_u32 s{sT0}, s{sT0}, s{sW4}\ns_and_b32 s{sT1}, s{sST}, 3")
        a(f"s_lshl3_add_u32 s{sT0}, s{sT0}, s{sT1}\ns_lshl_b32 s{sT0}, s{sT0}, 8\ns_add_u32 s{sT0}, s{sT0}, s{sDG}")
        a(f"s_lshl_b32 s{sT0}, s{sT0}, 7")
        for k in range(4):
            a(f"ds_write_b128 v{vYw}, {V(YL+4*k,4)} offset:{k*1056}")
        for k in range(4):
            for t in range(2):
                a(f"ds_read_b64_tr_b16 {V(YT_+4*k+2*t,2)}, v{vYr} offset:{16*k+256*t}")
        for k in range(4):
            a(f"s_add_u32 s{sT1}, s{sT0}, {(2*(k&1)+32*(k>>1))*4096}")
            a(f"buffer_store_dwordx4 {V(YT_+4*k,4)}, v{vYo}, {S(rO,4)}, s{sT1} offen offset:2048")
        self.dump_stamps()
        a("s_endpgm")

    def build(self):
        self.entry()
        self.helper()
        self.compute()
        self.a.finish()
        body = self.a.text()
        head = open("concat_heads__linear_attn_block__ssm_conv_s4__prompt.s.ref").read()
        cm = []
        for l in head.split("\n"):
            if l.startswith("; @launch"):
                cm.append(f"; @launch grid=(256,1,1) block=(512,1,1) lds={LDS_BYTES}")
                break
            cm.append(l)
        txt = "\n".join(cm) + "\n"
        txt += f""".amdgcn_target "amdgcn-amd-amdhsa--gfx950"
.text
.globl {NAME}
.p2align 8
.type {NAME},@function
{NAME}:
"""
        txt += body.replace("CODE_LEFT", str(self.opt.get("code_left", 0)))
        txt += f""".section .rodata,"a"
.p2align 6
.amdhsa_kernel {NAME}
  .amdhsa_next_free_vgpr 256
  .amdhsa_next_free_sgpr 102
  .amdhsa_accum_offset 256
  .amdhsa_group_segment_fixed_size 0
  .amdhsa_kernarg_size 120
  .amdhsa_user_sgpr_count 2
  .amdhsa_user_sgpr_kernarg_segment_ptr 1
  .amdhsa_system_sgpr_workgroup_id_x 1
.end_amdhsa_kernel
"""
        return txt


def code_size(txt):
    import subprocess, tempfile
    d = tempfile.mkdtemp()
    open(d + "/k.s", "w").write(txt)
    r = subprocess.run(["clang", "-x", "assembler", "-target", "amdgcn-amd-amdhsa", "-mcpu=gfx950",
                        "-c", d + "/k.s", "-o", d + "/k.o"], capture_output=True, text=True)
    if r.returncode:
        print(r.stderr[:3000])
        raise SystemExit("assemble failed")
    o = subprocess.run(["llvm-objdump", "-h", d + "/k.o"], capture_output=True, text=True).stdout
    for l in o.split("\n"):
        p = l.split()
        if len(p) > 2 and p[1] == ".text":
            return int(p[2], 16)


def make(prof=0, **opt):
    t = Gen(prof, code_left=1024, **opt).build()
    n = code_size(t)
    assert n < 32768 + 128
    return Gen(prof, code_left=n - 128, **opt).build(), n


if __name__ == "__main__":
    t, n = make(0)
    out = sys.argv[1] if len(sys.argv) > 1 else "concat_heads__linear_attn_block__ssm_conv_s4__prompt.s"
    open(out, "w").write(t)
    print("wrote", out, "code bytes", n, "lines", t.count("\n"))
```

```python
import sys, struct, math
from asmgen import *

NAME = "concat_heads__linear_attn_block__ssm_conv_s4__prompt_kernel"


def fbits(x):
    return "0x%08x" % struct.unpack("<I", struct.pack("<f", x))[0]


LOG2E = 1.4426950408889634
EPS = 1e-6

CSTR = 8448
WS_ZP = 65536
WS_CNT = 512 << 10
WS_KVP = 1 << 20
WS_UT = 4 << 20
WS_YT = 8 << 20
WS_OF = 12 << 20
WS_PROF = 16 << 20
WS_SIZE = 20 << 20

SLOT = 40960
SL = lambda s: SLOT * (s + 1)
SCR = 8704
L_MISC = 34816
L_UC = SL(1)
UC = 4608
RCS = 2112
L_EX = (SL(1) + 36864, 36864)
L_EZ = L_MISC + 1024
LDS_BYTES = 163840
LF_P1, LF_P2, LF_OD = 0, 16, 32
LF_WA, LF_WB, LF_C1, LF_G1, LF_C2, LF_G2, LF_CY, LF_GY, LF_YG, LF_PQ, LF_PA, LF_W0 = 48, 52, 56, 60, 64, 68, 72, 76, 80, 96, 112, 128
WO_E0 = [SL(1) + 20480 + 4096 * i for i in range(4)]
WO_E1 = [SL(2) + 4096 * i for i in range(10)]
WO_E2 = [SL(0) + 4096 * i for i in range(10)]
WO_LATE = [SCR * w + 4096 * j for j in range(2) for w in range(4)]
WO_SLOTS = WO_E0 + WO_E1 + WO_E2 + WO_LATE
NE = 24
TB = 16

pX, pW, pWo, pU, pAre, pAim, pBre, pBim, pCre, pCim, pLdt, pDsk, pOut, pDbg, pWs = range(8, 38, 2)
rX, rW, rWS, rO, rWo, rU = 40, 44, 48, 52, 56, 60
sWave, sRT, sHP, sRT2, sCT = 3, 4, 5, 6, 7
SPIN = 20000


def srd(r, p, size):
    return f"s_mov_b32 s{r}, s{p}\ns_mov_b32 s{r+1}, s{p+1}\ns_mov_b32 s{r+2}, {size}\ns_mov_b32 s{r+3}, 0x20000"


def bfe(d, s, off, w):
    return f"s_bfe_u32 s{d}, s{s}, {hex((w << 16) | off)}"


def MF(d, x, y, c=None):
    c = V(d, 4) if c is None else c
    return f"v_mfma_f32_16x16x32_bf16 {V(d,4)}, {V(x,4)}, {V(y,4)}, {c}"


def CVT(d, x, y, neg=False):
    return f"v_cvt_pk_bf16_f32 v{d}, v{x}, {'-' if neg else ''}v{y}"


class Gen:
    def __init__(self, prof=0, **opt):
        self.a = Asm()
        self.prof = prof
        self.opt = opt
        self.nlab = 0
        self.sched = {}
        for part in opt.get("sched", "p=A0,S0,U,A1,T,t0,t1,t2,t3,S1").split("/"):
            k, v = part.split("=")
            self.sched[k if k == "p" else int(k)] = v.split(",")

    def o(self, k, d):
        return self.opt.get(k, d)

    def lab(self, base):
        self.nlab += 1
        return f"L_{base}_{self.nlab}"

    def out(self, lst):
        for l in lst:
            if isinstance(l, list):
                self.out(l)
            else:
                self.a(l)

    def stamp(self, idx, mode=1):
        if not self.prof or (self.prof != mode and idx != 15):
            return
        self.a(f"s_memrealtime s[68:69]\ns_waitcnt lgkmcnt(0)\ns_mov_b32 s{72+idx}, s68")

    def dump_stamps(self):
        if not self.prof:
            return
        a = self.a
        a("s_waitcnt vmcnt(0)")
        self.stamp(15)
        for i in range(16):
            a(f"v_mov_b32 v{16+i}, s{72+i}")
        a(f"s_lshl_b32 s68, s2, 3\ns_add_u32 s68, s68, s{sWave}\ns_lshl_b32 s68, s68, 6\ns_add_u32 s68, s68, {WS_PROF}")
        a("v_mov_b32 v3, 0")
        for i in range(4):
            a(f"buffer_store_dwordx4 {V(16+4*i,4)}, v3, {S(rWS,4)}, s68 offen offset:{16*i}")

    def arrive(self, vM, vOne, vFo, lf_cnt, soff, vtmp, slast, vret=None):
        a = self.a
        l = self.lab("arr")
        a("s_waitcnt vmcnt(0)")
        a("s_mov_b64 exec, 1")
        a(f"ds_add_rtn_u32 v{vtmp}, v{vM}, v{vOne} offset:{lf_cnt}")
        a("s_mov_b64 exec, -1")
        a(f"v_readfirstlane_b32 s{slast}, v{vtmp}")
        a(f"s_cmp_lg_u32 s{slast}, 3")
        a(f"s_cbranch_scc1 {l}")
        if vret is None:
            a(f"buffer_atomic_add v{vOne}, v{vFo}, {S(rWS,4)}, s{soff} offen sc1")
        else:
            a(f"buffer_atomic_add v{vret}, v{vFo}, {S(rWS,4)}, s{soff} offen sc0 sc1")
        a.label(l)

    def await_(self, vM, vOne, vFo, lf_go, soff, vtmp, slast, scnt, stmp, vret=None):
        a = self.a
        l, d, o, e = self.lab("poll"), self.lab("polld"), self.lab("pollo"), self.lab("polle")
        a(f"s_cmp_lg_u32 s{slast}, 3")
        a(f"s_cbranch_scc1 {o}")
        a(f"s_mov_b32 s{scnt}, {SPIN}")
        if vret is not None:
            a(f"v_readfirstlane_b32 s{stmp}, v{vret}")
            a(f"s_cmp_eq_u32 s{stmp}, 15")
            a(f"s_cbranch_scc1 {d}")
        a.label(l)
        if {LF_G1: "1", LF_G2: "2", LF_GY: "y"}[lf_go] in self.o("lpoll", ""):
            a(f"buffer_load_dword v{vtmp}, v{vFo}, {S(rWS,4)}, s{soff} offen sc1")
        else:
            a(f"v_mov_b32 v{vtmp}, 0")
            a(f"buffer_atomic_add v{vtmp}, v{vFo}, {S(rWS,4)}, s{soff} offen sc0 sc1")
        a(f"s_sub_u32 s{scnt}, s{scnt}, 1")
        a(f"s_cbranch_scc1 {d}")
        a(f"v_readfirstlane_b32 s{stmp}, v{vtmp}")
        a(f"s_cmp_lt_u32 s{stmp}, 16")
        a(f"s_cbranch_scc1 {l}")
        a.label(d)
        a(f"ds_write_b32 v{vM}, v{vOne} offset:{lf_go}")
        a(f"s_branch {e}")
        a.label(o)
        self.poll_lds(vM, lf_go, 1, vtmp)
        a.label(e)

    def poll_lds(self, vaddr, off, val, vtmp, after=()):
        a = self.a
        l = self.lab("lpoll")
        slp = self.o("slp", 0) if off in (LF_GY, LF_YG) else (self.o("slp2", 0) if off in (LF_G1, LF_G2, LF_OD, LF_PQ) else 0)
        if slp:
            l2 = self.lab("lpollin")
            a(f"s_branch {l2}")
        a.label(l)
        if slp:
            a(f"s_sleep {slp}")
            a.label(l2)
        a(f"ds_read_b32 v{vtmp}, v{vaddr} offset:{off}")
        self.out(list(after))
        a(f"v_cmp_ne_u32 vcc, {val}, v{vtmp}")
        a(f"s_cbranch_vccnz {l}")

    def lds_inc(self, vM, vOne, off):
        self.a(f"s_mov_b64 exec, 1\nds_add_u32 v{vM}, v{vOne} offset:{off}\ns_mov_b64 exec, -1")

    def quad_t(self, src, tmp):
        r = []
        for a_, b_, bit, mask, qp in ((src, tmp, 1, 0x55555555, "[1,0,3,2]"), (tmp, src, 2, 0x33333333, "[2,3,0,1]")):
            for hi in (0, 1):
                pre = f"s_mov_b32 vcc_lo, {hex(mask)}\ns_mov_b32 vcc_hi, {hex(mask)}\n" if hi == 0 else "s_not_b64 vcc, vcc\n"
                for k in range(4):
                    if bool(k & bit) != bool(hi):
                        continue
                    for d in range(4):
                        r.append(pre + f"v_cndmask_b32_dpp v{b_+4*k+d}, v{a_+4*(k^bit)+d}, v{a_+4*k+d}, vcc "
                                       f"quad_perm:{qp} row_mask:0xf bank_mask:0xf")
                        pre = ""
        return r

    def ids2(self, t):
        if self.o("omap", 1) == 0:
            return [f"s_and_b32 s{sRT2}, s2, 7", bfe(t, 2, 3, 1), f"s_lshl1_add_u32 s{sRT2}, s{sRT2}, s{t}",
                    f"s_lshr_b32 s{sCT}, s2, 4"]
        return [bfe(sRT2, 2, 1, 2), bfe(t, 2, 3, 2), f"s_lshl2_add_u32 s{sRT2}, s{sRT2}, s{t}",
                f"s_and_b32 s{sCT}, s2, 1", f"s_lshr_b32 s{t}, s2, 5", f"s_lshl3_add_u32 s{sCT}, s{sCT}, s{t}"]

    def ids1(self, t):
        return [f"s_and_b32 s{sRT}, s2, 1", bfe(t, 2, 3, 3), f"s_lshl3_add_u32 s{sRT}, s{sRT}, s{t}",
                bfe(sHP, 2, 1, 2), f"s_lshr_b32 s{t}, s2, 6", f"s_lshl2_add_u32 s{sHP}, s{sHP}, s{t}"]

    PR, vDs = 80, 87

    def entry(self):
        a = self.a
        a("s_cmp_ge_u32 s2, 256")
        a("s_cbranch_scc1 L_end")
        a("s_load_dwordx16 s[8:23], s[0:1], 0")
        if self.o("perm", 0):
            a(bfe(3, 2, 1, 2) + "\ns_and_b32 s4, s2, 1\ns_lshl2_add_u32 s3, s4, s3\ns_andn2_b32 s2, s2, 7\ns_or_b32 s2, s2, s3")
        a("s_load_dwordx8 s[24:31], s[0:1], 64")
        a("s_load_dwordx4 s[32:35], s[0:1], 96")
        a("s_load_dwordx2 s[36:37], s[0:1], 112")
        if self.prof:
            a("s_memrealtime s[68:69]")
        a("s_getpc_b64 s[88:89]")
        a("s_and_b32 s90, s2, 56\ns_lshl_b32 s90, s90, 4")
        a("v_lshrrev_b32 v6, 4, v0\nv_lshl_add_u32 v6, v6, 10, s90")
        a("v_min_u32 v6, CODE_LEFT, v6")
        a("v_lshrrev_b32 v1, 6, v0")
        a("global_load_dword v7, v6, s[88:89]")
        a(f"v_readfirstlane_b32 s{sWave}, v1")
        a("v_and_b32 v2, 63, v0")
        a(f"s_cmp_ge_u32 s{sWave}, 4")
        a("s_cbranch_scc1 L_helper")
        a("s_lshl_b32 s91, s2, 10\nv_lshl_add_u32 v3, v0, 2, s91")
        a("s_lshl_b32 s91, s2, 3\nv_lshl_add_u32 v5, v1, 1, s91")
        a("s_waitcnt lgkmcnt(0)")
        a(f"global_load_ushort v{self.PR+6}, v5, {S(pLdt,2)}")
        for i, p in enumerate((pAre, pAim, pBre, pBim, pCre, pCim)):
            a(f"global_load_dword v{self.PR+i}, v3, {S(p,2)}")
        a(f"global_load_ushort v{self.vDs}, v5, {S(pDsk,2)}")
        a("s_branch L_compute")

    def prof_init(self):
        if self.prof:
            self.a("s_mov_b32 s72, s68")
            for i in range(1, 16):
                self.a(f"s_mov_b32 s{72+i}, 0")

    def kgen(self, sScr):
        a = self.a
        PR, vDs = self.PR, self.vDs
        vDt, vTR, vA0, vA1, vA2, vSt, vB0, vB1 = 68, 70, 71, 72, 73, 74, 75, 76
        ST = lambda n, i: 8 + n * 30 + 2 * i
        RT0, RS0, RS1, RT1 = 100, 132, 164, 196
        FT, FS = (RT0, 212), (RS0, RS1)
        KD = lambda tt, st: 196 + (tt * 2 + st) * 4
        a("v_and_b32 v3, 15, v2\nv_mul_u32_u24 v5, 544, v3\nv_and_b32 v6, 48, v2")
        a(f"v_add3_u32 v{vTR}, v5, v6, s{sScr}")
        a("v_max_u32 v6, 1, v4\nv_sub_u32 v6, 6, v6")
        a(f"v_lshlrev_b32 v{vA0}, v6, v3")
        a(f"v_mov_b32 v{vSt}, 16\nv_lshlrev_b32 v{vSt}, v6, v{vSt}")
        a("v_lshlrev_b32 v6, 4, v4\nv_lshlrev_b32 v5, 9, v4")
        a("v_cmp_gt_u32 vcc, 2, v4")
        a(f"v_lshl_add_u32 v{vA2}, v3, 2, v5\nv_add_u32 v{vA2}, s{sScr}, v{vA2}")
        a("v_cndmask_b32 v6, v5, v6, vcc")
        a(f"v_add3_u32 v{vA0}, v{vA0}, v6, s{sScr}")
        a("v_cmp_eq_u32 vcc, 3, v4")
        a("v_mov_b32 v6, 8\nv_mov_b32 v5, 256")
        a("v_cndmask_b32 v6, v6, v5, vcc")
        a(f"v_add_u32 v{vA1}, v{vA0}, v6")
        a(f"v_add_u32 v{vB0}, v{vA0}, v{vSt}\nv_add_u32 v{vB1}, v{vA1}, v{vSt}")
        a(f"s_mov_b32 m0, s{sScr}")
        a(f"v_mov_b32 v{RS0}, 0x3f80\nv_mov_b32 v{RS0+1}, 0x3f80")
        a("v_cmp_eq_u32 vcc, 0, v2")
        a(f"v_lshlrev_b32 v{vDt}, 16, v{PR+6}\nv_mul_f32 v{vDt}, {fbits(LOG2E)}, v{vDt}\nv_exp_f32 v{vDt}, v{vDt}")
        for i in range(3):
            for c in range(2):
                a(f"v_lshlrev_b32 v{ST(0,i)+c}, 16, v{PR+2*i+c}")
                a(f"v_and_b32 v{ST(1,i)+c}, 0xffff0000, v{PR+2*i+c}")
            if i == 0:
                a(f"v_cvt_pk_bf16_f32 v{vDt}, v{vDt}, v{vDt}\nv_lshlrev_b32 v{vDt}, 16, v{vDt}")
        self.stamp(11)
        for i in range(2):
            for n in range(2):
                a(f"v_pk_mul_f32 {V(ST(n,i),2)}, {V(ST(n,i),2)}, {V(vDt,2)} op_sel_hi:[1,0]")
        for n in range(2):
            a(f"v_mul_f32 v{ST(n,0)}, {fbits(LOG2E)}, v{ST(n,0)}")
            a(f"v_mul_f32 v{ST(n,0)+1}, {fbits(1/(2*math.pi))}, v{ST(n,0)+1}")
        pend = []
        lq = []
        soon = []
        nrow = [0]
        g0, rate = self.o("kg0", 99), self.o("kgr", 4)

        def CM(dst, x, y):
            lq.extend(soon)
            soon.clear()
            take = [lq.pop(0) for _ in range(min(rate, len(lq)))] if nrow[0] >= g0 else []
            seq = [f"v_pk_mul_f32 {V(ST(n,dst),2)}, {V(ST(n,x),2)}, {V(ST(n,y),2)} op_sel_hi:[1,0]" for n in range(2)]
            for c, w in pend:
                seq.append(c)
                soon.extend(w)
            pend.clear()
            seq += [f"v_pk_fma_f32 {V(ST(n,dst),2)}, {V(ST(n,x),2)}, {V(ST(n,y),2)}, {V(ST(n,dst),2)} "
                    f"op_sel:[1,1,0] op_sel_hi:[0,1,1] neg_lo:[1,0,0]" for n in range(2)]
            self.out(interleave(seq, take, 0, 1, 1))

        def wr(base, r, n):
            return f"ds_write_addtid_b32 v{base+2*r+n} offset:{r*544+n*256}"

        def rd(dst):
            return [f"ds_read_b128 {V(dst+4*f,4)}, v{vTR} offset:{64*f}" for f in range(8)]

        def row(base, r, pair, neg, pre=(), post=()):
            nrow[0] += 1
            for n in range(2):
                pend.append((CVT(base + 2 * r + n, ST(n, pair), ST(n, pair) + 1, neg),
                             (list(pre) if n == 0 else []) + [wr(base, r, n)] + (list(post) if n == 1 else [])))

        for zi, L, t in ((3, 1.0, 12), (4, 8.0, 13), (5, 256.0, 14)):
            for n in range(2):
                if L != 1.0:
                    a(f"v_mul_f32 v{ST(n,t)}, {fbits(L)}, v{ST(n,0)}")
                    a(f"v_mul_f32 v{ST(n,t)+1}, {fbits(L)}, v{ST(n,0)+1}")
            for n in range(2):
                src = t if L != 1.0 else 0
                a(f"v_fract_f32 v{ST(n,t)+1}, v{ST(n,src)+1}")
                a(f"v_exp_f32 v{ST(n,t)}, v{ST(n,src)}")
            for n in range(2):
                a(f"v_cos_f32 v{ST(n,zi)}, v{ST(n,t)+1}")
                a(f"v_sin_f32 v{ST(n,zi)+1}, v{ST(n,t)+1}")
        CM(6, 2, 1)
        for zi, t in ((3, 12), (4, 13), (5, 14)):
            for n in range(2):
                a(f"v_pk_mul_f32 {V(ST(n,zi),2)}, {V(ST(n,zi),2)}, {V(ST(n,t),2)} op_sel_hi:[1,0]")
        row(RT0, 0, 6, True)
        for j in range(4):
            CM(10, 6 + j, 3); row(RT0, 2 * j + 1, 10, True)
            if j < 3:
                CM(7 + j, 10, 3); row(RT0, 2 * j + 2, 7 + j, True)
        for dst, x, r in ((12, 7, 9), (10, 6, 8), (12, 9, 11), (11, 8, 10), (6, 10, 12), (8, 11, 13), (10, 6, 14), (11, 8, 15)):
            CM(dst, x, 5); row(RT0, r, dst, True, post=rd(FT[0]) if r == 15 else ())
        cur = 10
        for r in range(5):
            nxt = 6 if cur == 10 else 10
            CM(nxt, cur, 5); row(RT1, r, nxt, True, post=rd(FT[1]) if r == 4 else ())
            cur = nxt
        row(RS0, 1, 4, False, pre=[wr(RS0, 0, 0), wr(RS0, 0, 1)])
        cur = 4
        for j in range(2, 32):
            nxt = 10 if cur != 10 else 11
            CM(nxt, cur, 4)
            row(RS0 if j < 16 else RS1, j % 16, nxt, False, post=rd(FS[j >> 4]) if j % 16 == 15 else ())
            cur = nxt
        a(f"v_lshlrev_b32 v{vDs}, 16, v{vDs}\nv_mov_b32 v6, 0")
        lq.extend(soon)
        for c, w in pend:
            a(c)
            lq.extend(w)
        a(f"v_cndmask_b32 v{vDs}, v6, v{vDs}, vcc")
        self.stamp(12)
        if self.o("b0", 1) == 0:
            a("s_barrier")
            self.stamp(1)

        def mm(st):
            return [MF(KD(tt, st), FT[tt] + 4 * f, FS[st] + 4 * f, "0" if f == 0 else None) for tt in range(2) for f in range(8)]

        def tw(st):
            return [f"ds_write_b64 v{(vA0,vB0)[st]}, {V(KD(0,st),2)} offset:{TB}",
                    f"ds_write_b64 v{(vA1,vB1)[st]}, {V(KD(0,st)+2,2)} offset:{TB}"] + \
                   [f"ds_write_b32 v{vA2}, v{KD(1,st)+r} offset:{TB+2048+128*r+64*st}" for r in range(4)]
        nt = min(len(lq), 34)
        self.out(lq[:len(lq) - nt])
        self.out(interleave(mm(0), lq[len(lq) - nt:], 0, 1, -(-nt // 16)))
        a(f"v_add_f32 v{KD(0,0)}, v{KD(0,0)}, v{vDs}")
        self.out(interleave(mm(1), tw(0), 0, 2, 1))
        return tw(1)

    def phi(self, s, tmp, sL):
        out = [f"v_fma_f32 v{tmp+i}, v{s+i}, s{sL}, -s{sL}" for i in range(4)]
        out += [f"v_exp_f32_e64 v{tmp+i}, v{tmp+i} clamp" for i in range(4)]
        out += [f"v_max_f32 v{s+i}, v{s+i}, v{tmp+i}" for i in range(4)]
        return out

    def events(self):
        kT = [k for k, v in self.sched.items() if "t3" in v][0]
        kT = -1 if kT == "p" else kT
        e0 = max(3, (kT + 3) | 1)
        assert e0 < 11
        return (e0, 11, 13)

    def compute(self):
        a = self.a
        acc = 100
        XS, WR = (8, 40), (72, 80, 88)
        vXA, vXB, vWA, vWB = 244, 246, 248, 252
        sHI, sMI, sSl, sIt, sE, sL, sScr, sEvt = 64, 65, 66, 67, 90, 91, 92, 96
        AQ = lambda mt, nt: acc + (mt * 2 + nt) * 4
        AK = lambda mt, nt: acc + 32 + (mt * 2 + nt) * 4
        AV = lambda mt, nt: acc + 64 + (mt * 2 + nt) * 4
        a.label("L_compute")
        self.prof_init()
        a(f"v_lshlrev_b32 v3, 2, v2\nv_mov_b32 v5, 0\nds_write_b32 v3, v5 offset:{L_MISC}")
        self.out(self.ids1(88) + self.ids2(88))
        a(f"s_mul_i32 s{sScr}, s{sWave}, {SCR}")
        a(f"s_and_b32 s{sHI}, s{sWave}, 1\ns_lshr_b32 s{sMI}, s{sWave}, 1")
        a("v_and_b32 v3, 15, v2\nv_lshrrev_b32 v4, 4, v2\nv_lshrrev_b32 v5, 1, v3\nv_xor_b32 v5, v5, v4")
        a("v_lshlrev_b32 v5, 4, v5\nv_lshl_add_u32 v5, v3, 7, v5")
        a(f"s_lshl_b32 s88, s{sMI}, 13\nv_add_u32 v{vXB}, s88, v5\nv_xor_b32 v{vXB+1}, 64, v{vXB}")
        a("v_bfe_u32 v3, v2, 2, 2\nv_lshl_add_u32 v5, v4, 3, v3\nv_lshlrev_b32 v5, 7, v5\nv_lshrrev_b32 v3, 1, v3")
        a(f"v_xor_b32 v6, s{sHI}, v4\nv_and_b32 v6, 1, v6\nv_lshl_add_u32 v3, v6, 1, v3\nv_lshl_add_u32 v5, v3, 5, v5")
        a("v_and_b32 v3, 3, v2\nv_lshl_add_u32 v5, v3, 3, v5")
        a(f"v_add_u32 v{vWB}, 16384, v5\nv_xor_b32 v{vWB+1}, 32, v{vWB}")
        a(f"s_lshl_b32 s88, s{sMI}, 5\nv_xor_b32 v{vWB+2}, s88, v{vWB}\nv_xor_b32 v{vWB+3}, s88, v{vWB+1}")
        a(f"s_mov_b32 s{sE}, {fbits(EPS)}\ns_mov_b32 s{sL}, {fbits(LOG2E)}")
        a(srd(rWS, pWs, WS_SIZE))
        a(srd(rO, pOut, 8 << 20))
        GR = ((1, 0), (1, 1), (2, 0), (2, 1), (0, 0), (0, 1))

        def rx(par, ks, mt):
            return f"ds_read_b128 {V(XS[par]+16*ks+4*mt,4)}, v{vXA+ks} offset:{mt*2048}"

        def rw(g, buf=None):
            sec, nt = GR[g]
            b = WR[g % 3] if buf is None else buf
            return [f"ds_read_b64_tr_b16 {V(b+4*ks+2*t,2)}, v{vWA+nt+(2 if sec == 2 else 0)} offset:{sec*8192+ks*4096+t*512}"
                    for ks in range(2) for t in range(2)]

        def head_reads(par):
            w0 = rw(0)
            return [rx(par, 0, 0)] + w0[:2] + [rx(par, 1, 0)] + w0[2:] + \
                   [rx(par, 1, 1), rx(par, 0, 1), rx(par, 0, 2), rx(par, 1, 2), rx(par, 1, 3), rx(par, 0, 3)] + rw(1)[:2]

        def grp(par, g, first=False, buf=None):
            sec, nt = GR[g]
            b = WR[g % 3] if buf is None else buf
            m = []
            for j, mt in enumerate(range(4) if g % 2 == 0 else range(3, -1, -1)):
                for i, ks in enumerate((0, 1) if j % 2 == 0 else (1, 0)):
                    c = acc + sec * 32 + (mt * 2 + nt) * 4
                    xa, wa = XS[par] + 16 * ks + 4 * mt, b + 4 * ks
                    c0 = ("0" if sec == 2 else "1.0") if first and i == 0 else None
                    m.append(MF(c, xa, wa, c0) if sec else MF(c, wa, xa, c0))
            return m

        sa = [f"v_add_u32 v{vXA+i}, s{sSl}, v{vXB+i}" for i in range(2)] + \
             [f"v_add_u32 v{vWA+i}, s{sSl}, v{vWB+i}" for i in range(4)]

        def stage_body(par, first=False, tail=()):
            sal = [f"s_add_u32 s{sSl}, s{sSl}, {SLOT}", f"s_cmp_eq_u32 s{sSl}, {SL(3)}",
                   f"s_cselect_b32 s{sSl}, {SL(0)}, s{sSl}"]
            W4 = "s_waitcnt lgkmcnt(4)"
            self.out(interleave(grp(par, 0, first), rw(1)[2:] + rw(2) + ["", W4], 0, 1, 1))
            self.out(interleave(grp(par, 1, first), rw(3) + sal + [W4], 0, 1, 1))
            self.out(interleave(grp(par, 2, first), rw(4) + [sa[0], sa[1], sa[4], W4], 0, 1, 1))
            self.out(interleave(grp(par, 3, first), rw(5) + [sa[2], sa[3], sa[5], W4], 0, 1, 1))
            m = grp(par, 4, first) + grp(par, 5, first)
            self.out(interleave(m, ["s_waitcnt lgkmcnt(0)", "s_barrier"] + head_reads(1 - par), 0, 1, 1)[:-1] + list(tail))
            a(rw(1)[1])

        EV = self.events()
        a(f"s_cmp_eq_u32 s{sWave}, 0\ns_cselect_b32 s{sEvt}, {EV[0]}, 15\ns_mov_b32 s97, {SPIN}")
        a("s_and_b32 s88, s2, 3\ns_lshl_b32 s88, s88, 6")
        a("v_mov_b32 v96, s88\nv_mov_b32 v97, 1\nv_lshlrev_b32 v98, 6, v3\nv_mov_b32 v99, 0")
        a(f"s_mov_b32 s{sSl}, {SL(0)}\ns_mov_b32 s{sIt}, 1")
        self.out(sa)
        tw1 = self.kgen(sScr) if 'K' not in self.o('abl', '') else []
        self.out(tw1)
        self.stamp(10)
        if self.o("b0", 1) == 1:
            a("s_waitcnt lgkmcnt(0)")
            a("s_barrier")
            self.stamp(1)
        a(f"s_setprio {self.o('prio', 3)}")
        self.out(head_reads(0))
        stage_body(0, True)
        a(".p2align 3")
        a.label("L_cloop")
        a("s_waitcnt lgkmcnt(6)")
        stage_body(1, tail=[f"s_add_u32 s{sIt}, s{sIt}, 2"])
        a("s_waitcnt lgkmcnt(6)")
        stage_body(0, tail=[f"s_cmp_lt_u32 s{sIt}, s{sEvt}"])
        a("s_cbranch_scc1 L_cloop")
        a(f"s_cmp_eq_u32 s{sIt}, 15")
        a("s_cbranch_scc1 L_cexit")
        a(f"s_cmp_eq_u32 s{sIt}, {EV[1]}")
        a("s_cbranch_scc1 L_ev1")
        a(f"s_cmp_eq_u32 s{sIt}, {EV[2]}")
        a("s_cbranch_scc1 L_ev2")
        a("s_mov_b64 exec, 1")
        a(f"global_atomic_add v96, v97, {S(pDbg,2)} sc1")
        a("s_mov_b64 exec, -1")
        a(f"s_mov_b32 s{sEvt}, {EV[1]}")
        a("s_branch L_cloop")
        a.label("L_ev1")
        a(f"global_load_dword v99, v98, {S(pDbg,2)} sc1")
        a(f"s_mov_b32 s{sEvt}, {EV[2]}")
        a("s_branch L_cloop")
        a.label("L_ev2")
        a(f"s_mov_b32 s{sEvt}, 15")
        a("v_cmp_gt_u32 vcc, 64, v99")
        a("s_cbranch_vccz L_cloop")
        a("s_sub_u32 s97, s97, 1")
        a("s_cbranch_scc1 L_cloop")
        a(f"global_load_dword v99, v98, {S(pDbg,2)} sc1")
        a("s_branch L_ev2")
        a.label("L_cexit")
        vL16, vEx, vLF, vOne, vZo, vFo, vM, vPE, vPF, v1, vEz, vPz = 197, 198, 199, 200, 204, 205, 206, 207, 96, 97, 98, 99
        sLast, sHead, sT0, sT1 = 70, 92, 93, 94
        WQ = (8, 16)
        KF = lambda ch, dt: 208 + (ch * 2 + dt) * 4
        VF = lambda ch, e: 224 + (ch * 2 + e) * 4
        D = lambda dt, e: 240 + (e * 2 + dt) * 4
        Z = lambda dt: 24 + dt * 4
        tmp, RX, PK, vEA, EC = 32, 72, 32, 36, 80
        EPSB = struct.unpack("<I", struct.pack("<f", EPS))[0]
        EPSB = (EPSB + 0x7fff + ((EPSB >> 16) & 1)) >> 16
        EPSB = hex(EPSB << 16 | EPSB)
        pre = [f"v_mov_b32 v{vM}, {L_MISC}", f"v_lshlrev_b32 v{vL16}, 4, v2", f"s_mov_b32 s{sT1}, {L_EX[1]}",
               f"s_cmp_eq_u32 s{sHI}, 0\ns_cselect_b32 s{sT1}, {L_EX[0]}, s{sT1}",
               f"s_lshl_b32 s{sT0}, s{sMI}, 11\ns_add_u32 s{sT0}, s{sT0}, s{sT1}", f"v_add_u32 v{vEx}, s{sT0}, v{vL16}",
               f"v_lshl_add_u32 v{vLF}, v1, 2, v{vM}", f"v_lshlrev_b32 v{vEz}, 2, v0"]
        rd = rw(1)[2:] + rw(2) + rw(4, WQ[0])[:2]
        a("s_waitcnt lgkmcnt(6)")
        self.out(interleave(grp(1, 0), [x + "\n" + y for x, y in zip(rd, pre)], 0, 1, 1))
        self.stamp(2)
        self.stamp(2, 3)
        self.stamp(2, 4)
        rd = rw(3) + rw(4, WQ[0])[2:] + rw(5, WQ[1])
        pend = grp(1, 1) + grp(1, 2) + grp(1, 3)
        pend = [x + "\n" + rd[i] if i < len(rd) else x for i, x in enumerate(pend)]
        pend[15] += "\ns_waitcnt lgkmcnt(0)\ns_barrier"
        e1 = [f"v_mov_b32 v{vOne+i}, 0x3f803f80" for i in range(4)] + [f"v_mov_b32 v{vEA+i}, {EPSB}" for i in range(4)]

        def phik(dt, ch):
            r = []
            for h in range(2):
                s = AK(2 * ch + h, dt)
                r += self.phi(s, tmp, sL) + [CVT(KF(ch, dt) + 2 * h, s, s + 1), CVT(KF(ch, dt) + 2 * h + 1, s + 2, s + 3)]
            return r

        def cvtv(e):
            return [CVT(VF(ch, e) + 2 * h + i, AV(2 * ch + h, e) + 2 * i, AV(2 * ch + h, e) + 2 * i + 1)
                    for ch in range(2) for h in range(2) for i in range(2)]

        def kvm(dt, e, chs=(0, 1)):
            return [MF(D(dt, e), KF(ch, dt), VF(ch, e), V(EC + 4 * e, 4) if ch == 0 else None) for ch in chs]
        epsm = lambda e: [MF(EC + 4 * e, vEA, VF(ch, e), "0" if ch == 0 else None) for ch in range(2)]
        zm = lambda dt, chs=(0, 1): [MF(Z(dt), vOne, KF(ch, dt), "0" if ch == 0 else None) for ch in chs]
        e1 += phik(0, 0) + phik(0, 1) + [("M", zm(0))]
        e1 += cvtv(0) + [("M", epsm(0))] + cvtv(1) + [("M", epsm(1) + kvm(0, 0) + kvm(0, 1))]
        e1 += phik(1, 0) + [("M", kvm(1, 1, (0,)) + zm(1, (0,)) + kvm(1, 0, (0,)))]
        x = phik(1, 1)
        e1 += x[:14] + [f"ds_write_b128 v{vEx}, {V(D(0,1),4)} offset:0"] + x[14:]
        e1 += [("M", kvm(1, 1, (1,)) + zm(1, (1,)) + kvm(1, 0, (1,)))]
        sc = [f"s_lshl1_add_u32 s{sHead}, s{sHP}, s{sHI}\ns_lshl1_add_u32 s96, s{sHead}, s{sMI}",
              f"v_xor_b32 v{vPE}, 2048, v{vEx}\nv_xor_b32 v{vPF}, 8, v{vLF}",
              f"v_xor_b32 v{vPz}, 512, v{vEz}\nv_cmp_lt_u32 vcc, 1, v1",
              f"s_lshr_b32 s{sT0}, s{sRT}, 2\ns_lshl2_add_u32 s{sT1}, s96, s{sT0}"]
        cnt = 2
        for l in e1:
            if isinstance(l, tuple):
                cnt = 0 if not pend else cnt
                pend += l[1]
                continue
            if pend and cnt >= 2:
                x = pend.pop(0)
                a(x)
                cnt = x.count("ds_read")
            a(l)
            cnt += 2 if l.startswith("v_exp") else 1
        a(sc[0])
        self.out(interleave(pend, sc[1:], 0, 1, 1))
        self.stamp(1, 3)
        a(f"ds_write_b128 v{vEx}, {V(D(1,1),4)} offset:1024")
        a(f"v_cndmask_b32 v5, v{Z(1)}, v{Z(0)}, vcc")
        a(f"v_cndmask_b32 v6, v{Z(0)}, v{Z(1)}, vcc")
        a(f"ds_write_b32 v{vEz}, v5 offset:{L_EZ}")
        a(f"ds_write_b32 v{vLF}, v{v1} offset:{LF_P1}")
        a(f"s_lshl_b32 s{sT1}, s{sT1}, 8\ns_and_b32 s{sT0}, s{sRT}, 3")
        a(f"s_lshl2_add_u32 s{sT1}, s{sT0}, s{sT1}\ns_add_u32 s{sT1}, s{sT1}, {WS_ZP}")
        a(f"s_lshl_b32 s96, s96, 14\ns_add_u32 s96, s96, {WS_KVP}")
        a(f"s_lshl_b32 s{sT0}, s{sRT}, 10\ns_add_u32 s{sT0}, s{sT0}, s96")
        a(f"v_lshl_add_u32 v{vZo}, v4, 26, v{vL16}\nv_lshlrev_b32 v{vFo}, 26, v2")
        self.poll_lds(vPF, LF_P1, 1, 3, [f"ds_read_b128 {V(RX,4)}, v{vPE} offset:0",
                                         f"ds_read_b128 {V(RX+4,4)}, v{vPE} offset:1024",
                                         f"ds_read_b32 v5, v{vPz} offset:{L_EZ}"])
        for i in range(8):
            a(f"v_add_f32 v{RX+i}, v{RX+i}, v{D(0,0)+i}")
        for i in range(4):
            a(CVT(PK + i, RX + 2 * i, RX + 2 * i + 1))
        a(CVT(5, 5, 6))
        a(f"buffer_store_dwordx4 {V(PK,4)}, v{vL16}, {S(rWS,4)}, s{sT0} offen sc1")
        a(f"buffer_store_dword v5, v{vZo}, {S(rWS,4)}, s{sT1} offen sc1")
        self.stamp(3)
        self.stamp(3, 3)
        self.stamp(3, 4)
        if "X" in self.o("abl", ""):
            self.dump_stamps()
            a("s_endpgm")
        SEL, vEps = 208, 216
        su = ["v_and_b32 v3, 15, v2", "v_lshlrev_b32 v6, 2, v4", "v_sub_u32 v6, v3, v6",
              "v_mov_b32 v220, 0x3f80", "v_mov_b32 v221, 0x3f800000"]
        su += [f"v_mov_b32 v{SEL+i}, 0" for i in (0, 1, 4, 5)]
        for j in range(2):
            su += [f"v_cmp_eq_u32 vcc, {2*j}, v6", f"v_mov_b32 v{vEps+2*j}, s{sE}",
                   f"v_cndmask_b32 v{SEL+2+j}, v{SEL}, v220, vcc",
                   f"v_cmp_eq_u32 vcc, {2*j+1}, v6", f"v_mov_b32 v{vEps+2*j+1}, s{sE}",
                   f"v_cndmask_b32 v{SEL+2+j}, v{SEL+2+j}, v221, vcc"]
        su += [f"s_mul_i32 s95, s{sHP}, {CSTR}\ns_add_u32 s95, s95, {WS_CNT}",
               f"s_lshl_b32 s{sT1}, s{sHead}, 11\ns_add_u32 s{sT1}, s{sT1}, {WS_ZP}",
               f"v_min_u32 v222, v{vEx}, v{vPE}", "v_mov_b32 v223, 1",
               (f"s_and_b32 s88, s{sRT}, 3\ns_lshl_b32 s88, s88, 12\ns_xor_b32 s96, s96, s88" if self.o("krot", 0) else ""),
               f"s_lshl1_add_u32 s{sT0}, s{sRT}, s{sMI}\ns_lshl_b32 s{sT0}, s{sT0}, 7",
               f"s_add_u32 s{sT0}, s{sT0}, s{sHead}\ns_lshl_b32 s{sT0}, s{sT0}, 10", f"s_add_u32 s{sT0}, s{sT0}, {WS_OF}"]
        vEB, vZc = 224, 228
        su += [f"v_mov_b32 v{vEB+i}, {EPSB}" for i in range(4)] + [f"v_mov_b32 v{vZc+i}, {fbits(2048*EPS)}" for i in range(4)]
        self.out(interleave(grp(1, 4, buf=WQ[0]) + grp(1, 5, buf=WQ[1]), su, 0, 1, 2))
        PQ = lambda mt: 24 + mt * 4
        tmp, PK = 76, 20
        for mt in range(4):
            if mt == self.o("arr1", 1):
                self.stamp(4, 3)
                self.arrive(vM, v1, vFo, LF_C1, 95, 3, sLast, 223)
                self.stamp(4)
                self.stamp(5, 3)
            for nt in range(2):
                s = AQ(mt, nt)
                self.out(self.phi(s, tmp, sL))
                self.out([CVT(PQ(mt) + 2 * nt, s, s + 1), CVT(PQ(mt) + 2 * nt + 1, s + 2, s + 3)])
        self.stamp(6, 3)
        if self.o("cwait", 2) == 2:
            a(f"ds_write_b32 v{vLF}, v{v1} offset:{LF_PQ}")
        if "1" not in self.o("abl", ""):
            self.await_(vM, v1, vFo, LF_G1, 95, 3, sLast, 97, 71, 223)
        self.stamp(5)
        self.stamp(7, 3)
        PF, ZL, ZD, ZF, SD, KV = 132, 40, 48, 8, 56, 64
        DEN = lambda mt: 72 + 4 * mt
        for dt in range(2):
            a(f"buffer_load_dwordx4 {V(ZL+4*dt,4)}, v{vL16}, {S(rWS,4)}, s{sT1} offen offset:{1024*dt} sc1")
        lds_ = []
        for i in range(16):
            l = f"buffer_load_dwordx4 {V(PF+4*i,4)}, v{vL16}, {S(rWS,4)}, s96 offen offset:{(i%4)*1024} sc1"
            lds_.append((f"s_xor_b32 s96, s96, {4096 if i % 8 else 12288}\n" if i and i % 4 == 0 else "") + l)
        RL = self.o("rlead", 7)
        self.out(lds_[:RL])
        a(f"s_mul_i32 s95, s{sRT}, {CSTR}\ns_add_u32 s95, s95, {WS_CNT+16*CSTR}")
        self.stamp(8, 3)
        self.out([MF(ZD, ZL, vOne, V(vZc, 4)), MF(ZD + 4, ZL + 4, vOne, V(vZc, 4))])
        self.stamp(9, 3)
        zr = [[] for _ in range(32)]
        zr[3] = [CVT(ZF + i, ZD + 2 * i, ZD + 2 * i + 1) for i in range(4)]
        zr[4] = [MF(vEps, ZF, vEB)]
        zr[7] = [MF(DEN(mt), ZF, PQ(mt), V(vEps, 4)) for mt in range(4)]
        zr[10] = [f"v_rcp_f32 v{DEN(mt)}, v{DEN(mt)}" for mt in range(2)]
        zr[11] = [f"v_rcp_f32 v{DEN(mt)}, v{DEN(mt)}" for mt in range(2, 4)]
        sq = [f"v_mul_f32 v{DEN(mt)+1}, s{sE}, v{DEN(mt)}" for mt in range(4)]
        for mt in range(4):
            sq += [f"v_fma_f32 v{AQ(mt,0)+i}, v{AQ(mt,0)+i}, v{DEN(mt)}, v{DEN(mt)+1}" for i in range(8)]
            sq += [CVT(PQ(mt) + i, AQ(mt, 0) + 2 * i, AQ(mt, 0) + 2 * i + 1) for i in range(4)]
        for g in range(18):
            zr[12 + g] = sq[3 * g:3 * g + 3]
        for i in range(16):
            if i == self.o("pi", 6) and self.o("pause", 1):
                a(f"ds_write_b32 v{vLF}, v{v1} offset:{LF_PA}")
            a(MF(SD, SEL + 2, PF + 4 * i, "0" if i == 0 else None))
            self.out(zr[2 * i])
            a(MF(SD + 4, SEL, PF + 4 * i, "0" if i == 0 else None))
            if i + RL < 16:
                a(lds_[i + RL])
            self.out(zr[2 * i + 1])
        self.stamp(10, 3)
        for i in range(4):
            a(CVT(PK + i, SD + 2 * i, SD + 2 * i + 1))
        a(f"ds_write_b128 v{vEx}, {V(PK,4)} offset:0")
        a(f"ds_write_b32 v{vLF}, v{v1} offset:{LF_P2}")
        self.poll_lds(vPF, LF_P2, 1, 3, [f"ds_read_b128 {V(KV,4)}, v222 offset:0", f"ds_read_b128 {V(KV+4,4)}, v222 offset:2048"])
        self.stamp(11, 3)
        NUM = lambda mt, et: 100 + (mt * 2 + et) * 4
        OFR = lambda mt: 132 + 4 * mt
        self.out([MF(NUM(mt, et), KV + 4 * et, PQ(mt), "0") for mt in range(4) for et in range(2)])
        for mt in range(4):
            for i in range(4):
                a(CVT(OFR(mt) + i, NUM(mt, 0) + 2 * i, NUM(mt, 0) + 2 * i + 1))
            a(f"buffer_store_dwordx4 {V(OFR(mt),4)}, v{vL16}, {S(rWS,4)}, s{sT0} offen sc1")
            if mt < 3:
                a(f"s_add_u32 s{sT0}, s{sT0}, 32768")
        a(f"ds_write_b32 v{vLF}, v{v1} offset:{LF_OD}")
        self.stamp(6)
        self.stamp(12, 3)
        WB, vSo = 20, 8
        a("v_lshrrev_b32 v3, 2, v2\nv_bfe_u32 v5, v2, 3, 2")
        a("v_lshlrev_b32 v5, 5, v5\nv_lshl_add_u32 v5, v3, 7, v5")
        a(f"v_and_b32 v3, 3, v2\nv_lshl_add_u32 v{WB}, v3, 3, v5")
        for nt in range(4):
            if nt:
                a(f"v_xor_b32 v{WB+nt}, {32*nt}, v{WB}")
            for win in (1, 2):
                a(f"v_add_u32 v{WB+4*win+nt}, {win*61440}, v{WB+nt}")
        sO0, sO1 = 98, 99
        a(f"s_lshl2_add_u32 s88, s{sRT2}, s{sWave}\ns_lshl_b32 s{sO0}, s88, 16\ns_add_u32 s{sO0}, s{sO0}, {WS_OF}")
        a(f"s_add_u32 s{sO1}, s{sO0}, 32768")
        a(f"s_mul_i32 s96, s{sRT2}, {CSTR}\ns_add_u32 s96, s96, {WS_CNT+16*CSTR}")
        vEw, vEr = 9, 13
        a(f"v_sub_u32 v14, v{vEx}, v{vL16}")
        a("v_lshrrev_b32 v3, 3, v2\nv_and_b32 v5, 7, v2\nv_lshlrev_b32 v6, 4, v5")
        a(f"v_lshl_add_u32 v{vSo}, v3, 12, v6\nv_xor_b32 v6, v5, v3\nv_lshlrev_b32 v6, 4, v6")
        a(f"v_lshl_add_u32 v6, v3, 7, v6\nv_add_u32 v{vEr}, v14, v6")
        a("v_lshrrev_b32 v6, 1, v4\nv_xor_b32 v6, v6, v5\nv_lshlrev_b32 v6, 4, v6\nv_and_b32 v3, 15, v2")
        a(f"v_lshl_add_u32 v6, v3, 7, v6\nv_and_b32 v3, 1, v4\nv_lshl_add_u32 v6, v3, 3, v6\nv_add_u32 v{vEw}, v14, v6")
        for nt in range(1, 4):
            a(f"v_xor_b32 v{vEw+nt}, {32*nt}, v{vEw}")
        a(f"s_lshl_b32 s{sT0}, s88, 17\ns_lshl_b32 s{sT1}, s{sCT}, 7\ns_add_u32 s{sT0}, s{sT0}, s{sT1}")
        self.stamp(13, 3)
        if "3" not in self.o("abl", ""):
            self.arrive(vM, v1, vFo, LF_C2, 95, 3, sLast)
        self.stamp(7)
        self.stamp(14, 3)
        if "2" not in self.o("abl", ""):
            self.await_(vM, v1, vFo, LF_G2, 96, 3, sLast, 97, 71)
        self.stamp(8)
        OR, OA, WF = 128, 32, [64, 80]

        def oload(h):
            r = []
            if h and h % 4 == 0:
                r += [f"s_add_u32 s{sO0}, s{sO0}, 4096", f"s_add_u32 s{sO1}, s{sO1}, 4096"]
            for m_ in range(2):
                r.append(f"buffer_load_dwordx4 {V(OR+(h%8)*8+4*m_,4)}, v{vL16}, {S(rWS,4)}, s{sO0+m_} offen offset:{(h%4)*1024} sc1")
            return r

        def wreads(h):
            base = WO_SLOTS[h]
            win = min(base // 61440, 2)
            off = base - win * 61440
            assert off + 2048 < 65536
            return [f"ds_read_b64_tr_b16 {V(WF[h&1]+4*nt+2*t,2)}, v{WB+4*win+nt} offset:{off+2048*t}"
                    for nt in range(4) for t in range(2)]

        LEAD = self.o("lead", 5)
        assert LEAD <= 7
        for h in range(LEAD):
            self.out(oload(h))
        self.poll_lds(vM, LF_W0, 4, 3)
        self.out(wreads(0))
        for h in range(32):
            if h + 1 == 14:
                self.poll_lds(vM, LF_WA, 4, 3)
            if h + 1 == NE:
                self.poll_lds(vM, LF_WB, 4, 3)
            mm = [MF(OA + (m_ * 4 + nt) * 4, WF[h & 1] + 4 * nt, OR + (h % 8) * 8 + 4 * m_, "0" if h == 0 else None)
                  for nt in range(4) for m_ in ((0, 1) if nt % 2 == 0 else (1, 0))]
            rd = wreads(h + 1) if h < 31 else []
            ld = oload(h + LEAD) if h + LEAD < 32 else []
            if h == 1:
                self.stamp(13)
            if h == 16:
                self.stamp(14)
            gaps = [[] for _ in range(8)]
            g0, g1 = divmod(self.o("lg", 37), 10)
            for r_, g_ in zip(rd, range(8)):
                gaps[g_].append(r_)
            if ld:
                gaps[0] += ld[:-2]
                gaps[g0].append(ld[-2])
                gaps[g1].append(ld[-1])
            if h == max(self.o("yh", -1), self.o("ys", -1)):
                gaps[0].append(f"ds_write_b32 v{vLF}, v{v1} offset:{LF_YG}")
            for m_, g_ in zip(mm, gaps):
                a(m_)
                self.out(g_)
        self.stamp(9)
        ST, SO = 64, 128
        for m_ in range(2):
            for nt in range(4):
                s, d = OA + (m_ * 4 + nt) * 4, ST + (m_ * 4 + nt) * 2
                self.out([CVT(d, s, s + 1), CVT(d + 1, s + 2, s + 3), f"ds_write_b64 v{vEw+nt}, {V(d,2)}"])
            for j in range(2):
                a(f"ds_read_b128 {V(SO+(m_*2+j)*4,4)}, v{vEr} offset:{1024*j}")
        for j in range(4):
            a(f"buffer_store_dwordx4 {V(SO+4*j,4)}, v{vSo}, {S(rO,4)}, s{sT0} offen {self.o('fa', 'nt').replace('+', ' ')}")
            if j < 3:
                a(f"s_add_u32 s{sT0}, s{sT0}, {8*4096}")
        self.dump_stamps()
        a.label("L_end")
        a("s_endpgm")

    def helper(self):
        a = self.a
        sched = self.sched
        sW4, sXo, sWo_, sLb = 64, 65, 66, 67
        sT0, sT1, sD, sScr, sUc, sST, sDG, sT2, sPX, sPW, sWB, sUo = range(88, 100)
        vFo, vX, vW, vWo, vL16, vPX, vPW, vU = 7, 8, 9, 10, 11, 12, 13, 14
        UTR, USG = 240, 4352
        sU1, sU2 = 24, 25
        vmq = []

        def emit(l, tag=None):
            n0 = len(a.ins)
            a(l)
            vmq.extend(tag for x in a.ins[n0:] if x.kind == "vmem")

        def wait_tag(tag):
            last = max(i for i, t in enumerate(vmq) if t == tag)
            a(f"s_waitcnt vmcnt({len(vmq)-1-last})")

        def run(lst):
            for l in lst:
                if isinstance(l, list):
                    run(l)
                elif isinstance(l, tuple):
                    if l[0] == "WAIT":
                        wait_tag(l[1])
                    else:
                        emit(l[0], l[1])
                else:
                    emit(l)

        uearly = "U" in sched["p"] and not self.o("uhack", 0)
        explicit = {int(o[1:]) for v in sched.values() for o in v if o[0] == "S"}
        done = set()

        def once(key, lst):
            if key in done:
                return []
            done.add(key)
            return lst

        def setup_ring():
            return once("ring", self.ids1(sT0) + [
                "v_bfe_u32 v4, v0, 3, 5", "v_lshrrev_b32 v5, 1, v4", "v_xor_b32 v6, v5, v2", "v_and_b32 v6, 7, v6",
                "v_lshlrev_b32 v6, 4, v6", f"v_lshl_add_u32 v{vX}, v4, 11, v6",
                "v_and_b32 v5, 4, v5", "v_and_or_b32 v5, v4, 2, v5", "v_xor_b32 v5, v5, v2", "v_and_b32 v5, 7, v5",
                "v_mul_u32_u24 v6, 6144, v4", f"v_lshl_add_u32 v{vW}, v5, 4, v6",
                f"s_lshl_b32 s{sXo}, s{sRT}, 18", f"s_lshl_b32 s{sWo_}, s{sHP}, 7"])

        def setup_touch():
            return once("touch", [
                "v_and_b32 v5, 3, v2", "v_lshlrev_b32 v5, 7, v5", "v_lshrrev_b32 v6, 2, v2",
                f"v_lshl_add_u32 v{vPW}, v6, 11, v5", f"v_lshl_add_u32 v{vPX}, v3, 26, v{vPW}",
                f"s_lshr_b32 s{sT0}, s2, 3", f"s_lshl2_add_u32 s{sT0}, s{sT0}, s{sW4}",
                f"s_and_b32 s{sT1}, s2, 1", bfe(sT2, 2, 1, 2),
                f"s_mul_i32 s{sPW}, s{sT0}, 24", f"s_add_u32 s{sPW}, s{sPW}, s{sT2}", f"s_lshl_b32 s{sPW}, s{sPW}, 9",
                f"s_lshl2_add_u32 s{sPX}, s{sT1}, s{sT2}", f"s_lshl_b32 s{sPX}, s{sPX}, 7", f"s_add_u32 s{sPX}, s{sPX}, s{sT0}",
                f"s_lshl_b32 s{sPX}, s{sPX}, 12",
                f"s_mul_i32 s{sT1}, s{sT1}, 12", f"s_lshl_b32 s{sT1}, 0xfff, s{sT1}",
                f"s_or_b32 vcc_lo, s{sT1}, {0x888888 if self.o('fixw', 1) else 0}", "s_mov_b32 vcc_hi, 0", "v_mov_b32 v5, 0x4000000",
                f"v_cndmask_b32 v{vPW}, v5, v{vPW}, vcc"])

        def setup_u():
            return once("u", [
                f"s_lshr_b32 s{sST}, s2, 4", f"s_and_b32 s{sDG}, s2, 15",
                "v_and_b32 v5, 3, v2", "v_lshlrev_b32 v5, 4, v5", "v_lshrrev_b32 v6, 2, v2", f"v_lshl_add_u32 v{vU}, v6, 11, v5",
                *([f"s_and_b32 s{sU1}, s2, 31", f"s_lshr_b32 s{sT0}, s2, 5", f"s_lshl2_add_u32 s{sU2}, s{sT0}, s{sW4}"]
                  if self.o("umap", 1) else
                  [f"s_lshr_b32 s{sT0}, s{sW4}, 1", f"s_lshl1_add_u32 s{sU1}, s{sST}, s{sT0}",
                   f"s_and_b32 s{sT0}, s{sW4}, 1", f"s_lshl1_add_u32 s{sU2}, s{sDG}, s{sT0}"]),
                f"s_lshl_b32 s{sUo}, s{sU1}, 11", f"s_add_u32 s{sUo}, s{sUo}, s{sU2}", f"s_lshl_b32 s{sUo}, s{sUo}, 6"])

        UP = 4096 if uearly else 1024

        def setup_t():
            return once("t", [
                srd(rWS, pWs, WS_SIZE), f"s_lshl2_add_u32 s{sD}, s2, s{sW4}", f"s_mul_i32 s{sScr}, s{sW4}, {SCR}",
                f"v_lshlrev_b32 v{vFo}, 26, v2",
                "v_and_b32 v4, 1, v2", f"v_mul_u32_u24 v4, {2*UP}, v4", "v_bfe_u32 v5, v2, 2, 2", "v_lshl_add_u32 v4, v5, 6, v4",
                "v_and_b32 v5, 48, v2", "v_and_b32 v6, 2, v2", "v_lshl_add_u32 v5, v6, 2, v5",
                f"s_add_u32 s{sT0}, s{sLb}, {SL(2)}" if uearly else f"s_add_u32 s{sT0}, s{sScr}, {USG}",
                f"v_add3_u32 v17, v4, v5, s{sT0}",
                "v_and_b32 v6, 7, v2", "v_lshlrev_b32 v5, 4, v6", "v_lshl_add_u32 v18, v3, 14, v5"])

        bX, bW, bO, bF, bG = 18, 20, 22, 26, 28

        covered = {int(o[1]) for v in sched.values() for o in v if o[0] == "A"}
        k0 = self.o("spk", 4 * (max(covered) + 1) if covered else 2)

        def setup_sp():
            return once("sp", setup_touch() + kwait() + [
                f"s_add_u32 s{bX}, s{pX}, s{sPX}", f"s_addc_u32 s{bX+1}, s{pX+1}, 0",
                f"s_lshr_b32 s{sT0}, s2, 3", f"s_and_b32 s{sT1}, s2, 1", f"s_lshl1_add_u32 s{sT0}, s{sT0}, s{sT1}",
                f"s_add_u32 s{sT0}, s{sT0}, {64*k0}", f"s_mul_i32 s{sT0}, s{sT0}, 12", bfe(sT1, 2, 1, 2),
                f"s_add_u32 s{sT0}, s{sT0}, s{sT1}", f"s_lshl2_add_u32 s{sT0}, s{sT0}, s{sW4}", f"s_lshl_b32 s{sT0}, s{sT0}, 7",
                f"s_add_u32 s{bW}, s{pW}, s{sT0}", f"s_addc_u32 s{bW+1}, s{pW+1}, 0",
                f"s_lshr_b32 s{sT0}, s2, 3", f"s_andn2_b32 s{sT2}, 1, s2", f"s_lshl1_add_u32 s{sT0}, s{sT0}, s{sT2}",
                f"s_add_u32 s{sT0}, s{sT0}, {64*k0}", f"s_mul_i32 s{sT0}, s{sT0}, 12", f"s_add_u32 s{sT0}, s{sT0}, s{sT1}",
                f"s_min_u32 s{sT2}, s{sW4}, 2", f"s_lshl2_add_u32 s{sT0}, s{sT2}, s{sT0}", f"s_lshl_b32 s{sT0}, s{sT0}, 9",
                f"s_add_u32 s{bF}, s{pW}, s{sT0}", f"s_addc_u32 s{bF+1}, s{pW+1}, 0",
                f"s_lshl2_add_u32 s{sT0}, s2, s{sW4}", f"s_lshl_b32 s{sT0}, s{sT0}, 11",
                f"s_add_u32 s{bO}, s{pWo}, s{sT0}", f"s_addc_u32 s{bO+1}, s{pWo+1}, 0",
                f"s_lshr_b32 s{sT0}, s2, 3", f"s_lshl2_add_u32 s{sT0}, s{sT0}, s{sW4}", f"s_and_b32 s{sT2}, s2, 1",
                f"s_lshl4_add_u32 s{sT0}, s{sT0}, s{sT2}", f"s_lshl_b32 s{sT0}, s{sT0}, 10",
                f"s_add_u32 s{bG}, s{pWo}, s{sT0}", f"s_addc_u32 s{bG+1}, s{pWo+1}, 0"])
        spq = []
        for k in range(k0, 16):
            if k > k0 and (k - k0) % 2 == 0:
                spq.append(("adv", f"s_add_u32 s{bW}, s{bW}, {128*6144}\ns_addc_u32 s{bW+1}, s{bW+1}, 0\n"))
            spq += [f"s_load_dwordx2 s[16:17], {S(bW,2)}, {((k-k0)&1)*64*6144+sec*2048+60}" for sec in range(3)]
            spq += [f"s_load_dwordx2 s[16:17], {S(bX,2)}, {r*2048+k*128+60}" for r in range(2)]
            for kk in ([k - 1] if k > k0 else []) + ([k] if k == 15 else []):
                if self.o("fixw", 1):
                    if kk > k0 and (kk - k0) % 2 == 0:
                        spq.append(("adv", f"s_add_u32 s{bF}, s{bF}, {128*6144}\ns_addc_u32 s{bF+1}, s{bF+1}, 0\n"))
                    spq.append(f"s_load_dwordx2 s[16:17], {S(bF,2)}, {((kk-k0)&1)*64*6144+384+60}")
        if not any("W" in v for v in sched.values()):
            spq += [f"s_load_dwordx2 s[16:17], {S(bO,2)}, {ln*128+60}" for ln in range(16) if not (self.o("fixo", 0) and ln % 8 == 3)]
            if self.o("fixo", 0):
                assert self.o("omap", 1) == 1
                spq += [f"s_load_dwordx2 s[16:17], {S(bG,2)}, {r*2048+384+60}" for r in range(8)]

        def sp(n):
            r = []
            pre = ""
            while spq and len(r) < n:
                x = spq.pop(0)
                if isinstance(x, tuple):
                    pre += x[1]
                else:
                    r.append(pre + x)
                    pre = ""
            return r

        def kwait():
            return once("k", ["s_waitcnt lgkmcnt(0)", srd(rX, pX, 4 << 20), srd(rW, pW, 6 << 20)])

        def stage(k):
            sl = SL(k % 3)
            r = []
            for j in range(4):
                r.append([f"s_add_u32 m0, s{sLb}, {sl+j*4096}", f"s_add_u32 s{sT0}, s{sXo}, {k*128+j*32*2048}",
                          (f"buffer_load_dwordx4 v{vX}, {S(rX,4)}, s{sT0} offen lds", ("st", k))])
            for sec in range(3):
                for j in range(2):
                    r.append([f"s_add_u32 m0, s{sLb}, {sl+16384+sec*8192+j*4096}",
                              f"s_add_u32 s{sT0}, s{sWo_}, {(k*64+j*32)*6144+sec*2048}",
                              (f"buffer_load_dwordx4 v{vW}, {S(rW,4)}, s{sT0} offen lds", ("st", k))])
            return r

        def tok(o):
            if "U" in self.o("abl", "") and (o == "U" or o[0] == "t"):
                return []
            if "U" in self.o("abl", "") and o == "T":
                return setup_u() + [x for x in tok0(o) if not isinstance(x, tuple) and "dpp" not in x and "ds_read" not in x]
            return tok0(o)

        def tok0(o):
            if o[0] == "A":
                q = int(o[1])
                return setup_touch() + kwait() + [
                    f"s_add_u32 s{sT0}, s{sPX}, {q*512}", f"buffer_load_dword v16, v{vPX}, {S(rX,4)}, s{sT0} offen",
                    f"s_add_u32 s{sT0}, s{sPW}, {q*256*6144}", f"buffer_load_dword v16, v{vPW}, {S(rW,4)}, s{sT0} offen"]
            if o[0] == "S":
                return setup_ring() + kwait() + stage(int(o[1:]))
            if o[0] == "x":
                return setup_sp() + sp(int(o[1:]))
            if o == "U":
                r = kwait() + setup_u() + [srd(rU, pU, 4 << 20)]
                for j in range(4):
                    r += [f"s_add_u32 m0, s{sLb}, {SL(2)+j*4096}" if uearly else f"s_add_u32 m0, s{sScr}, {USG+j*1024}",
                          f"s_add_u32 s{sT0}, s{sUo}, {j*16*2048}",
                          (f"buffer_load_dwordx4 v{vU}, {S(rU,4)}, s{sT0} offen lds", "ut")]
                return r
            if o == "T":
                r = setup_t() + [("WAIT", "ut")]
                r += [f"ds_read_b64_tr_b16 {V(UTR+4*k+2*t,2)}, v17 offset:{(k>>1)*UP+(k&1)*512+256*t}" for k in range(4) for t in range(2)]
                r += [f"s_mul_i32 s{sT2}, s{sD}, {CSTR}", f"s_add_u32 s{sT2}, s{sT2}, {WS_CNT}",
                      f"s_cmp_lt_u32 s{sD}, 48\ns_cselect_b32 s{sT2}, s{sT2}, {WS_SIZE}", "v_mov_b32 v4, 0",
                      f"buffer_store_dword v4, v{vFo}, {S(rWS,4)}, s{sT2} offen sc1",
                      f"s_lshl_b32 s{sUo}, s{sU2}, 10", f"s_add_u32 s{sUo}, s{sUo}, s{sU1}", f"s_lshl_b32 s{sUo}, s{sUo}, 7"]
                return r + self.quad_t(UTR, UTR - 16)
            if o[0] == "t":
                k = int(o[1])
                return [f"s_add_u32 s{sT2}, s{sUo}, {WS_UT+k*4096}",
                        f"buffer_store_dwordx4 {V(UTR+4*k,4)}, v18, {S(rWS,4)}, s{sT2} offen sc1"]
            if o == "W":
                return ["v_and_b32 v4, 15, v2", "v_lshlrev_b32 v4, 7, v4", f"s_lshl_b32 s{sT1}, s{sD}, 11",
                        f"buffer_load_dword v16, v4, {S(rWo,4)}, s{sT1} offen"]
            raise ValueError(o)

        a.label("L_helper")
        a(f"s_sub_u32 s{sW4}, s{sWave}, 4\ns_lshl_b32 s{sLb}, s{sW4}, 10\nv_lshrrev_b32 v3, 3, v2")
        flat = sched["p"] + sched.get(0, []) + ["S2"]
        assert "W" not in sched["p"]
        assert self.o("uhack", 0) or (flat.index("T") < flat.index("S2") if uearly else "U" not in flat)
        if self.o("uhack", 0):
            a(f"s_mul_i32 s{sScr}, s{sW4}, {SCR}")
        for o in sched["p"]:
            run(tok(o))
        run(setup_ring() + setup_touch() + setup_u() + setup_t() + setup_sp())
        self.prof_init()
        self.stamp(9)
        a(srd(rO, pOut, 8 << 20))
        a(srd(rWo, pWo, 2 << 20))
        a(f"v_lshlrev_b32 v{vL16}, 4, v2")

        vKA, vUA, vMy, vOob = 30, 31, 27, 26
        WL, BK, BD, CA = 40, 72, 88, 96
        AS, A32, BS, BH, GT = [128, 148], 144, [164, 196], 228, 244
        ad = ["\n".join(self.ids2(sWB)), f"s_lshl_b32 s{sWB}, s{sCT}, 7",
              f"s_mul_i32 s{sUc}, s{sW4}, {UC}", f"s_add_u32 s{sUc}, s{sUc}, {L_UC}",
              f"v_add_u32 v20, s{sScr}, v{vL16}", f"v_lshl_add_u32 v19, v2, 3, s{sScr}",
              "v_min_u32 v32, 1, v2", "v_lshl_add_u32 v32, v32, 2, v19", "v_add_u32 v32, 1024, v32",
              f"v_mov_b32 v33, {TB+2044}", f"v_add_u32 v33, s{sScr}, v33",
              "v_and_b32 v28, 15, v2", "v_lshrrev_b32 v29, 4, v2", "v_lshlrev_b32 v34, 2, v29", "v_sub_u32 v34, v28, v34",
              f"v_lshl_add_u32 v35, v34, 3, s{sScr}", f"v_add_u32 v35, {TB+2048+4-24}, v35"]
        nad0 = len(ad)
        ad += ["v_and_b32 v21, 6, v3", "v_xor_b32 v21, v21, v2", "v_and_b32 v21, 7, v21", "v_lshlrev_b32 v21, 4, v21",
               f"v_lshl_add_u32 v{vWo}, v3, 11, v21",
               "v_mov_b32 v21, 1024", f"v_add_u32 v21, s{sScr}, v21", f"v_sub_u32 v22, v21, v{vL16}",
               "v_lshlrev_b32 v23, 3, v2", "v_sub_u32 v21, v21, v23",
               "v_min_u32 v23, 19, v2", "v_lshrrev_b32 v24, 2, v23", "v_and_b32 v25, 3, v23",
               f"v_mul_u32_u24 v23, {RCS}, v24", "v_lshl_add_u32 v23, v25, 4, v23", f"v_add_u32 v23, s{sScr}, v23",
               "v_lshlrev_b32 v36, 4, v24", "v_lshlrev_b64 v[36:37], v36, -1",
               "v_add_u32 v25, 1, v25", "v_bfe_i32 v38, v25, 2, 1", "v_and_b32 v36, v36, v38", "v_and_b32 v37, v37, v38",
               "v_and_b32 v15, 3, v2", f"v_mul_u32_u24 v{vKA}, {RCS}, v15", "v_and_b32 v15, 48, v2",
               f"v_add3_u32 v{vKA}, v{vKA}, v15, s{sScr}", f"v_lshl_add_u32 v{vUA}, v28, 5, v15", f"v_add_u32 v{vUA}, s{sUc}, v{vUA}",
               "v_and_b32 v15, 12, v2", "v_lshlrev_b32 v15, 1, v15", "v_sub_u32 v15, 24, v15", f"v_add_u32 v{vKA}, v{vKA}, v15",
               f"v_mov_b32 v{vOob}, 0x4000000", f"v_mov_b32 v15, {L_MISC-16}", f"v_lshl_add_u32 v{vMy}, v1, 2, v15",
               "v_mov_b32 v15, 1", "v_mov_b32 v25, 0", "v_lshlrev_b32 v29, 3, v29"]
        for b, w in enumerate((3, 4)):
            ad += [f"v_mov_b32 v39, {((1 << (2*w+1)) - 1) << (8-w)}", "v_lshlrev_b32 v39, v28, v39", "v_lshrrev_b32 v39, v29, v39"]
            for st_ in range(4):
                for j in range(4):
                    d = BD + 4 * b + j
                    ad.append([f"v_bfe_u32 v{d}, v39, {2*j}, 2", f"v_mul_u32_u24 v{d}, 0x8001, v{d}",
                               f"v_and_b32 v{d}, 0x10001, v{d}", f"v_mul_u32_u24 v{d}, 0x3f80, v{d}"][st_])
        P0, K0, X1, Y1, X2, Y2, HD, RB = 128, 132, 136, 140, 144, 228, 146, 164
        exr = [f"ds_read_b128 {V(P0,4)}, v20 offset:{TB-16}", f"ds_read_b128 {V(K0,4)}, v20 offset:{TB}",
               f"ds_read2_b32 {V(X1,2)}, v32 offset0:{(TB-12)//4} offset1:{(TB-8)//4}", f"ds_read_b32 v{X1+2}, v32 offset:{TB-4}",
               f"ds_read_b64 {V(Y1,2)}, v19 offset:{TB+1024}", f"ds_read_b32 v{Y1+2}, v19 offset:{TB+1024+8}",
               f"ds_read2_b32 {V(X2,2)}, v32 offset0:{(TB+512-8)//4} offset1:{(TB+512-4)//4}",
               f"ds_read_b64 {V(Y2,2)}, v19 offset:{TB+1536}", f"ds_read_b32 v{Y2+2}, v19 offset:{TB+1536+8}",
               f"ds_read2_b32 {V(HD,2)}, v33 offset0:0 offset1:1"]
        exr += [f"ds_read2_b32 {V(RB+8*kp+2*r,2)}, v35 offset0:{32*kp+2*(3-r)} offset1:{32*kp+2*(3-r)+1}"
                for kp in range(4) for r in range(4)]
        ex = [CVT(BK + 4 * kp + r, RB + 8 * kp + 2 * r, RB + 8 * kp + 2 * r + 1) for kp in range(4) for r in range(4)]
        for r in range(4):
            ex.append(f"v_cmp_gt_i32 vcc, {r}, v34\ns_nop 1\nv_cndmask_b32 v{BK+r}, v{BK+r}, v25, vcc")
        HO = 148
        ex += [f"v_cmp_eq_u32 vcc, 0, v24\n{CVT(HO+2, HD+1, HD+1)}\nv_and_b32 v{HO}, v{HO+2}, v36\n"
               f"v_cndmask_b32 v{HD}, v{HD+1}, v{HD}, vcc",
               "v_cmp_eq_u32 vcc, 0, v2", CVT(HO + 3, HD + 1, HD), f"v_and_b32 v{HO+1}, v{HO+2}, v37",
               f"v_and_b32 v{HO+2}, v{HO+2}, v38", f"v_and_b32 v{HO+3}, v{HO+3}, v38"]
        ex += [f"v_cndmask_b32 v{P0+i}, v{P0+i}, v25, vcc" for i in (1, 2, 3)]
        exw = [f"ds_write_b128 v23, {V(HO,4)}"]
        q0 = [P0 + 1, P0 + 2, P0 + 3, K0, K0 + 1, K0 + 2, K0 + 3]
        q1 = [X1, X1 + 1, X1 + 2, Y1, Y1, Y1 + 1, Y1 + 2]
        q2 = [X2, X2 + 1] + [Y2] * 4 + [Y2 + 1] * 3 + [Y2 + 2] * 2
        for dl in range(4):
            d, o = BS[1] + 8 * dl, dl * RCS
            for dd, q, n in ((d, q0, 4), (d + 2, q1, 4), (d + 4, q2, 8)):
                rv = q[dl:dl + n][::-1]
                ex += [CVT(dd + i, rv[2 * i], rv[2 * i + 1]) for i in range(n // 2)]
            exw += [f"ds_write_b64 v21, {V(d,2)} offset:{o+2104-1024}", f"ds_write_b64 v21, {V(d+2,2)} offset:{o+1592-1024}",
                    f"ds_write_b128 v22, {V(d+4,4)} offset:{o+1072-1024}"]
        assert self.events()[0] < 12
        side = [[] for _ in range(16)]
        side[2] = ad[:nad0]
        rest = ad[nad0:]
        for k in range(3, 12):
            side[k] = interleave(rest[(k - 3) * 9:(k - 2) * 9], exr[(k - 3) * 3:(k - 2) * 3], 0, 3, 1)
        assert len(rest) <= 81 and len(exr) <= 27
        side[13], side[14], side[15] = ex[:29], ex[29:45], ex[45:]

        uc = [[f"s_lshl_b32 s{sT1}, s{sD}, 12", f"s_add_u32 s{sT1}, s{sT1}, {WS_UT}", f"s_mov_b32 m0, s{sUc}",
               (f"buffer_load_dwordx4 v{vOob}, {S(rWS,4)}, 0 offen lds", "uc"), f"s_add_u32 m0, s{sUc}, 480",
               f"s_lshl_b32 s{sPX}, s{sW4}, 16", f"s_add_u32 s{sPX}, s{sPX}, s{sWB}",
               f"s_lshl_b32 s{sPW}, s{sW4}, 14", f"s_add_u32 s{sPW}, s{sPW}, s{sWB}", f"v_mov_b32 v14, {L_MISC}"]]
        uc += [(f"buffer_load_dwordx4 v{vL16}, {S(rWS,4)}, s{sT1} offen offset:{1024*k} sc1 lds", "uc") for k in range(4)]
        wlate = [f"s_add_u32 s{sT0}, s{sPX}, {(NE+4*j)*65536+pc*16384}\n"
                 f"buffer_load_dwordx4 {V(WL+16*j+4*pc,4)}, v{vWo}, {S(rWo,4)}, s{sT0} offen"
                 for j in range(2) for pc in range(4)]

        def wo_dma(h):
            return (f"s_add_u32 m0, s{sLb}, {WO_SLOTS[h]}\ns_add_u32 s{sT0}, s{sPW}, {h*65536}\n"
                    f"buffer_load_dwordx4 v{vWo}, {S(rWo,4)}, s{sT0} offen lds")

        for k in range(16):
            wait_tag(("st", k))
            a("s_barrier")
            if k == 0:
                self.stamp(1)
            if k < 14:
                self.stamp(k + 1, 2)
                sd = list(side[k])
                for o in sched.get(k, []):
                    if o == "T" and not uearly and not self.o("uhack", 0):
                        sd = tok(o) + sd
                    else:
                        run(tok(o))
                if k + 2 not in explicit:
                    st = stage(k + 2)
                    if k < self.o("spe", 12):
                        n = self.o("spr", 6)
                        x = sp(n)
                        st = [y for i, d in enumerate(st) for y in [d] + x[i * n // 10:(i + 1) * n // 10]]
                    run(interleave(st, sd, 0, 1, -(-len(sd) // len(st))))
                else:
                    run(sp(self.o("spr", 6)) + sd)
            elif k == 14:
                self.stamp(7)
                run(interleave(uc + [wo_dma(h) for h in range(4)], side[k], 0, 1, 2))
            else:
                run(interleave([(wo_dma(h), "e1") for h in range(4, 14)], side[k], 0, 1, 2))
                self.stamp(8)
        if [x for x in spq if not isinstance(x, tuple)]:
            print("note: scalar prefetches left:", len(spq))
        a("s_barrier")
        self.stamp(2)
        e2 = [wo_dma(h) for h in range(14, NE)]
        em = self.o("em", 0)
        if em == 0:
            run(interleave(wlate, exw, 0, 1, 2))
            paced = e2
        else:
            run(e2 + exw)
            paced = wlate
        wait_tag("e1")
        self.lds_inc(14, 15, LF_W0)
        def creads(p0):
            s = p0 & 1
            ra = lambda d, p: [f"ds_read_b64 {V(d+2*t,2)}, v{vKA} offset:{2048-64*p+8*t}" for t in range(2)]
            rb = lambda d, off: [f"ds_read_b128 {V(d,4)}, v{vUA} offset:{off}"]
            r = []
            for i in range(8):
                x = ra(AS[s] + 4 * i, 8 * i + p0) if i < 4 else (ra(A32, 32) if i == 4 and p0 == 0 else [])
                y = rb(BS[s] + 4 * i, 512 * i + 448 - 64 * p0)
                r += (x + y) if i == 0 else (y + x)
                if p0 == 0 and i < 4:
                    r += rb(BH + 4 * i, 512 * i + 448 - 16)
            return r

        def cmf(p0):
            s = p0 & 1
            m = []
            for n in range(8):
                for p1 in range(min(n, 3) + 1):
                    m.append(MF(CA + 4 * n, AS[s] + 4 * p1, BS[s] + 4 * (n - p1), "0" if p0 == 0 and p1 == 0 else None))
                if p0 == 0 and n >= 4:
                    m.append(MF(CA + 4 * n, A32, BS[0] + 4 * (n - 4)))
                if p0 == 1 and n >= 4:
                    m += [MF(CA + 4 * n, BH + 4 * (n - 4 - kp), BK + 4 * kp) for kp in range(n - 3)]
            if p0 == 0:
                o = []
                for e in range(4):
                    o += [MF(GT, BS[0] + 4 * e, BD, "0"), MF(GT + 4, BH + 4 * e, BD + 4, "0")]
                    blk = m[7 * e:7 * e + 7]
                    blk[4] += "".join("\n" + CVT(BH + 4 * e + r, GT + r, GT + 4 + r) for r in (0, 1))
                    blk[5] += "".join("\n" + CVT(BH + 4 * e + r, GT + r, GT + 4 + r) for r in (2, 3))
                    o += blk
                m = o + m[28:]
            return m

        self.out(creads(0))
        cw = self.o("cwait", 2)
        if cw:
            self.poll_lds(vMy, LF_P1 if cw == 1 else LF_PQ, 1, 5)
        self.stamp(3)
        pause, dper = self.o("pause", 1), self.o("dper", 2)
        if "C" in self.o("abl", ""):
            self.out(paced)
            paced = []
        for p0 in range(8 if "C" not in self.o("abl", "") else 0):
            fill = creads(p0 + 1) if p0 < 7 else []
            d, paced = paced[:dper], paced[dper:]
            if d:
                fill = interleave(fill, d, 2, len(fill) // len(d), 1)
            mm = cmf(p0)
            if pause and p0 < 7:
                fill += [""] * (len(mm) - 5 - len(fill))
                fill.append(f"ds_read2_b32 v[4:5], v{vMy} offset0:{LF_PA//4} offset1:{LF_OD//4}")
            self.stamp(1 + p0, 4)
            self.out(interleave(mm, fill, 0, 1, 1))
            if p0 == 7:
                self.stamp(9, 4)
            if pause and p0 < 7:
                l = self.lab("cp")
                a("v_cmp_le_u32 vcc, v4, v5")
                a(f"s_cbranch_vccnz {l}")
                self.poll_lds(vMy, LF_OD, 1, 5)
                a.label(l)
        assert not paced
        self.stamp(4)
        YS = 128
        a("s_waitcnt vmcnt(0)")
        self.lds_inc(14, 15, LF_WA)
        ylay = self.o("ylay", 0)
        if ylay:
            a(f"s_lshl_b32 s{sT1}, s{sD}, 7\ns_add_u32 s{sT1}, s{sT1}, {WS_YT}")
            a("v_and_b32 v6, 7, v2\nv_lshlrev_b32 v6, 4, v6\nv_lshl_add_u32 v6, v3, 17, v6")
        else:
            a(f"s_lshl_b32 s{sT1}, s{sD}, 12\ns_add_u32 s{sT1}, s{sT1}, {WS_YT}")
        for k in range(4):
            for i in range(4):
                a(CVT(YS + 4 * k + i, CA + 8 * k + 2 * i, CA + 8 * k + 2 * i + 1))
            if ylay:
                a(f"buffer_store_dwordx4 {V(YS+4*k,4)}, v6, {S(rWS,4)}, s{sT1} offen sc1")
                a(f"s_add_u32 s{sT1}, s{sT1}, {1<<20}" if k < 3 else "")
            else:
                a(f"buffer_store_dwordx4 {V(YS+4*k,4)}, v{vL16}, {S(rWS,4)}, s{sT1} offen offset:{1024*k} sc1")
        for j in range(8):
            a(f"ds_write_b128 v20, {V(WL+4*j,4)} offset:{1024*j}")
        self.lds_inc(14, 15, LF_WB)
        if "Y" in self.o("abl", ""):
            a("s_endpgm")
        abl = self.o("abl", "")
        a(f"s_mul_i32 s{sT2}, s{sST}, {CSTR}\ns_add_u32 s{sT2}, s{sT2}, {WS_CNT+32*CSTR}")
        self.arrive(14, 15, vFo, LF_CY, sT2, 4, 70)
        self.stamp(5)
        vYi, vYr, vYo = 32, 34, 35
        a("v_lshrrev_b32 v4, 2, v2\nv_and_b32 v5, 3, v2\nv_lshlrev_b32 v6, 4, v5")
        a(f"v_lshl_add_u32 v{vYi}, v4, {7 if ylay else 12}, v6")
        a("v_and_b32 v6, 1, v2\nv_mul_u32_u24 v6, 2112, v6\nv_and_b32 v37, 3, v4\nv_lshl_add_u32 v6, v37, 6, v6")
        a("v_and_b32 v37, 48, v2\nv_and_b32 v38, 2, v2\nv_lshl_add_u32 v37, v38, 2, v37")
        a(f"v_add3_u32 v{vYr}, v6, v37, s{sUc}")
        a("v_and_b32 v6, 8, v2\nv_and_b32 v37, 48, v2\nv_lshl_add_u32 v6, v6, 5, v37")
        a(f"v_and_b32 v38, 7, v2\nv_lshlrev_b32 v38, 4, v38\nv_lshl_add_u32 v{vYo}, v6, 12, v38")
        if ylay:
            a(f"s_lshr_b32 s{sT1}, s{sW4}, 1\ns_lshl1_add_u32 s{sUo}, s{sST}, s{sT1}\ns_lshl4_add_u32 s{sUo}, s{sUo}, s{sDG}")
            a(f"s_lshl_b32 s{sUo}, s{sUo}, 7\ns_and_b32 s{sT1}, s{sW4}, 1\ns_add_u32 s{sUo}, s{sUo}, s{sT1}")
        else:
            a(f"s_lshl2_add_u32 s{sUo}, s{sST}, s{sW4}\ns_lshl_b32 s{sT1}, s{sDG}, 12\ns_add_u32 s{sUo}, s{sUo}, s{sT1}")
        a(f"s_lshl_b32 s{sUo}, s{sUo}, 6")
        a(f"s_mul_i32 s{sT1}, s{sDG}, {CSTR}\ns_add_u32 s{sT1}, s{sT1}, {WS_CNT+32*CSTR}")
        self.await_(14, 15, vFo, LF_GY, sT1, 4, 70, 96, 71)
        self.stamp(6)
        if self.o("yh", -1) >= 0:
            self.poll_lds(vMy, LF_YG, 1, 4)
        YT_ = 56
        if "y" in abl:
            a("s_endpgm")
        for k in range(4):
            a(f"s_add_u32 m0, s{sUc}, {k*1056}\ns_add_u32 s{sT1}, s{sUo}, {WS_YT+k*(2048 if ylay else 65536)}")
            if "l" not in abl:
                a(f"buffer_load_dwordx4 v{vYi}, {S(rWS,4)}, s{sT1} offen sc1 lds")
        a(f"s_lshr_b32 s{sT0}, s{sST}, 2\ns_lshl3_add_u32 s{sT0}, s{sT0}, s{sW4}\ns_and_b32 s{sT1}, s{sST}, 3")
        a(f"s_lshl4_add_u32 s{sT0}, s{sT0}, s{sT1}\ns_lshl_b32 s{sT0}, s{sT0}, 7\ns_add_u32 s{sT0}, s{sT0}, s{sDG}")
        a(f"s_lshl_b32 s{sT0}, s{sT0}, 7")
        a("s_waitcnt vmcnt(0)")
        if "w" in abl:
            a("s_endpgm")
        for k in range(4):
            for t in range(2):
                a(f"ds_read_b64_tr_b16 {V(YT_+4*k+2*t,2)}, v{vYr} offset:{(k>>1)*1056+(k&1)*512+256*t}")
        self.out(self.quad_t(YT_, YT_ + 16))
        if "z" in abl:
            a("s_endpgm")
        if self.o("ys", -1) >= 0:
            self.poll_lds(vMy, LF_YG, 1, 4)
        for k in range(4):
            a(f"s_add_u32 s{sT1}, s{sT0}, {k*4096}")
            a(f"buffer_store_dwordx4 {V(YT_+4*k,4)}, v{vYo}, {S(rO,4)}, s{sT1} offen offset:2048 {self.o('fy', 'nt').replace('+', ' ')}")
        self.dump_stamps()
        a("s_endpgm")

    def build(self):
        self.entry()
        self.helper()
        self.compute()
        self.a.finish()
        body = self.a.text()
        head = open("concat_heads__linear_attn_block__ssm_conv_s4__prompt.s.ref").read()
        cm = []
        for l in head.split("\n"):
            if l.startswith("; @launch"):
                cm.append(f"; @launch grid=(256,1,1) block=(512,1,1) lds={LDS_BYTES}")
                break
            cm.append(l)
        txt = "\n".join(cm) + "\n"
        txt += f""".amdgcn_target "amdgcn-amd-amdhsa--gfx950"
.text
.globl {NAME}
.p2align 8
.type {NAME},@function
{NAME}:
"""
        txt += body.replace("CODE_LEFT", str(self.opt.get("code_left", 0)))
        txt += f""".section .rodata,"a"
.p2align 6
.amdhsa_kernel {NAME}
  .amdhsa_next_free_vgpr 256
  .amdhsa_next_free_sgpr 102
  .amdhsa_accum_offset 256
  .amdhsa_group_segment_fixed_size 0
  .amdhsa_kernarg_size 120
  .amdhsa_user_sgpr_count 2
  .amdhsa_user_sgpr_kernarg_segment_ptr 1
  .amdhsa_system_sgpr_workgroup_id_x 1
.end_amdhsa_kernel
"""
        return txt


def code_size(txt):
    import subprocess, tempfile
    d = tempfile.mkdtemp()
    open(d + "/k.s", "w").write(txt)
    r = subprocess.run(["clang", "-x", "assembler", "-target", "amdgcn-amd-amdhsa", "-mcpu=gfx950",
                        "-c", d + "/k.s", "-o", d + "/k.o"], capture_output=True, text=True)
    if r.returncode:
        print(r.stderr[:3000])
        raise SystemExit("assemble failed")
    o = subprocess.run(["llvm-objdump", "-h", d + "/k.o"], capture_output=True, text=True).stdout
    for l in o.split("\n"):
        p = l.split()
        if len(p) > 2 and p[1] == ".text":
            return int(p[2], 16)


def make(prof=0, **opt):
    t = Gen(prof, code_left=1024, **opt).build()
    n = code_size(t)
    assert n < 32768 + 128
    return Gen(prof, code_left=n - 128, **opt).build(), n


if __name__ == "__main__":
    t, n = make(0)
    out = sys.argv[1] if len(sys.argv) > 1 else "concat_heads__linear_attn_block__ssm_conv_s4__prompt.s"
    open(out, "w").write(t)
    print("wrote", out, "code bytes", n, "lines", t.count("\n"))
```

```python
import re


def V(n, c=1):
    return f"v{n}" if c == 1 else f"v[{n}:{n + c - 1}]"


def A(n, c=1):
    return f"a{n}" if c == 1 else f"a[{n}:{n + c - 1}]"


def S(n, c=1):
    return f"s{n}" if c == 1 else f"s[{n}:{n + c - 1}]"


_REG = re.compile(r"(?<![\w.])([vas])(?:(\d+)|\[(\d+):(\d+)\])(?![\w])")


def regs_of(tok):
    out = set()
    for m in _REG.finditer(tok):
        k = m.group(1)
        if m.group(2) is not None:
            out.add((k, int(m.group(2))))
        else:
            for i in range(int(m.group(3)), int(m.group(4)) + 1):
                out.add((k, i))
    t = tok.strip()
    if re.search(r"\bvcc(_lo|_hi)?\b", t):
        out.add(("x", "vcc"))
    if re.search(r"\bexec\b", t):
        out.add(("x", "exec"))
    if re.search(r"\bm0\b", t):
        out.add(("x", "m0"))
    return out


TRANS = ("v_exp_f32", "v_log_f32", "v_rcp_f32", "v_rsq_f32", "v_sqrt_f32", "v_sin_f32", "v_cos_f32",
         "v_rcp_iflag_f32")


class Ins:
    __slots__ = ("text", "op", "defs", "uses", "kind", "label", "target", "passes", "srcc", "srcab",
                 "wait_vm", "wait_lgkm", "nops", "wide_store", "data", "ops", "isdpp", "dma")

    def __init__(self, text):
        self.text = text
        self.label = None
        self.target = None
        self.defs = set()
        self.uses = set()
        self.kind = "other"
        self.passes = 0
        self.srcc = set()
        self.srcab = set()
        self.wait_vm = None
        self.wait_lgkm = None
        self.nops = 0
        self.wide_store = False
        self.data = set()
        self.isdpp = False
        self.dma = False
        t = text.split(";")[0].strip()
        if not t:
            self.kind = "comment"
            self.op = ""
            return
        if t.endswith(":"):
            self.kind = "label"
            self.label = t[:-1]
            self.op = ""
            return
        if t.startswith("."):
            self.kind = "directive"
            self.op = t
            return
        sp = t.split(None, 1)
        op = sp[0]
        self.op = op
        rest = sp[1] if len(sp) > 1 else ""
        ops = [o.strip() for o in rest.split(",")] if rest else []
        self.ops = ops
        R = [regs_of(o) for o in ops]
        allr = set().union(*R) if R else set()
        base = re.sub(r"_e(32|64)$|_dpp$|_sdwa$", "", op)
        if op.startswith("v_mfma"):
            self.kind = "mfma"
            self.defs = R[0]
            self.srcab = R[1] | R[2]
            self.srcc = R[3]
            self.uses = self.srcab | self.srcc
            if "32x32x16" in op:
                self.passes = 8
            elif "16x16x32" in op:
                self.passes = 4
            else:
                raise ValueError("unknown mfma " + op)
        elif op.startswith("v_"):
            self.kind = "valu"
            self.isdpp = ("row_" in rest) or ("quad_perm" in rest) or ("wave_" in rest) or op.endswith("_dpp")
            if base.startswith("v_cmp"):
                self.defs = set(R[0])
                self.uses = set().union(*R[1:])
                if base.startswith("v_cmpx"):
                    self.defs.add(("x", "exec"))
            elif base in ("v_add_co_u32", "v_sub_co_u32", "v_addc_co_u32", "v_subb_co_u32"):
                self.defs = R[0] | R[1]
                self.uses = set().union(*R[2:])
            elif base.startswith("v_permlane") and "swap" in base:
                self.defs = R[0] | R[1]
                self.uses = R[0] | R[1]
            elif base == "v_nop":
                pass
            else:
                self.defs = set(R[0])
                self.uses = set().union(*R[1:]) if len(R) > 1 else set()
                if base in ("v_fmac_f32", "v_pk_fmac_f16", "v_writelane_b32", "v_dot2c_f32_bf16") \
                        or (self.isdpp and not ("quad_perm" in rest and "row_mask:0xf bank_mask:0xf" in rest)) \
                        or "sdwa" in op or "dst_unused" in rest:
                    self.uses |= R[0]
            if base in TRANS:
                self.kind = "trans"
        elif op.startswith("ds_"):
            self.kind = "ds"
            if op.startswith("ds_read") or op.startswith("ds_bpermute") or op.startswith("ds_permute") \
                    or op.startswith("ds_swizzle") or "_rtn" in op:
                self.defs = set(R[0])
                self.uses = set().union(*R[1:])
            else:
                self.uses = allr
            if "addtid" in op:
                self.uses = self.uses | {("x", "m0")}
        elif op.startswith("buffer_") or op.startswith("global_"):
            self.kind = "vmem"
            if op in ("buffer_wbl2", "buffer_inv"):
                pass
            elif re.search(r"\blds\b", rest) or "_lds_" in op:
                self.uses = allr | {("x", "m0")}
                self.dma = True
            elif "_load_" in op:
                self.defs = set(R[0])
                self.uses = set().union(*R[1:])
            elif "_atomic_" in op:
                ret = re.search(r"\bsc0\b", rest) is not None
                self.uses = allr
                if ret:
                    self.defs = set(R[0])
                    if op.startswith("global_"):
                        self.uses = set().union(*R[1:])
            else:
                self.uses = allr
                self.data = R[0] if op.startswith("buffer_") else R[1]
                self.wide_store = op.endswith("x3") or op.endswith("x4")
        elif op.startswith("s_load") or op.startswith("s_buffer_load") or op in ("s_memtime", "s_memrealtime"):
            self.kind = "smem"
            self.defs = set(R[0])
            self.uses = set().union(*R[1:]) if len(R) > 1 else set()
        elif op.startswith("s_atomic"):
            self.kind = "smem"
            self.uses = allr
            self.defs = set(R[0])
        elif op == "s_waitcnt":
            self.kind = "wait"
            m = re.search(r"vmcnt\((\d+)\)", rest)
            self.wait_vm = int(m.group(1)) if m else None
            m = re.search(r"lgkmcnt\((\d+)\)", rest)
            self.wait_lgkm = int(m.group(1)) if m else None
        elif op == "s_nop":
            self.kind = "nop"
            self.nops = int(rest, 0) + 1
        elif op.startswith("s_cbranch") or op == "s_branch":
            self.kind = "branch"
            self.target = rest.strip()
            if "vcc" in op:
                self.uses = {("x", "vcc")}
        elif op == "s_endpgm":
            self.kind = "end"
        elif op in ("s_barrier", "s_setprio", "s_sleep"):
            self.kind = "other"
        elif op.startswith("s_cmp") or op.startswith("s_bitcmp"):
            self.kind = "salu"
            self.uses = allr
        elif op.startswith("s_"):
            self.kind = "salu"
            self.defs = set(R[0]) if R else set()
            self.uses = set().union(*R[1:]) if len(R) > 1 else set()
            if "saveexec" in op:
                self.defs.add(("x", "exec"))
            if op in ("s_addk_i32", "s_mulk_i32"):
                self.uses |= R[0]
        else:
            raise ValueError("cannot parse: " + text)

    def real(self):
        return self.kind not in ("comment", "label", "directive")


def _vg(rs):
    return {r for r in rs if r[0] in "va"}


def _sg(rs):
    return {r for r in rs if r[0] == "s" or r == ("x", "vcc")}


def hazard_need(p, c):
    need = 0
    pv = p.kind in ("valu", "trans")
    cv = c.kind in ("valu", "trans")
    if pv:
        dv = _vg(p.defs)
        ds = _sg(p.defs)
        if c.kind == "mfma" and dv & c.uses:
            need = max(need, 2)
        if cv:
            if dv & c.uses:
                if c.isdpp or c.op.startswith("v_permlane"):
                    need = max(need, 2)
                if c.op.startswith("v_readlane") or c.op.startswith("v_readfirstlane"):
                    need = max(need, 1)
                if p.kind == "trans":
                    need = max(need, 1)
                if ("op_sel" in p.text and not p.op.startswith("v_pk_")) or "sdwa" in p.text:
                    need = max(need, 1)
            if ds & c.uses:
                need = max(need, 4 if (c.op.startswith("v_readlane") or c.op.startswith("v_writelane")) else 2)
        if c.kind == "vmem" and ds & c.uses:
            need = max(need, 5)
        if c.kind in ("salu", "smem") and ds & c.uses:
            need = max(need, 1)
        if c.kind == "branch" and ds & c.uses:
            need = max(need, 1)
        if ("x", "exec") in p.defs:
            if c.kind == "mfma" or c.op.startswith("v_readlane") or c.op.startswith("v_readfirstlane") \
                    or c.op.startswith("v_permlane"):
                need = max(need, 4)
            if c.isdpp:
                need = max(need, 5)
    if p.kind == "salu" and ("x", "m0") in p.defs and ("x", "m0") in c.uses and c.kind in ("vmem", "ds"):
        need = max(need, 1)
    if p.kind == "vmem" and p.wide_store and (p.data & c.defs):
        need = max(need, 2)
    if p.kind == "mfma":
        big = {4: 8, 8: 12}[p.passes]
        if c.kind == "mfma":
            if p.defs & c.srcab:
                need = max(need, big)
            if p.defs & c.srcc:
                if not (p.defs == c.srcc and p.passes == c.passes):
                    need = max(need, {4: 6, 8: 10}[p.passes])
            elif p.defs & c.defs:
                need = max(need, big)
        elif c.kind in ("valu", "trans", "vmem", "ds"):
            if p.defs & (c.uses | c.defs):
                need = max(need, big)
            if cv and (p.srcc & c.defs):
                need = max(need, {4: 3, 8: 7}[p.passes])
    return need


class Asm:
    def __init__(self):
        self.ins = []

    def __call__(self, text):
        for line in text.split("\n"):
            line = line.strip()
            if line:
                self.ins.append(Ins(line))

    def label(self, name):
        self(name + ":")

    def _succs(self):
        ins = self.ins
        lab = {x.label: i for i, x in enumerate(ins) if x.kind == "label"}
        succ = []
        for i, x in enumerate(ins):
            s = []
            if x.kind == "end":
                pass
            elif x.kind == "branch":
                s.append(lab[x.target])
                if x.op != "s_branch":
                    s.append(i + 1)
            elif i + 1 < len(ins):
                s.append(i + 1)
            succ.append(s)
        return succ

    def insert_waits(self, entries=(0,)):
        ins = self.ins
        succ = self._succs()
        n = len(ins)
        need_vm = [None] * n
        need_lg = [None] * n
        isjoin = [x.kind == "label" for x in ins]

        def merge(old, new):
            ch = False
            for k in (0, 1):
                for r, d in new[k].items():
                    if r not in old[k] or d < old[k][r]:
                        old[k][r] = d
                        ch = True
            if new[2] and not old[2]:
                old[2] = True
                ch = True
            return ch

        changed = True
        rounds = 0
        while changed:
            changed = False
            rounds += 1
            assert rounds < 50
            at = {}
            work = [(e, {}, {}, False) for e in entries]
            while work:
                i, vm, lg, hass = work.pop()
                while True:
                    x = ins[i]
                    if isjoin[i]:
                        if i in at:
                            if not merge(at[i], (vm, lg, hass)):
                                break
                        else:
                            at[i] = [dict(vm), dict(lg), hass]
                        vm, lg, hass = dict(at[i][0]), dict(at[i][1]), at[i][2]
                    if x.real():
                        tv = x.uses if x.kind == "vmem" else (x.uses | x.defs)
                        ds = [vm[r] for r in tv if r in vm]
                        if "nowait" in x.text:
                            for r in tv:
                                vm.pop(r, None)
                            ds = []
                        if ds:
                            w = min(min(ds), 62)
                            if need_vm[i] is None or w < need_vm[i]:
                                need_vm[i] = w
                                changed = True
                        tl = x.uses if ((x.kind == "ds" and not hass) or x.kind == "smem") else (x.uses | x.defs)
                        ds = [lg[r] for r in tl if r in lg]
                        if "nowait" in x.text:
                            ds = []
                        if ds:
                            w = 0 if hass else min(min(ds), 14)
                            if need_lg[i] is None or w < need_lg[i]:
                                need_lg[i] = w
                                changed = True
                        for c in (need_vm[i], x.wait_vm):
                            if c is not None:
                                vm = {r: d for r, d in vm.items() if d < c}
                        for c in (need_lg[i], x.wait_lgkm):
                            if c is not None:
                                if c == 0:
                                    lg = {}
                                    hass = False
                                elif not hass:
                                    lg = {r: d for r, d in lg.items() if d < c}
                        if x.kind == "vmem":
                            vm = {r: min(d + 1, 64) for r, d in vm.items()}
                            for r in x.defs:
                                vm[r] = 0
                        elif x.kind in ("ds", "smem"):
                            lg = {r: min(d + 1, 16) for r, d in lg.items()}
                            for r in x.defs:
                                lg[r] = 0
                            if x.kind == "smem":
                                hass = True
                    s = succ[i]
                    if not s:
                        break
                    for t in s[1:]:
                        work.append((t, dict(vm), dict(lg), hass))
                    i = s[0]
        out = []
        for i, x in enumerate(ins):
            parts = []
            if need_vm[i] is not None:
                parts.append(f"vmcnt({min(need_vm[i], 62)})")
            if need_lg[i] is not None:
                parts.append(f"lgkmcnt({min(need_lg[i], 14)})")
            if parts:
                out.append(Ins("s_waitcnt " + " ".join(parts)))
            out.append(x)
        self.ins = out

    def insert_nops(self, verbose=False):
        total = 0
        while True:
            ins = self.ins
            succ = self._succs()
            pred = [[] for _ in ins]
            for i, s in enumerate(succ):
                for t in s:
                    pred[t].append(i)
            add = {}
            for i, c in enumerate(ins):
                if not c.real() or c.kind in ("nop", "wait", "end"):
                    continue
                worst = 0
                stack = [(p, 0) for p in pred[i]]
                seen = {}
                while stack:
                    j, d = stack.pop()
                    if d >= 20 or seen.get(j, 99) <= d:
                        continue
                    seen[j] = d
                    p = ins[j]
                    if p.real():
                        h = hazard_need(p, c)
                        if h - d > worst:
                            worst = h - d
                            if verbose:
                                print("hazard", p.text, "->", c.text, h, d)
                        step = p.nops if p.kind == "nop" else 1
                        step += add.get(j, 0)
                    else:
                        step = 0
                    for q in pred[j]:
                        stack.append((q, d + step))
                if worst:
                    add[i] = worst
            if not add:
                break
            out = []
            for i, x in enumerate(ins):
                if i in add:
                    k = add[i]
                    total += k
                    while k > 0:
                        t = min(k, 16)
                        out.append(Ins(f"s_nop {t - 1}"))
                        k -= t
                out.append(x)
            self.ins = out
        return total

    def finish(self, entries=(0,), verbose=False):
        self.insert_waits(entries)
        self.insert_nops(verbose)

    def text(self):
        o = []
        for x in self.ins:
            o.append(x.text if x.kind in ("label", "directive") else "  " + x.text)
        return "\n".join(o) + "\n"


def interleave(main, fill, start=0, every=1, per=1):
    out = []
    f = list(fill)
    for i, m in enumerate(main):
        out.append(m)
        if i >= start and (i - start) % every == 0:
            for _ in range(per):
                if f:
                    out.append(f.pop(0))
    out += f
    return out
```

```python
import sys, struct, math
from asmgen import *

NAME = "concat_heads__linear_attn_block__ssm_conv_s4__prompt_kernel"


def fbits(x):
    return "0x%08x" % struct.unpack("<I", struct.pack("<f", x))[0]


LOG2E = 1.4426950408889634
EPS = 1e-6

CSTR = 8448
NCNT = 56
RSTR = 2304
WS_ZP = 65536
WS_CNT = 512 << 10
WS_KVP = 1 << 20
WS_UT = 4 << 20
WS_YT = 8 << 20
WS_OF = 12 << 20
WS_PROF = 16 << 20
WS_SIZE = 20 << 20

SLOT = 40960
SL = lambda s: SLOT * (s + 1)
SCR = 8704
L_MISC = 34816
L_UC = SL(1)
UC = 4608
RCS = 2112
L_EX = (SL(1) + 36864, 36864)
L_EZ = L_MISC + 1024
LDS_BYTES = 163840
LF_P1, LF_P2, LF_OD = 0, 16, 32
LF_WA, LF_WB, LF_C1, LF_G1, LF_C2, LF_G2, LF_CY, LF_GY, LF_YG, LF_PQ, LF_PA, LF_W0 = 48, 52, 56, 60, 64, 68, 72, 76, 80, 96, 112, 128
WO_E0 = [SL(1) + 20480 + 4096 * i for i in range(4)]
WO_E1 = [SL(2) + 4096 * i for i in range(10)]
WO_E2 = [SL(0) + 4096 * i for i in range(10)]
WO_LATE = [SCR * w + 4096 * j for j in range(2) for w in range(4)]
WO_SLOTS = WO_E0 + WO_E1 + WO_E2 + WO_LATE
NE = 24
TB = 16

pX, pW, pWo, pU, pAre, pAim, pBre, pBim, pCre, pCim, pLdt, pDsk, pOut, pDbg, pWs = range(8, 38, 2)
rX, rW, rWS, rO, rWo, rU = 40, 44, 48, 52, 56, 60
sWave, sRT, sHP, sRT2, sCT = 3, 4, 5, 6, 7
SPIN = 20000


def srd(r, p, size):
    return f"s_mov_b32 s{r}, s{p}\ns_mov_b32 s{r+1}, s{p+1}\ns_mov_b32 s{r+2}, {size}\ns_mov_b32 s{r+3}, 0x20000"


def bfe(d, s, off, w):
    return f"s_bfe_u32 s{d}, s{s}, {hex((w << 16) | off)}"


def MF(d, x, y, c=None):
    c = V(d, 4) if c is None else c
    return f"v_mfma_f32_16x16x32_bf16 {V(d,4)}, {V(x,4)}, {V(y,4)}, {c}"


def CVT(d, x, y, neg=False):
    return f"v_cvt_pk_bf16_f32 v{d}, v{x}, {'-' if neg else ''}v{y}"


class Gen:
    def __init__(self, prof=0, **opt):
        self.a = Asm()
        self.prof = prof
        self.opt = opt
        self.nlab = 0
        self.sched = {}
        for part in opt.get("sched", "p=A0,S0,U,A1,R,a99,T,F,t0,t1,t2,t3,S1").split("/"):
            k, v = part.split("=")
            self.sched[k if k == "p" else int(k)] = v.split(",")

    def o(self, k, d):
        return self.opt.get(k, d)

    def lab(self, base):
        self.nlab += 1
        return f"L_{base}_{self.nlab}"

    def out(self, lst):
        for l in lst:
            if isinstance(l, list):
                self.out(l)
            else:
                self.a(l)

    def stamp(self, idx, mode=1):
        if not self.prof or (self.prof != mode and idx != 15):
            return
        self.a(f"s_memrealtime s[68:69]\ns_waitcnt lgkmcnt(0)\ns_mov_b32 s{72+idx}, s68")

    def cstamp(self, idx):
        if self.prof == 5:
            self.a(f"s_memtime s[68:69]\ns_waitcnt lgkmcnt(0)\ns_mov_b32 s{72+idx}, s68")
            self.stamp(idx + 1, 5)

    def dump_stamps(self):
        if not self.prof:
            return
        a = self.a
        a("s_waitcnt vmcnt(0)")
        self.stamp(15)
        for i in range(16):
            a(f"v_mov_b32 v{16+i}, s{72+i}")
        a(f"s_lshl_b32 s68, s2, 3\ns_add_u32 s68, s68, s{sWave}\ns_lshl_b32 s68, s68, 6\ns_add_u32 s68, s68, {WS_PROF}")
        a("v_mov_b32 v3, 0")
        for i in range(4):
            a(f"buffer_store_dwordx4 {V(16+4*i,4)}, v3, {S(rWS,4)}, s68 offen offset:{16*i}")

    def arrive(self, vM, vOne, vFo, lf_cnt, soff, vtmp, slast, vret=None):
        a = self.a
        l = self.lab("arr")
        a("s_waitcnt vmcnt(0)")
        a("s_mov_b64 exec, 1")
        a(f"ds_add_rtn_u32 v{vtmp}, v{vM}, v{vOne} offset:{lf_cnt}")
        a("s_mov_b64 exec, -1")
        a(f"v_readfirstlane_b32 s{slast}, v{vtmp}")
        a(f"s_cmp_lg_u32 s{slast}, 3")
        a(f"s_cbranch_scc1 {l}")
        if self.scal(lf_cnt):
            a("s_mov_b32 s39, 1")
            a(f"s_atomic_add s39, {S(pWs,2)}, s{soff}{' glc' if vret is not None else ''}")
        elif vret is None:
            a(f"buffer_atomic_add v{vOne}, v{vFo}, {S(rWS,4)}, s{soff} offen sc1")
        else:
            a(f"buffer_atomic_add v{vret}, v{vFo}, {S(rWS,4)}, s{soff} offen sc0 sc1")
        a.label(l)

    def scal(self, lf):
        return {LF_C1: "1", LF_G1: "1", LF_C2: "2", LF_G2: "2", LF_CY: "y", LF_GY: "y"}[lf] in self.o("sat", "u12y")

    def poll_issue(self, vFo, soff, vp, slast):
        a = self.a
        l = self.lab("pre")
        a(f"v_mov_b32 v{vp}, 0")
        a(f"s_cmp_lg_u32 s{slast}, 3")
        a(f"s_cbranch_scc1 {l}")
        a(f"buffer_atomic_add v{vp}, v{vFo}, {S(rWS,4)}, s{soff} offen sc0 sc1")
        a.label(l)

    def await_(self, vM, vOne, vFo, lf_go, soff, vtmp, slast, scnt, stmp, vret=None, pre=()):
        a = self.a
        l, d, o, e = self.lab("poll"), self.lab("polld"), self.lab("pollo"), self.lab("polle")
        look = lambda v: f"v_mov_b32 v{v}, 0\nbuffer_atomic_add v{v}, v{vFo}, {S(rWS,4)}, s{soff} offen sc0 sc1"
        a(f"s_cmp_lg_u32 s{slast}, 3")
        a(f"s_cbranch_scc1 {o}")
        a(f"s_mov_b32 s{scnt}, {SPIN}")
        if self.scal(lf_go):
            assert not pre
            if vret is not None:
                a("s_cmp_eq_u32 s39, 15")
                a(f"s_cbranch_scc1 {d}")
            a.label(l)
            a(f"s_mov_b32 s{stmp}, 0")
            a(f"s_atomic_add s{stmp}, {S(pWs,2)}, s{soff} glc")
            a(f"s_sub_u32 s{scnt}, s{scnt}, 1")
            a("s_waitcnt lgkmcnt(0)")
            a(f"s_cbranch_scc1 {d}")
            a(f"s_cmp_lt_u32 s{stmp}, 16")
            a(f"s_cbranch_scc1 {l}")
            a.label(d)
            a(f"ds_write_b32 v{vM}, v{vOne} offset:{lf_go}")
            a(f"s_branch {e}")
            a.label(o)
            self.poll_lds(vM, lf_go, 1, vtmp)
            a.label(e)
            return
        if vret is not None:
            a(f"s_waitcnt vmcnt({len(pre)}) ; trust")
            a(f"v_cmp_eq_u32 vcc, 15, v{vret} ; nowait")
            a(f"s_cbranch_vccnz {d}")
        a(look(vtmp))
        ring = list(pre) + [vtmp]
        a.label(l)
        for v in ring:
            a(f"s_waitcnt vmcnt({len(ring)-1})")
            a(f"v_readfirstlane_b32 s{stmp}, v{v} ; nowait")
            a(f"s_cmp_ge_u32 s{stmp}, 16")
            a(f"s_cbranch_scc1 {d}")
            a(look(v).replace("\n", " ; nowait\n") + " ; nowait")
        a(f"s_sub_u32 s{scnt}, s{scnt}, 1")
        a(f"s_cbranch_scc0 {l}")
        a.label(d)
        a(f"ds_write_b32 v{vM}, v{vOne} offset:{lf_go}")
        a(f"s_branch {e}")
        a.label(o)
        self.poll_lds(vM, lf_go, 1, vtmp)
        a.label(e)

    def poll_lds(self, vaddr, off, val, vtmp, after=()):
        a = self.a
        l = self.lab("lpoll")
        slp = self.o("slp", 0) if off in (LF_GY, LF_YG) else (self.o("slp2", 0) if off in (LF_G1, LF_G2, LF_OD, LF_PQ) else 0)
        if slp:
            l2 = self.lab("lpollin")
            a(f"s_branch {l2}")
        a.label(l)
        if slp:
            a(f"s_sleep {slp}")
            a.label(l2)
        a(f"ds_read_b32 v{vtmp}, v{vaddr} offset:{off}")
        self.out(list(after))
        a(f"v_cmp_ne_u32 vcc, {val}, v{vtmp}")
        a(f"s_cbranch_vccnz {l}")

    def lds_inc(self, vM, vOne, off):
        self.a(f"s_mov_b64 exec, 1\nds_add_u32 v{vM}, v{vOne} offset:{off}\ns_mov_b64 exec, -1")

    def quad_t(self, src, tmp):
        r = []
        for a_, b_, bit, mask, qp in ((src, tmp, 1, 0x55555555, "[1,0,3,2]"), (tmp, src, 2, 0x33333333, "[2,3,0,1]")):
            for hi in (0, 1):
                pre = f"s_mov_b32 vcc_lo, {hex(mask)}\ns_mov_b32 vcc_hi, {hex(mask)}\n" if hi == 0 else "s_not_b64 vcc, vcc\n"
                for k in range(4):
                    if bool(k & bit) != bool(hi):
                        continue
                    for d in range(4):
                        r.append(pre + f"v_cndmask_b32_dpp v{b_+4*k+d}, v{a_+4*(k^bit)+d}, v{a_+4*k+d}, vcc "
                                       f"quad_perm:{qp} row_mask:0xf bank_mask:0xf")
                        pre = ""
        return r

    def ids2(self, t):
        if self.o("omap", 1) == 0:
            return [f"s_and_b32 s{sRT2}, s2, 7", bfe(t, 2, 3, 1), f"s_lshl1_add_u32 s{sRT2}, s{sRT2}, s{t}",
                    f"s_lshr_b32 s{sCT}, s2, 4"]
        return [bfe(sRT2, 2, 1, 2), bfe(t, 2, 3, 2), f"s_lshl2_add_u32 s{sRT2}, s{sRT2}, s{t}",
                f"s_and_b32 s{sCT}, s2, 1", f"s_lshr_b32 s{t}, s2, 5", f"s_lshl3_add_u32 s{sCT}, s{sCT}, s{t}"]

    def ids1(self, t):
        return [f"s_and_b32 s{sRT}, s2, 1", bfe(t, 2, 3, 3), f"s_lshl3_add_u32 s{sRT}, s{sRT}, s{t}",
                bfe(sHP, 2, 1, 2), f"s_lshr_b32 s{t}, s2, 6", f"s_lshl2_add_u32 s{sHP}, s{sHP}, s{t}"]

    PR, vDs = 80, 87

    def entry(self):
        a = self.a
        a("s_cmp_ge_u32 s2, 256")
        a("s_cbranch_scc1 L_end")
        a("s_load_dwordx16 s[8:23], s[0:1], 0")
        if self.o("perm", 0):
            a(bfe(3, 2, 1, 2) + "\ns_and_b32 s4, s2, 1\ns_lshl2_add_u32 s3, s4, s3\ns_andn2_b32 s2, s2, 7\ns_or_b32 s2, s2, s3")
        a("s_load_dwordx8 s[24:31], s[0:1], 64")
        a("s_load_dwordx4 s[32:35], s[0:1], 96")
        a("s_load_dwordx2 s[36:37], s[0:1], 112")
        if self.prof:
            a("s_memrealtime s[68:69]")
        a("s_getpc_b64 s[88:89]")
        a("s_and_b32 s90, s2, 56\ns_lshl_b32 s90, s90, 4")
        a("v_lshrrev_b32 v6, 4, v0\nv_lshl_add_u32 v6, v6, 10, s90")
        a("v_min_u32 v6, CODE_LEFT, v6")
        a("v_lshrrev_b32 v1, 6, v0")
        a("global_load_dword v7, v6, s[88:89]")
        a(f"v_readfirstlane_b32 s{sWave}, v1")
        a("v_and_b32 v2, 63, v0")
        a(f"s_cmp_ge_u32 s{sWave}, 4")
        a("s_cbranch_scc1 L_helper")
        a("s_lshl_b32 s91, s2, 10\nv_lshl_add_u32 v3, v0, 2, s91")
        a("s_lshl_b32 s91, s2, 3\nv_lshl_add_u32 v5, v1, 1, s91")
        a(f"s_or_b32 s90, s2, s{sWave}")
        a("s_waitcnt lgkmcnt(0)")
        a("s_cbranch_scc1 L_par")
        a(f"v_min_u32 v8, {NCNT-1}, v2\nv_mul_u32_u24 v8, {CSTR}, v8\nv_add_u32 v8, {WS_CNT}, v8\nv_mov_b32 v9, 0")
        a(f"global_store_dword v8, v9, {S(pWs,2)} sc1\nglobal_store_dword v8, v9, {S(pWs,2)} offset:{RSTR} sc1")
        a(f"v_add_u32 v8, {2*RSTR}, v8")
        a(f"global_store_dword v8, v9, {S(pWs,2)} sc1\nglobal_store_dword v8, v9, {S(pWs,2)} offset:{RSTR} sc1")
        a.label("L_par")
        a(f"global_load_ushort v{self.PR+6}, v5, {S(pLdt,2)}")
        for i, p in enumerate((pAre, pAim, pBre, pBim, pCre, pCim)):
            a(f"global_load_dword v{self.PR+i}, v3, {S(p,2)}")
        a(f"global_load_ushort v{self.vDs}, v5, {S(pDsk,2)}")
        a("s_branch L_compute")

    def prof_init(self):
        if self.prof:
            self.a("s_mov_b32 s72, s68")
            for i in range(1, 16):
                self.a(f"s_mov_b32 s{72+i}, 0")

    def kgen(self, sScr):
        a = self.a
        PR, vDs = self.PR, self.vDs
        vDt, vTR, vA0, vA1, vA2, vSt, vB0, vB1 = 68, 70, 71, 72, 73, 74, 75, 76
        ST = lambda n, i: 8 + n * 30 + 2 * i
        RT0, RS0, RS1, RT1 = 100, 132, 164, 196
        FT, FS = (RT0, 212), (RS0, RS1)
        KD = lambda tt, st: 196 + (tt * 2 + st) * 4
        a("v_and_b32 v3, 15, v2\nv_mul_u32_u24 v5, 544, v3\nv_and_b32 v6, 48, v2")
        a(f"v_add3_u32 v{vTR}, v5, v6, s{sScr}")
        a("v_max_u32 v6, 1, v4\nv_sub_u32 v6, 6, v6")
        a(f"v_lshlrev_b32 v{vA0}, v6, v3")
        a(f"v_mov_b32 v{vSt}, 16\nv_lshlrev_b32 v{vSt}, v6, v{vSt}")
        a("v_lshlrev_b32 v6, 4, v4\nv_lshlrev_b32 v5, 9, v4")
        a("v_cmp_gt_u32 vcc, 2, v4")
        a(f"v_lshl_add_u32 v{vA2}, v3, 2, v5\nv_add_u32 v{vA2}, s{sScr}, v{vA2}")
        a("v_cndmask_b32 v6, v5, v6, vcc")
        a(f"v_add3_u32 v{vA0}, v{vA0}, v6, s{sScr}")
        a("v_cmp_eq_u32 vcc, 3, v4")
        a("v_mov_b32 v6, 8\nv_mov_b32 v5, 256")
        a("v_cndmask_b32 v6, v6, v5, vcc")
        a(f"v_add_u32 v{vA1}, v{vA0}, v6")
        a(f"v_add_u32 v{vB0}, v{vA0}, v{vSt}\nv_add_u32 v{vB1}, v{vA1}, v{vSt}")
        a(f"s_mov_b32 m0, s{sScr}")
        a(f"v_mov_b32 v{RS0}, 0x3f80\nv_mov_b32 v{RS0+1}, 0x3f80")
        a("v_cmp_eq_u32 vcc, 0, v2")
        a(f"v_lshlrev_b32 v{vDt}, 16, v{PR+6}\nv_mul_f32 v{vDt}, {fbits(LOG2E)}, v{vDt}\nv_exp_f32 v{vDt}, v{vDt}")
        for i in range(3):
            for c in range(2):
                a(f"v_lshlrev_b32 v{ST(0,i)+c}, 16, v{PR+2*i+c}")
                a(f"v_and_b32 v{ST(1,i)+c}, 0xffff0000, v{PR+2*i+c}")
            if i == 0:
                a(f"v_cvt_pk_bf16_f32 v{vDt}, v{vDt}, v{vDt}\nv_lshlrev_b32 v{vDt}, 16, v{vDt}")
        self.stamp(11)
        a(f"s_or_b32 s88, s2, s{sWave}")
        a("s_cbranch_scc1 L_noflag")
        a("s_waitcnt vmcnt(0)")
        a("v_mov_b32 v5, 0\nv_mov_b32 v6, 1")
        a(f"global_store_dword v5, v6, {S(pDbg,2)} sc1")
        a.label("L_noflag")
        for i in range(2):
            for n in range(2):
                a(f"v_pk_mul_f32 {V(ST(n,i),2)}, {V(ST(n,i),2)}, {V(vDt,2)} op_sel_hi:[1,0]")
        for n in range(2):
            a(f"v_mul_f32 v{ST(n,0)}, {fbits(LOG2E)}, v{ST(n,0)}")
            a(f"v_mul_f32 v{ST(n,0)+1}, {fbits(1/(2*math.pi))}, v{ST(n,0)+1}")
        pend = []
        lq = []
        soon = []
        nrow = [0]
        g0, rate = self.o("kg0", 99), self.o("kgr", 4)

        def CM(dst, x, y):
            lq.extend(soon)
            soon.clear()
            take = [lq.pop(0) for _ in range(min(rate, len(lq)))] if nrow[0] >= g0 else []
            seq = [f"v_pk_mul_f32 {V(ST(n,dst),2)}, {V(ST(n,x),2)}, {V(ST(n,y),2)} op_sel_hi:[1,0]" for n in range(2)]
            for c, w in pend:
                seq.append(c)
                soon.extend(w)
            pend.clear()
            seq += [f"v_pk_fma_f32 {V(ST(n,dst),2)}, {V(ST(n,x),2)}, {V(ST(n,y),2)}, {V(ST(n,dst),2)} "
                    f"op_sel:[1,1,0] op_sel_hi:[0,1,1] neg_lo:[1,0,0]" for n in range(2)]
            self.out(interleave(seq, take, 0, 1, 1))

        def wr(base, r, n):
            return f"ds_write_addtid_b32 v{base+2*r+n} offset:{r*544+n*256}"

        def rd(dst):
            return [f"ds_read_b128 {V(dst+4*f,4)}, v{vTR} offset:{64*f}" for f in range(8)]

        def row(base, r, pair, neg, pre=(), post=()):
            nrow[0] += 1
            for n in range(2):
                pend.append((CVT(base + 2 * r + n, ST(n, pair), ST(n, pair) + 1, neg),
                             (list(pre) if n == 0 else []) + [wr(base, r, n)] + (list(post) if n == 1 else [])))

        for zi, L, t in ((3, 1.0, 12), (4, 8.0, 13), (5, 256.0, 14)):
            for n in range(2):
                if L != 1.0:
                    a(f"v_mul_f32 v{ST(n,t)}, {fbits(L)}, v{ST(n,0)}")
                    a(f"v_mul_f32 v{ST(n,t)+1}, {fbits(L)}, v{ST(n,0)+1}")
            for n in range(2):
                src = t if L != 1.0 else 0
                a(f"v_fract_f32 v{ST(n,t)+1}, v{ST(n,src)+1}")
                a(f"v_exp_f32 v{ST(n,t)}, v{ST(n,src)}")
            for n in range(2):
                a(f"v_cos_f32 v{ST(n,zi)}, v{ST(n,t)+1}")
                a(f"v_sin_f32 v{ST(n,zi)+1}, v{ST(n,t)+1}")
        CM(6, 2, 1)
        for zi, t in ((3, 12), (4, 13), (5, 14)):
            for n in range(2):
                a(f"v_pk_mul_f32 {V(ST(n,zi),2)}, {V(ST(n,zi),2)}, {V(ST(n,t),2)} op_sel_hi:[1,0]")
        row(RT0, 0, 6, True)
        for j in range(4):
            CM(10, 6 + j, 3); row(RT0, 2 * j + 1, 10, True)
            if j < 3:
                CM(7 + j, 10, 3); row(RT0, 2 * j + 2, 7 + j, True)
        for dst, x, r in ((12, 7, 9), (10, 6, 8), (12, 9, 11), (11, 8, 10), (6, 10, 12), (8, 11, 13), (10, 6, 14), (11, 8, 15)):
            CM(dst, x, 5); row(RT0, r, dst, True, post=rd(FT[0]) if r == 15 else ())
        cur = 10
        for r in range(5):
            nxt = 6 if cur == 10 else 10
            CM(nxt, cur, 5); row(RT1, r, nxt, True, post=rd(FT[1]) if r == 4 else ())
            cur = nxt
        row(RS0, 1, 4, False, pre=[wr(RS0, 0, 0), wr(RS0, 0, 1)])
        cur = 4
        for j in range(2, 32):
            nxt = 10 if cur != 10 else 11
            CM(nxt, cur, 4)
            row(RS0 if j < 16 else RS1, j % 16, nxt, False, post=rd(FS[j >> 4]) if j % 16 == 15 else ())
            cur = nxt
        a(f"v_lshlrev_b32 v{vDs}, 16, v{vDs}\nv_mov_b32 v6, 0")
        lq.extend(soon)
        for c, w in pend:
            a(c)
            lq.extend(w)
        a(f"v_cndmask_b32 v{vDs}, v6, v{vDs}, vcc")
        self.stamp(12)
        if self.o("b0", 1) == 0:
            a("s_barrier")
            self.stamp(1)

        def mm(st):
            return [MF(KD(tt, st), FT[tt] + 4 * f, FS[st] + 4 * f, "0" if f == 0 else None) for tt in range(2) for f in range(8)]

        def tw(st):
            return [f"ds_write_b64 v{(vA0,vB0)[st]}, {V(KD(0,st),2)} offset:{TB}",
                    f"ds_write_b64 v{(vA1,vB1)[st]}, {V(KD(0,st)+2,2)} offset:{TB}"] + \
                   [f"ds_write_b32 v{vA2}, v{KD(1,st)+r} offset:{TB+2048+128*r+64*st}" for r in range(4)]
        nt = min(len(lq), 34)
        self.out(lq[:len(lq) - nt])
        self.out(interleave(mm(0), lq[len(lq) - nt:], 0, 1, -(-nt // 16)))
        a(f"v_add_f32 v{KD(0,0)}, v{KD(0,0)}, v{vDs}")
        self.out(interleave(mm(1), tw(0), 0, 2, 1))
        return tw(1)

    def phi(self, s, tmp, sL):
        out = [f"v_fma_f32 v{tmp+i}, v{s+i}, s{sL}, -s{sL}" for i in range(4)]
        out += [f"v_exp_f32_e64 v{tmp+i}, v{tmp+i} clamp" for i in range(4)]
        out += [f"v_max_f32 v{s+i}, v{s+i}, v{tmp+i}" for i in range(4)]
        return out

    def compute(self):
        a = self.a
        acc = 100
        XS, WR = (8, 40), (72, 80, 88)
        vXA, vXB, vWA, vWB = 244, 246, 248, 252
        sHI, sMI, sSl, sIt, sE, sL, sScr, sEvt = 64, 65, 66, 67, 90, 91, 92, 96
        AQ = lambda mt, nt: acc + (mt * 2 + nt) * 4
        AK = lambda mt, nt: acc + 32 + (mt * 2 + nt) * 4
        AV = lambda mt, nt: acc + 64 + (mt * 2 + nt) * 4
        a.label("L_compute")
        self.prof_init()
        a(f"v_lshlrev_b32 v3, 2, v2\nv_mov_b32 v5, 0\nds_write_b32 v3, v5 offset:{L_MISC}")
        self.out(self.ids1(88) + self.ids2(88))
        a(f"s_mul_i32 s{sScr}, s{sWave}, {SCR}")
        a(f"s_and_b32 s{sHI}, s{sWave}, 1\ns_lshr_b32 s{sMI}, s{sWave}, 1")
        a("v_and_b32 v3, 15, v2\nv_lshrrev_b32 v4, 4, v2\nv_lshrrev_b32 v5, 1, v3\nv_xor_b32 v5, v5, v4")
        a("v_lshlrev_b32 v5, 4, v5\nv_lshl_add_u32 v5, v3, 7, v5")
        a(f"s_lshl_b32 s88, s{sMI}, 13\nv_add_u32 v{vXB}, s88, v5\nv_xor_b32 v{vXB+1}, 64, v{vXB}")
        a("v_bfe_u32 v3, v2, 2, 2\nv_lshl_add_u32 v5, v4, 3, v3\nv_lshlrev_b32 v5, 7, v5\nv_lshrrev_b32 v3, 1, v3")
        a(f"v_xor_b32 v6, s{sHI}, v4\nv_and_b32 v6, 1, v6\nv_lshl_add_u32 v3, v6, 1, v3\nv_lshl_add_u32 v5, v3, 5, v5")
        a("v_and_b32 v3, 3, v2\nv_lshl_add_u32 v5, v3, 3, v5")
        a(f"v_add_u32 v{vWB}, 16384, v5\nv_xor_b32 v{vWB+1}, 32, v{vWB}")
        a(f"s_lshl_b32 s88, s{sMI}, 5\nv_xor_b32 v{vWB+2}, s88, v{vWB}\nv_xor_b32 v{vWB+3}, s88, v{vWB+1}")
        a(f"s_mov_b32 s{sE}, {fbits(EPS)}\ns_mov_b32 s{sL}, {fbits(LOG2E)}")
        a(srd(rWS, pWs, WS_SIZE))
        a(srd(rO, pOut, 8 << 20))
        GR = ((1, 0), (1, 1), (2, 0), (2, 1), (0, 0), (0, 1))

        def rx(par, ks, mt):
            return f"ds_read_b128 {V(XS[par]+16*ks+4*mt,4)}, v{vXA+ks} offset:{mt*2048}"

        def rw(g, buf=None):
            sec, nt = GR[g]
            b = WR[g % 3] if buf is None else buf
            return [f"ds_read_b64_tr_b16 {V(b+4*ks+2*t,2)}, v{vWA+nt+(2 if sec == 2 else 0)} offset:{sec*8192+ks*4096+t*512}"
                    for ks in range(2) for t in range(2)]

        def head_reads(par):
            w0 = rw(0)
            return [rx(par, 0, 0)] + w0[:2] + [rx(par, 1, 0)] + w0[2:] + \
                   [rx(par, 1, 1), rx(par, 0, 1), rx(par, 0, 2), rx(par, 1, 2), rx(par, 1, 3), rx(par, 0, 3)] + rw(1)[:1]

        def grp(par, g, first=False, buf=None):
            sec, nt = GR[g]
            b = WR[g % 3] if buf is None else buf
            m = []
            for j, mt in enumerate(range(4) if g % 2 == 0 else range(3, -1, -1)):
                for i, ks in enumerate((0, 1) if j % 2 == 0 else (1, 0)):
                    c = acc + sec * 32 + (mt * 2 + nt) * 4
                    xa, wa = XS[par] + 16 * ks + 4 * mt, b + 4 * ks
                    c0 = ("0" if sec == 2 else "1.0") if first and i == 0 else None
                    m.append(MF(c, xa, wa, c0) if sec else MF(c, wa, xa, c0))
            return m

        sa = [f"v_add_u32 v{vXA+i}, s{sSl}, v{vXB+i}" for i in range(2)] + \
             [f"v_add_u32 v{vWA+i}, s{sSl}, v{vWB+i}" for i in range(4)]

        def stage_body(par, first=False, tail=()):
            sal = [f"s_add_u32 s{sSl}, s{sSl}, {SLOT}", f"s_cmp_eq_u32 s{sSl}, {SL(3)}",
                   f"s_cselect_b32 s{sSl}, {SL(0)}, s{sSl}"]
            W4 = "s_waitcnt lgkmcnt(4)"
            f0 = rw(1)[1:] + rw(2) + [W4]
            f0[3] += "\ns_waitcnt lgkmcnt(5)"
            self.out(interleave(grp(par, 0, first), f0, 0, 1, 1))
            self.out(interleave(grp(par, 1, first), rw(3) + sal + [W4], 0, 1, 1))
            self.out(interleave(grp(par, 2, first), rw(4) + [sa[0], sa[1], sa[4], W4], 0, 1, 1))
            self.out(interleave(grp(par, 3, first), rw(5) + [sa[2], sa[3], sa[5] + "\n" + "\n".join(tail), W4], 0, 1, 1))
            m = grp(par, 4, first) + grp(par, 5, first)
            hr = head_reads(1 - par)
            hr[-1] += "\ns_waitcnt lgkmcnt(5)"
            self.out(interleave(m, ["s_waitcnt lgkmcnt(0)", "s_barrier"] + hr, 0, 1, 1))

        a("v_mov_b32 v97, 1")
        a(f"s_mov_b32 s{sSl}, {SL(0)}\ns_mov_b32 s{sIt}, 1")
        self.out(sa)
        tw1 = self.kgen(sScr) if 'K' not in self.o('abl', '') else []
        self.out(tw1)
        self.stamp(10)
        if self.o("b0", 1) == 1:
            a("s_waitcnt lgkmcnt(0)")
            a("s_barrier")
            self.stamp(1)
        self.cstamp(1)
        a(f"s_setprio {self.o('prio', 3)}")
        self.out(head_reads(0))
        stage_body(0, True)
        a(f".p2align {self.o('cal', 3)}")
        a.label("L_cloop")
        stage_body(1, tail=[f"s_add_u32 s{sIt}, s{sIt}, 2"])
        stage_body(0, tail=[f"s_cmp_lt_u32 s{sIt}, 15"])
        a("s_cbranch_scc1 L_cloop")
        vL16, vEx, vLF, vOne, vZo, vFo, vM, vPE, vPF, v1, vEz, vPz = 197, 198, 199, 200, 204, 205, 206, 207, 96, 97, 98, 99
        sLast, sHead, sT0, sT1 = 70, 92, 93, 94
        WQ = (8, 16)
        KF = lambda ch, dt: 208 + (ch * 2 + dt) * 4
        VF = lambda ch, e: 224 + (ch * 2 + e) * 4
        D = lambda dt, e: 240 + (e * 2 + dt) * 4
        Z = lambda dt: 24 + dt * 4
        tmp, RX, PK, vEA, EC = 32, 72, 32, 36, 80
        EPSB = struct.unpack("<I", struct.pack("<f", EPS))[0]
        EPSB = (EPSB + 0x7fff + ((EPSB >> 16) & 1)) >> 16
        EPSB = hex(EPSB << 16 | EPSB)
        pre = [f"v_mov_b32 v{vM}, {L_MISC}", f"v_lshlrev_b32 v{vL16}, 4, v2", f"s_mov_b32 s{sT1}, {L_EX[1]}",
               f"s_cmp_eq_u32 s{sHI}, 0\ns_cselect_b32 s{sT1}, {L_EX[0]}, s{sT1}",
               f"s_lshl_b32 s{sT0}, s{sMI}, 11\ns_add_u32 s{sT0}, s{sT0}, s{sT1}", f"v_add_u32 v{vEx}, s{sT0}, v{vL16}",
               f"v_lshl_add_u32 v{vLF}, v1, 2, v{vM}", f"v_lshlrev_b32 v{vEz}, 2, v0"]
        rd = rw(1)[1:] + rw(2) + rw(4, WQ[0])[:1]
        self.out(interleave(grp(1, 0), [x + "\n" + y for x, y in zip(rd, pre)], 0, 1, 1))
        self.stamp(2)
        self.stamp(2, 3)
        self.stamp(2, 4)
        self.cstamp(3)
        rd = rw(3) + rw(4, WQ[0])[1:] + rw(5, WQ[1])
        pend = grp(1, 1) + grp(1, 2) + grp(1, 3)
        pend = [x + "\n" + rd[i] if i < len(rd) else x for i, x in enumerate(pend)]
        e1 = [f"v_mov_b32 v{vOne+i}, 0x3f803f80" for i in range(4)] + [f"v_mov_b32 v{vEA+i}, {EPSB}" for i in range(4)]

        def phik(dt, ch):
            r = []
            for h in range(2):
                s = AK(2 * ch + h, dt)
                r += self.phi(s, tmp, sL) + [CVT(KF(ch, dt) + 2 * h, s, s + 1), CVT(KF(ch, dt) + 2 * h + 1, s + 2, s + 3)]
            return r

        def cvtv(e):
            return [CVT(VF(ch, e) + 2 * h + i, AV(2 * ch + h, e) + 2 * i, AV(2 * ch + h, e) + 2 * i + 1)
                    for ch in range(2) for h in range(2) for i in range(2)]

        def kvm(dt, e, chs=(0, 1)):
            return [MF(D(dt, e), KF(ch, dt), VF(ch, e), V(EC + 4 * e, 4) if ch == 0 else None) for ch in chs]
        epsm = lambda e: [MF(EC + 4 * e, vEA, VF(ch, e), "0" if ch == 0 else None) for ch in range(2)]
        zm = lambda dt, chs=(0, 1): [MF(Z(dt), vOne, KF(ch, dt), "0" if ch == 0 else None) for ch in chs]
        e1 += phik(0, 0) + phik(0, 1) + [("M", zm(0))]
        e1 += cvtv(0) + [("M", epsm(0))] + cvtv(1) + [("M", epsm(1) + kvm(0, 0) + kvm(0, 1))]
        e1 += phik(1, 0) + [("M", kvm(1, 1, (0,)) + zm(1, (0,)) + kvm(1, 0, (0,)))]
        x = phik(1, 1)
        e1 += x[:14] + [f"ds_write_b128 v{vEx}, {V(D(0,1),4)} offset:0"] + x[14:]
        e1 += [("M", kvm(1, 1, (1,)) + zm(1, (1,)) + kvm(1, 0, (1,)))]
        sc = [f"s_lshl1_add_u32 s{sHead}, s{sHP}, s{sHI}\ns_lshl1_add_u32 s96, s{sHead}, s{sMI}",
              f"v_xor_b32 v{vPE}, 2048, v{vEx}\nv_xor_b32 v{vPF}, 8, v{vLF}",
              f"v_xor_b32 v{vPz}, 512, v{vEz}\nv_cmp_lt_u32 vcc, 1, v1",
              f"s_lshr_b32 s{sT0}, s{sRT}, 2\ns_lshl2_add_u32 s{sT1}, s96, s{sT0}"]
        cnt = 2
        for l in e1:
            if isinstance(l, tuple):
                cnt = 0 if not pend else cnt
                pend += l[1]
                continue
            if pend and cnt >= 2:
                x = pend.pop(0)
                a(x)
                cnt = x.count("ds_read")
            a(l)
            cnt += 2 if l.startswith("v_exp") else 1
        a(sc[0])
        self.out(interleave(pend, sc[1:], 0, 1, 1))
        self.stamp(1, 3)
        a(f"ds_write_b128 v{vEx}, {V(D(1,1),4)} offset:1024")
        a(f"v_cndmask_b32 v5, v{Z(1)}, v{Z(0)}, vcc")
        a(f"v_cndmask_b32 v6, v{Z(0)}, v{Z(1)}, vcc")
        a(f"ds_write_b32 v{vEz}, v5 offset:{L_EZ}")
        a(f"ds_write_b32 v{vLF}, v{v1} offset:{LF_P1}")
        a(f"s_lshl_b32 s{sT1}, s{sT1}, 8\ns_and_b32 s{sT0}, s{sRT}, 3")
        a(f"s_lshl2_add_u32 s{sT1}, s{sT0}, s{sT1}\ns_add_u32 s{sT1}, s{sT1}, {WS_ZP}")
        a(f"s_lshl_b32 s96, s96, 14\ns_add_u32 s96, s96, {WS_KVP}")
        a(f"s_lshl_b32 s{sT0}, s{sRT}, 10\ns_add_u32 s{sT0}, s{sT0}, s96")
        a(f"v_lshl_add_u32 v{vZo}, v4, 26, v{vL16}\nv_lshlrev_b32 v{vFo}, 26, v2")
        self.poll_lds(vPF, LF_P1, 1, 3, [f"ds_read_b128 {V(RX,4)}, v{vPE} offset:0",
                                         f"ds_read_b128 {V(RX+4,4)}, v{vPE} offset:1024",
                                         f"ds_read_b32 v5, v{vPz} offset:{L_EZ}"])
        for i in range(8):
            a(f"v_add_f32 v{RX+i}, v{RX+i}, v{D(0,0)+i}")
        for i in range(4):
            a(CVT(PK + i, RX + 2 * i, RX + 2 * i + 1))
        a(CVT(5, 5, 6))
        a(f"buffer_store_dwordx4 {V(PK,4)}, v{vL16}, {S(rWS,4)}, s{sT0} offen sc1")
        a(f"buffer_store_dword v5, v{vZo}, {S(rWS,4)}, s{sT1} offen sc1")
        self.stamp(3)
        self.stamp(3, 3)
        self.stamp(3, 4)
        if "X" in self.o("abl", ""):
            self.dump_stamps()
            a("s_endpgm")
        SEL, vEps = 208, 216
        su = ["v_and_b32 v3, 15, v2", "v_lshlrev_b32 v6, 2, v4", "v_sub_u32 v6, v3, v6",
              "v_mov_b32 v220, 0x3f80", "v_mov_b32 v221, 0x3f800000"]
        su += [f"v_mov_b32 v{SEL+i}, 0" for i in (0, 1, 4, 5)]
        for j in range(2):
            su += [f"v_cmp_eq_u32 vcc, {2*j}, v6", f"v_mov_b32 v{vEps+2*j}, s{sE}",
                   f"v_cndmask_b32 v{SEL+2+j}, v{SEL}, v220, vcc",
                   f"v_cmp_eq_u32 vcc, {2*j+1}, v6", f"v_mov_b32 v{vEps+2*j+1}, s{sE}",
                   f"v_cndmask_b32 v{SEL+2+j}, v{SEL+2+j}, v221, vcc"]
        NR, vRa = self.o("rep", 1), 232
        su += [f"s_mul_i32 s95, s{sHP}, {CSTR}\ns_add_u32 s95, s95, {WS_CNT}",
               f"v_mul_u32_u24 v{vRa}, {RSTR}, v2", f"v_lshrrev_b32 v233, {NR.bit_length()-1}, v2",
               f"v_lshl_add_u32 v{vRa}, v233, 26, v{vRa}",
               f"s_and_b32 s89, s{sRT}, {NR-1}\ns_mul_i32 s89, s89, {RSTR}\ns_add_u32 s89, s89, s95",
               f"s_lshl_b32 s{sT1}, s{sHead}, 11\ns_add_u32 s{sT1}, s{sT1}, {WS_ZP}",
               f"v_min_u32 v222, v{vEx}, v{vPE}", "v_mov_b32 v223, 1",
               (f"s_and_b32 s88, s{sRT}, 3\ns_lshl_b32 s88, s88, 12\ns_xor_b32 s96, s96, s88" if self.o("krot", 0) else ""),
               f"s_lshl1_add_u32 s{sT0}, s{sRT}, s{sMI}\ns_lshl_b32 s{sT0}, s{sT0}, 7",
               f"s_add_u32 s{sT0}, s{sT0}, s{sHead}\ns_lshl_b32 s{sT0}, s{sT0}, 10", f"s_add_u32 s{sT0}, s{sT0}, {WS_OF}"]
        vEB, vZc = 224, 228
        su += [f"v_mov_b32 v{vEB+i}, {EPSB}" for i in range(4)] + [f"v_mov_b32 v{vZc+i}, {fbits(2048*EPS)}" for i in range(4)]
        self.out(interleave(grp(1, 4, buf=WQ[0]) + grp(1, 5, buf=WQ[1]), su, 0, 1, 2))
        PQ = lambda mt: 24 + mt * 4
        tmp, PK = 76, 20
        pre1 = []
        for mt in range(4):
            if mt == self.o("arr1", 1):
                self.stamp(4, 3)
                self.arrive(vM, v1, vRa, LF_C1, 95, 3, sLast, 223)
                self.stamp(4)
                self.stamp(5, 3)
            for nt in range(2):
                s = AQ(mt, nt)
                if str(2 * mt + nt) in self.o("pp1", "x"):
                    self.poll_issue(vFo, 89, 234 + len(pre1), sLast)
                    pre1.append(234 + len(pre1))
                self.out(self.phi(s, tmp, sL))
                self.out([CVT(PQ(mt) + 2 * nt, s, s + 1), CVT(PQ(mt) + 2 * nt + 1, s + 2, s + 3)])
        self.stamp(6, 3)
        if self.o("cwait", 1) == 2:
            a(f"ds_write_b32 v{vLF}, v{v1} offset:{LF_PQ}")
        if "1" not in self.o("abl", ""):
            self.await_(vM, v1, vFo, LF_G1, 89, 238, sLast, 97, 71, 223, pre1)
        self.stamp(5)
        self.stamp(7, 3)
        PF, ZL, ZD, ZF, SD, KV = 132, 40, 48, 8, 56, 64
        DEN = lambda mt: 72 + 4 * mt
        for dt in range(2):
            a(f"buffer_load_dwordx4 {V(ZL+4*dt,4)}, v{vL16}, {S(rWS,4)}, s{sT1} offen offset:{1024*dt} sc1")
        lds_ = []
        for i in range(16):
            l = f"buffer_load_dwordx4 {V(PF+4*i,4)}, v{vL16}, {S(rWS,4)}, s96 offen offset:{(i%4)*1024} sc1"
            lds_.append((f"s_xor_b32 s96, s96, {4096 if i % 8 else 12288}\n" if i and i % 4 == 0 else "") + l)
        RL = self.o("rlead", 7)
        self.out(lds_[:RL])
        a(f"s_mul_i32 s95, s{sRT}, {CSTR}\ns_add_u32 s95, s95, {WS_CNT+16*CSTR}")
        self.stamp(8, 3)
        self.out([MF(ZD, ZL, vOne, V(vZc, 4)), MF(ZD + 4, ZL + 4, vOne, V(vZc, 4))])
        self.stamp(9, 3)
        zr = [[] for _ in range(32)]
        zr[3] = [CVT(ZF + i, ZD + 2 * i, ZD + 2 * i + 1) for i in range(4)]
        zr[4] = [MF(vEps, ZF, vEB)]
        zr[7] = [MF(DEN(mt), ZF, PQ(mt), V(vEps, 4)) for mt in range(4)]
        zr[10] = [f"v_rcp_f32 v{DEN(mt)}, v{DEN(mt)}" for mt in range(2)]
        zr[11] = [f"v_rcp_f32 v{DEN(mt)}, v{DEN(mt)}" for mt in range(2, 4)]
        sq = [f"v_mul_f32 v{DEN(mt)+1}, s{sE}, v{DEN(mt)}" for mt in range(4)]
        for mt in range(4):
            sq += [f"v_fma_f32 v{AQ(mt,0)+i}, v{AQ(mt,0)+i}, v{DEN(mt)}, v{DEN(mt)+1}" for i in range(8)]
            sq += [CVT(PQ(mt) + i, AQ(mt, 0) + 2 * i, AQ(mt, 0) + 2 * i + 1) for i in range(4)]
        for g in range(18):
            zr[12 + g] = sq[3 * g:3 * g + 3]
        for i in range(16):
            if i == self.o("pi", 10) and self.o("pause", 1):
                a(f"ds_write_b32 v{vLF}, v{v1} offset:{LF_PA}")
            a(MF(SD, SEL + 2, PF + 4 * i, "0" if i == 0 else None))
            self.out(zr[2 * i])
            a(MF(SD + 4, SEL, PF + 4 * i, "0" if i == 0 else None))
            if i + RL < 16:
                a(lds_[i + RL])
            self.out(zr[2 * i + 1])
        self.stamp(10, 3)
        for i in range(4):
            a(CVT(PK + i, SD + 2 * i, SD + 2 * i + 1))
        a(f"ds_write_b128 v{vEx}, {V(PK,4)} offset:0")
        a(f"ds_write_b32 v{vLF}, v{v1} offset:{LF_P2}")
        self.poll_lds(vPF, LF_P2, 1, 3, [f"ds_read_b128 {V(KV,4)}, v222 offset:0", f"ds_read_b128 {V(KV+4,4)}, v222 offset:2048"])
        self.stamp(11, 3)
        NUM = lambda mt, et: 100 + (mt * 2 + et) * 4
        OFR = lambda mt: 132 + 4 * mt
        self.out([MF(NUM(mt, et), KV + 4 * et, PQ(mt), "0") for mt in range(4) for et in range(2)])
        for mt in range(4):
            for i in range(4):
                a(CVT(OFR(mt) + i, NUM(mt, 0) + 2 * i, NUM(mt, 0) + 2 * i + 1))
            a(f"buffer_store_dwordx4 {V(OFR(mt),4)}, v{vL16}, {S(rWS,4)}, s{sT0} offen sc1")
            if mt < 3:
                a(f"s_add_u32 s{sT0}, s{sT0}, 32768")
        a(f"ds_write_b32 v{vLF}, v{v1} offset:{LF_OD}")
        self.stamp(6)
        self.stamp(12, 3)
        WB, vSo = 20, 8
        OR, OA, WF = 128, 32, [64, 80]

        def wreads(h):
            base = WO_SLOTS[h]
            win = min(base // 61440, 2)
            off = base - win * 61440
            assert off + 2048 < 65536
            return [f"ds_read_b64_tr_b16 {V(WF[h&1]+4*nt+2*t,2)}, v{WB+4*win+nt} offset:{off+2048*t}"
                    for nt in range(4) for t in range(2)]

        a("v_lshrrev_b32 v3, 2, v2\nv_bfe_u32 v5, v2, 3, 2")
        a("v_lshlrev_b32 v5, 5, v5\nv_lshl_add_u32 v5, v3, 7, v5")
        a(f"v_and_b32 v3, 3, v2\nv_lshl_add_u32 v{WB}, v3, 3, v5")
        for nt in range(4):
            if nt:
                a(f"v_xor_b32 v{WB+nt}, {32*nt}, v{WB}")
            for win in (1, 2):
                a(f"v_add_u32 v{WB+4*win+nt}, {win*61440}, v{WB+nt}")
        sO0, sO1 = 98, 99
        a(f"s_lshl2_add_u32 s88, s{sRT2}, s{sWave}\ns_lshl_b32 s{sO0}, s88, 16\ns_add_u32 s{sO0}, s{sO0}, {WS_OF}")
        a(f"s_add_u32 s{sO1}, s{sO0}, 32768")
        a(f"s_mul_i32 s96, s{sRT2}, {CSTR}\ns_add_u32 s96, s96, {WS_CNT+16*CSTR}")
        a(f"s_and_b32 s89, s{sCT}, {NR-1}\ns_mul_i32 s89, s89, {RSTR}\ns_add_u32 s96, s96, s89")
        def arrive2():
            self.stamp(13, 3)
            if "3" not in self.o("abl", ""):
                self.arrive(vM, v1, vRa, LF_C2, 95, 3, sLast)
            self.stamp(7)
            self.stamp(14, 3)
        if not self.scal(LF_C2):
            arrive2()
        pre2 = []
        if self.o("pp2", 0) >= 1:
            self.poll_issue(vFo, 96, 234, sLast)
            pre2.append(234)
        vEw, vEr = 9, 13
        a(f"v_sub_u32 v14, v{vEx}, v{vL16}")
        a("v_lshrrev_b32 v3, 3, v2\nv_and_b32 v5, 7, v2\nv_lshlrev_b32 v6, 4, v5")
        a(f"v_lshl_add_u32 v{vSo}, v3, 12, v6\nv_xor_b32 v6, v5, v3\nv_lshlrev_b32 v6, 4, v6")
        a(f"v_lshl_add_u32 v6, v3, 7, v6\nv_add_u32 v{vEr}, v14, v6")
        a("v_lshrrev_b32 v6, 1, v4\nv_xor_b32 v6, v6, v5\nv_lshlrev_b32 v6, 4, v6\nv_and_b32 v3, 15, v2")
        a(f"v_lshl_add_u32 v6, v3, 7, v6\nv_and_b32 v3, 1, v4\nv_lshl_add_u32 v6, v3, 3, v6\nv_add_u32 v{vEw}, v14, v6")
        for nt in range(1, 4):
            a(f"v_xor_b32 v{vEw+nt}, {32*nt}, v{vEw}")
        a(f"s_lshl_b32 s{sT0}, s88, 17\ns_lshl_b32 s{sT1}, s{sCT}, 7\ns_add_u32 s{sT0}, s{sT0}, s{sT1}")
        self.poll_lds(vM, LF_W0, 4, 3)
        if self.o("pp2", 0) >= 2:
            self.poll_issue(vFo, 96, 235, sLast)
            pre2.append(235)
        WF2 = (64, 72, 80, 88)

        def wr2(i):
            u, nt = divmod(i, 4)
            return [wreads(2 * u + hh)[2 * nt + t].replace(V(WF[hh] + 4 * nt + 2 * t, 2), V(WF2[i % 4] + 4 * hh + 2 * t, 2))
                    for hh in range(2) for t in range(2)]
        self.out(wr2(0) + wr2(1) if self.o("och", 1) else wreads(0))
        a("s_waitcnt lgkmcnt(0)")
        if self.scal(LF_C2):
            arrive2()
        if "2" not in self.o("abl", ""):
            self.await_(vM, v1, vFo, LF_G2, 96, 238, sLast, 97, 71, None, pre2)
        self.stamp(8)

        def oload(h):
            r = []
            if h and h % 4 == 0:
                r += [f"s_add_u32 s{sO0}, s{sO0}, 4096", f"s_add_u32 s{sO1}, s{sO1}, 4096"]
            for m_ in range(2):
                r.append(f"buffer_load_dwordx4 {V(OR+(h%8)*8+4*m_,4)}, v{vL16}, {S(rWS,4)}, s{sO0+m_} offen offset:{(h%4)*1024} sc1")
            return r

        if self.o("och", 1):
            LEAD = self.o("lead", 3)
            assert LEAD <= 3
            for h in range(2 * LEAD):
                self.out(oload(h))
            steps = [(u, nt) for u in range(16) for nt in range(4)]
            for i, (u, nt) in enumerate(steps):
                if nt == 2 and 2 * u + 2 == 14:
                    self.poll_lds(vM, LF_WA, 4, 3)
                if nt == 2 and 2 * u + 2 == NE:
                    self.poll_lds(vM, LF_WB, 4, 3)
                if i == 2:
                    self.cstamp(5)
                    self.stamp(13)
                if i == 32:
                    self.stamp(14)
                b = WF2[i % 4]
                mm = []
                for j, m_ in enumerate((0, 1) if nt % 2 == 0 else (1, 0)):
                    for k, hh in enumerate((0, 1) if j == 0 else (1, 0)):
                        mm.append(MF(OA + (m_ * 4 + nt) * 4, b + 4 * hh, OR + ((2 * u + hh) % 8) * 8 + 4 * m_,
                                     "0" if u == 0 and k == 0 else None))
                gaps = [[x] for x in wr2(i + 2)] if i + 2 < 64 else [[] for _ in range(4)]
                if u + LEAD < 16:
                    ld = oload(2 * (u + LEAD) + (nt >> 1))
                    if nt & 1 == 0:
                        gaps[0] += ld[:-2]
                    gaps[self.o("lg", 3)].append(ld[-2 + (nt & 1)])
                for m_, g_ in zip(mm, gaps):
                    a(m_)
                    self.out(g_)
        else:
            LEAD = self.o("lead", 5)
            assert LEAD <= 7
            for h in range(LEAD):
                self.out(oload(h))
            for h in range(32):
                if h + 1 == 14:
                    self.poll_lds(vM, LF_WA, 4, 3)
                if h + 1 == NE:
                    self.poll_lds(vM, LF_WB, 4, 3)
                mm = [MF(OA + (m_ * 4 + nt) * 4, WF[h & 1] + 4 * nt, OR + (h % 8) * 8 + 4 * m_, "0" if h == 0 else None)
                      for nt in range(4) for m_ in ((0, 1) if nt % 2 == 0 else (1, 0))]
                rd = wreads(h + 1) if h < 31 else []
                ld = oload(h + LEAD) if h + LEAD < 32 else []
                if h == 1:
                    self.cstamp(5)
                    self.stamp(13)
                if h == 16:
                    self.stamp(14)
                gaps = [[] for _ in range(8)]
                g0, g1 = divmod(self.o("lg", 37), 10)
                for r_, g_ in zip(rd, range(8)):
                    gaps[g_].append(r_)
                if ld:
                    gaps[0] += ld[:-2]
                    gaps[g0].append(ld[-2])
                    gaps[g1].append(ld[-1])
                if h == max(self.o("yh", -1), self.o("ys", -1)):
                    gaps[0].append(f"ds_write_b32 v{vLF}, v{v1} offset:{LF_YG}")
                for m_, g_ in zip(mm, gaps):
                    a(m_)
                    self.out(g_)
        self.stamp(9)
        self.cstamp(7)
        ST, SO = 64, 128
        for m_ in range(2):
            for nt in range(4):
                s, d = OA + (m_ * 4 + nt) * 4, ST + (m_ * 4 + nt) * 2
                self.out([CVT(d, s, s + 1), CVT(d + 1, s + 2, s + 3), f"ds_write_b64 v{vEw+nt}, {V(d,2)}"])
            for j in range(2):
                a(f"ds_read_b128 {V(SO+(m_*2+j)*4,4)}, v{vEr} offset:{1024*j}")
        for j in range(4):
            a(f"buffer_store_dwordx4 {V(SO+4*j,4)}, v{vSo}, {S(rO,4)}, s{sT0} offen {self.o('fa', 'nt').replace('+', ' ')}")
            if j < 3:
                a(f"s_add_u32 s{sT0}, s{sT0}, {8*4096}")
        self.dump_stamps()
        a.label("L_end")
        a("s_endpgm")

    def helper(self):
        a = self.a
        sched = self.sched
        sW4, sXo, sWo_, sLb = 64, 65, 66, 67
        sT0, sT1, sD, sScr, sUc, sST, sDG, sT2, sPX, sPW, sWB, sUo = range(88, 100)
        vFo, vX, vW, vWo, vL16, vPX, vPW, vU = 7, 8, 9, 10, 11, 12, 13, 14
        UTR, USG = 240, 4352
        sU1, sU2 = 24, 25
        vmq = []

        def emit(l, tag=None):
            n0 = len(a.ins)
            a(l)
            vmq.extend(tag for x in a.ins[n0:] if x.kind == "vmem")

        def wait_tag(tag):
            last = max(i for i, t in enumerate(vmq) if t == tag)
            a(f"s_waitcnt vmcnt({len(vmq)-1-last})")

        def run(lst):
            for l in lst:
                if isinstance(l, list):
                    run(l)
                elif isinstance(l, tuple):
                    if l[0] == "WAIT":
                        wait_tag(l[1])
                    else:
                        emit(l[0], l[1])
                else:
                    emit(l)

        uearly = "U" in sched["p"] and not self.o("uhack", 0)
        explicit = {int(o[1:]) for v in sched.values() for o in v if o[0] == "S"}
        done = set()

        def once(key, lst):
            if key in done:
                return []
            done.add(key)
            return lst

        def setup_ring():
            return once("ring", self.ids1(sT0) + [
                "v_bfe_u32 v4, v0, 3, 5", "v_lshrrev_b32 v5, 1, v4", "v_xor_b32 v6, v5, v2", "v_and_b32 v6, 7, v6",
                "v_lshlrev_b32 v6, 4, v6", f"v_lshl_add_u32 v{vX}, v4, 11, v6",
                "v_and_b32 v5, 4, v5", "v_and_or_b32 v5, v4, 2, v5", "v_xor_b32 v5, v5, v2", "v_and_b32 v5, 7, v5",
                "v_mul_u32_u24 v6, 6144, v4", f"v_lshl_add_u32 v{vW}, v5, 4, v6",
                f"s_lshl_b32 s{sXo}, s{sRT}, 18", f"s_lshl_b32 s{sWo_}, s{sHP}, 7"])

        def setup_touch():
            return once("touch", [
                "v_and_b32 v5, 3, v2", "v_lshlrev_b32 v5, 7, v5", "v_lshrrev_b32 v6, 2, v2",
                f"v_lshl_add_u32 v{vPW}, v6, 11, v5", f"v_lshl_add_u32 v{vPX}, v3, 26, v{vPW}",
                f"s_lshr_b32 s{sT0}, s2, 3", f"s_lshl2_add_u32 s{sT0}, s{sT0}, s{sW4}",
                f"s_and_b32 s{sT1}, s2, 1", bfe(sT2, 2, 1, 2),
                f"s_mul_i32 s{sPW}, s{sT0}, 24", f"s_add_u32 s{sPW}, s{sPW}, s{sT2}", f"s_lshl_b32 s{sPW}, s{sPW}, 9",
                f"s_lshl2_add_u32 s{sPX}, s{sT1}, s{sT2}", f"s_lshl_b32 s{sPX}, s{sPX}, 7", f"s_add_u32 s{sPX}, s{sPX}, s{sT0}",
                f"s_lshl_b32 s{sPX}, s{sPX}, 12",
                f"s_mul_i32 s{sT1}, s{sT1}, 12", f"s_lshl_b32 s{sT1}, 0xfff, s{sT1}",
                f"s_or_b32 vcc_lo, s{sT1}, {0x888888 if self.o('fixw', 1) else 0}", "s_mov_b32 vcc_hi, 0", "v_mov_b32 v5, 0x4000000",
                f"v_cndmask_b32 v{vPW}, v5, v{vPW}, vcc"])

        def setup_u():
            return once("u", [
                f"s_lshr_b32 s{sST}, s2, 4", f"s_and_b32 s{sDG}, s2, 15",
                "v_and_b32 v5, 3, v2", "v_lshlrev_b32 v5, 4, v5", "v_lshrrev_b32 v6, 2, v2", f"v_lshl_add_u32 v{vU}, v6, 11, v5",
                *([f"s_and_b32 s{sU1}, s2, 31", f"s_lshr_b32 s{sT0}, s2, 5", f"s_lshl2_add_u32 s{sU2}, s{sT0}, s{sW4}"]
                  if self.o("umap", 1) else
                  [f"s_lshr_b32 s{sT0}, s{sW4}, 1", f"s_lshl1_add_u32 s{sU1}, s{sST}, s{sT0}",
                   f"s_and_b32 s{sT0}, s{sW4}, 1", f"s_lshl1_add_u32 s{sU2}, s{sDG}, s{sT0}"]),
                f"s_lshl_b32 s{sUo}, s{sU1}, 11", f"s_add_u32 s{sUo}, s{sUo}, s{sU2}", f"s_lshl_b32 s{sUo}, s{sUo}, 6"])

        UP = 4096 if uearly else 1024

        def setup_t():
            return once("t", [
                srd(rWS, pWs, WS_SIZE), f"s_lshl2_add_u32 s{sD}, s2, s{sW4}", f"s_mul_i32 s{sScr}, s{sW4}, {SCR}",
                f"v_lshlrev_b32 v{vFo}, 26, v2",
                "v_and_b32 v4, 1, v2", f"v_mul_u32_u24 v4, {2*UP}, v4", "v_bfe_u32 v5, v2, 2, 2", "v_lshl_add_u32 v4, v5, 6, v4",
                "v_and_b32 v5, 48, v2", "v_and_b32 v6, 2, v2", "v_lshl_add_u32 v5, v6, 2, v5",
                f"s_add_u32 s{sT0}, s{sLb}, {SL(2)}" if uearly else f"s_add_u32 s{sT0}, s{sScr}, {USG}",
                f"v_add3_u32 v17, v4, v5, s{sT0}",
                "v_and_b32 v6, 7, v2", "v_lshlrev_b32 v5, 4, v6", "v_lshl_add_u32 v18, v3, 14, v5"])

        bX, bW, bO, bF, bG = 18, 20, 22, 26, 28

        covered = {int(o[1]) for v in sched.values() for o in v if o[0] == "A"}
        k0 = self.o("spk", 4 * (max(covered) + 1) if covered else 2)

        def setup_sp():
            return once("sp", setup_touch() + kwait() + [
                f"s_add_u32 s{bX}, s{pX}, s{sPX}", f"s_addc_u32 s{bX+1}, s{pX+1}, 0",
                f"s_lshr_b32 s{sT0}, s2, 3", f"s_and_b32 s{sT1}, s2, 1", f"s_lshl1_add_u32 s{sT0}, s{sT0}, s{sT1}",
                f"s_add_u32 s{sT0}, s{sT0}, {64*k0}", f"s_mul_i32 s{sT0}, s{sT0}, 12", bfe(sT1, 2, 1, 2),
                f"s_add_u32 s{sT0}, s{sT0}, s{sT1}", f"s_lshl2_add_u32 s{sT0}, s{sT0}, s{sW4}", f"s_lshl_b32 s{sT0}, s{sT0}, 7",
                f"s_add_u32 s{bW}, s{pW}, s{sT0}", f"s_addc_u32 s{bW+1}, s{pW+1}, 0",
                f"s_lshr_b32 s{sT0}, s2, 3", f"s_andn2_b32 s{sT2}, 1, s2", f"s_lshl1_add_u32 s{sT0}, s{sT0}, s{sT2}",
                f"s_add_u32 s{sT0}, s{sT0}, {64*k0}", f"s_mul_i32 s{sT0}, s{sT0}, 12", f"s_add_u32 s{sT0}, s{sT0}, s{sT1}",
                f"s_min_u32 s{sT2}, s{sW4}, 2", f"s_lshl2_add_u32 s{sT0}, s{sT2}, s{sT0}", f"s_lshl_b32 s{sT0}, s{sT0}, 9",
                f"s_add_u32 s{bF}, s{pW}, s{sT0}", f"s_addc_u32 s{bF+1}, s{pW+1}, 0",
                f"s_lshl2_add_u32 s{sT0}, s2, s{sW4}", f"s_lshl_b32 s{sT0}, s{sT0}, 7",
                f"s_add_u32 s{bO}, s{pWo}, s{sT0}", f"s_addc_u32 s{bO+1}, s{pWo+1}, 0"])
        assert k0 == 8

        def sp_trip():
            ld = lambda b, off: f"s_load_dwordx2 s[16:17], {S(b,2)}, {off+60}"
            r = []
            for i in range(2):
                r += [ld(bW, i * 64 * 6144 + sec * 2048) for sec in range(3)] + [ld(bX, rr * 2048 + (k0 + i) * 128) for rr in range(2)]
                r.append(ld(bF, (i - 1) * 64 * 6144 + 384) if self.o("fixs", 1) else "")
            r[-1] += (f"\ns_add_u32 s{bW}, s{bW}, {128*6144}\ns_addc_u32 s{bW+1}, s{bW+1}, 0"
                      f"\ns_add_u32 s{bF}, s{bF}, {128*6144}\ns_addc_u32 s{bF+1}, s{bF+1}, 0"
                      f"\ns_add_u32 s{bX}, s{bX}, 256\ns_addc_u32 s{bX+1}, s{bX+1}, 0")
            return r

        sTrip, sUcnt = 30, 31

        def setup_rest():
            return setup_ring() + setup_touch() + setup_u() + setup_t() + setup_sp() + once("rest", [
                srd(rO, pOut, 8 << 20), srd(rWo, pWo, 2 << 20),
                f"s_lshr_b32 s{sUcnt}, s2, 5", f"s_mul_i32 s{sUcnt}, s{sUcnt}, {CSTR}",
                f"s_add_u32 s{sUcnt}, s{sUcnt}, {WS_CNT+48*CSTR}", f"s_mov_b32 s{sTrip}, 0",
                "v_mov_b32 v4, 0", "v_mov_b32 v6, 1"]) + once("l16", [f"v_lshlrev_b32 v{vL16}, 4, v2"])

        def kwait():
            return once("k", ["s_waitcnt lgkmcnt(0)", srd(rX, pX, 4 << 20), srd(rW, pW, 6 << 20)])

        def stage(k, kb=0):
            sl = SL(k % 3)
            tag, k = ("st", k), k - kb
            r = []
            for j in range(4):
                r.append([f"s_add_u32 m0, s{sLb}, {sl+j*4096}", f"s_add_u32 s{sT0}, s{sXo}, {k*128+j*32*2048}",
                          (f"buffer_load_dwordx4 v{vX}, {S(rX,4)}, s{sT0} offen {self.o('fr', '').replace('+', ' ')} lds", tag)])
            for sec in range(3):
                for j in range(2):
                    r.append([f"s_add_u32 m0, s{sLb}, {sl+16384+sec*8192+j*4096}",
                              f"s_add_u32 s{sT0}, s{sWo_}, {(k*64+j*32)*6144+sec*2048}",
                              (f"buffer_load_dwordx4 v{vW}, {S(rW,4)}, s{sT0} offen {self.o('fr', '').replace('+', ' ')} lds", tag)])
            return r

        def tok(o):
            if "U" in self.o("abl", "") and (o == "U" or o[0] == "t"):
                return []
            if "U" in self.o("abl", "") and o == "T":
                return setup_u() + [x for x in tok0(o) if not isinstance(x, tuple) and "dpp" not in x and "ds_read" not in x]
            return tok0(o)

        def tok0(o):
            if o[0] == "A":
                q = int(o[1])
                return setup_touch() + kwait() + [
                    f"s_add_u32 s{sT0}, s{sPX}, {q*512}", f"buffer_load_dword v16, v{vPX}, {S(rX,4)}, s{sT0} offen",
                    f"s_add_u32 s{sT0}, s{sPW}, {q*256*6144}", f"buffer_load_dword v16, v{vPW}, {S(rW,4)}, s{sT0} offen"]
            if o[0] == "S":
                return setup_ring() + kwait() + stage(int(o[1:]))
            if o == "R":
                return setup_rest()
            if o == "F":
                return setup_rest() + [f"global_load_dword v5, v4, {S(pDbg,2)} sc1"]
            if o[0] == "a":
                n = int(o[1:])
                r = setup_t() + once("l16", [f"v_lshlrev_b32 v{vL16}, 4, v2"]) + adq[:n]
                del adq[:n]
                return r
            if o == "U":
                r = kwait() + setup_u() + [srd(rU, pU, 4 << 20)]
                for j in range(4):
                    r += [f"s_add_u32 m0, s{sLb}, {SL(2)+j*4096}" if uearly else f"s_add_u32 m0, s{sScr}, {USG+j*1024}",
                          f"s_add_u32 s{sT0}, s{sUo}, {j*16*2048}",
                          (f"buffer_load_dwordx4 v{vU}, {S(rU,4)}, s{sT0} offen lds", "ut")]
                return r
            if o == "T":
                r = setup_t() + [("WAIT", "ut")]
                r += [f"ds_read_b64_tr_b16 {V(UTR+4*k+2*t,2)}, v17 offset:{(k>>1)*UP+(k&1)*512+256*t}" for k in range(4) for t in range(2)]
                r += [
                      f"s_lshl_b32 s{sUo}, s{sU2}, 10", f"s_add_u32 s{sUo}, s{sUo}, s{sU1}", f"s_lshl_b32 s{sUo}, s{sUo}, 7"]
                return r + self.quad_t(UTR, UTR - 16)
            if o[0] == "t":
                k = int(o[1])
                return [f"s_add_u32 s{sT2}, s{sUo}, {WS_UT+k*4096}",
                        f"buffer_store_dwordx4 {V(UTR+4*k,4)}, v18, {S(rWS,4)}, s{sT2} offen sc1"]
            if o == "W":
                return ["v_and_b32 v4, 15, v2", "v_lshlrev_b32 v4, 7, v4", f"s_lshl_b32 s{sT1}, s{sD}, 11",
                        f"buffer_load_dword v16, v4, {S(rWo,4)}, s{sT1} offen"]
            raise ValueError(o)

        vKA, vUA, vMy, vOob = 30, 31, 27, 26
        WL, BK, BD, CA = 40, 72, 88, 96
        AS, A32, BS, BH, GT = [128, 148], 144, [164, 196], 228, 244
        ad = ["\n".join(self.ids2(sWB)), f"s_lshl_b32 s{sWB}, s{sCT}, 7",
              f"s_mul_i32 s{sUc}, s{sW4}, {UC}", f"s_add_u32 s{sUc}, s{sUc}, {L_UC}",
              f"v_add_u32 v20, s{sScr}, v{vL16}", f"v_lshl_add_u32 v19, v2, 3, s{sScr}",
              "v_min_u32 v32, 1, v2", "v_lshl_add_u32 v32, v32, 2, v19", "v_add_u32 v32, 1024, v32",
              f"v_mov_b32 v33, {TB+2044}", f"v_add_u32 v33, s{sScr}, v33",
              "v_and_b32 v28, 15, v2", "v_lshrrev_b32 v29, 4, v2", "v_lshlrev_b32 v34, 2, v29", "v_sub_u32 v34, v28, v34",
              f"v_lshl_add_u32 v35, v34, 3, s{sScr}", f"v_add_u32 v35, {TB+2048+4-24}, v35"]
        nad0 = len(ad)
        ad += ["v_and_b32 v21, 6, v3", "v_xor_b32 v21, v21, v2", "v_and_b32 v21, 7, v21", "v_lshlrev_b32 v21, 4, v21",
               f"v_lshl_add_u32 v{vWo}, v3, 11, v21",
               "v_mov_b32 v21, 1024", f"v_add_u32 v21, s{sScr}, v21", f"v_sub_u32 v22, v21, v{vL16}",
               "v_lshlrev_b32 v23, 3, v2", "v_sub_u32 v21, v21, v23",
               "v_min_u32 v23, 19, v2", "v_lshrrev_b32 v24, 2, v23", "v_and_b32 v25, 3, v23",
               f"v_mul_u32_u24 v23, {RCS}, v24", "v_lshl_add_u32 v23, v25, 4, v23", f"v_add_u32 v23, s{sScr}, v23",
               "v_lshlrev_b32 v36, 4, v24", "v_lshlrev_b64 v[36:37], v36, -1",
               "v_add_u32 v25, 1, v25", "v_bfe_i32 v38, v25, 2, 1", "v_and_b32 v36, v36, v38", "v_and_b32 v37, v37, v38",
               "v_and_b32 v15, 3, v2", f"v_mul_u32_u24 v{vKA}, {RCS}, v15", "v_and_b32 v15, 48, v2",
               f"v_add3_u32 v{vKA}, v{vKA}, v15, s{sScr}", f"v_lshl_add_u32 v{vUA}, v28, 5, v15", f"v_add_u32 v{vUA}, s{sUc}, v{vUA}",
               "v_and_b32 v15, 12, v2", "v_lshlrev_b32 v15, 1, v15", "v_sub_u32 v15, 24, v15", f"v_add_u32 v{vKA}, v{vKA}, v15",
               f"v_mov_b32 v{vOob}, 0x4000000", f"v_mov_b32 v15, {L_MISC-16}", f"v_lshl_add_u32 v{vMy}, v1, 2, v15",
               "v_mov_b32 v15, 1", "v_mov_b32 v25, 0", "v_lshlrev_b32 v29, 3, v29"]
        for b, w in enumerate((3, 4)):
            ad += [f"v_mov_b32 v39, {((1 << (2*w+1)) - 1) << (8-w)}", "v_lshlrev_b32 v39, v28, v39", "v_lshrrev_b32 v39, v29, v39"]
            for st_ in range(4):
                for j in range(4):
                    d = BD + 4 * b + j
                    ad.append([f"v_bfe_u32 v{d}, v39, {2*j}, 2", f"v_mul_u32_u24 v{d}, 0x8001, v{d}",
                               f"v_and_b32 v{d}, 0x10001, v{d}", f"v_mul_u32_u24 v{d}, 0x3f80, v{d}"][st_])
        P0, K0, X1, Y1, X2, Y2, HD, RB = 128, 132, 136, 140, 144, 228, 146, 164
        exr = [f"ds_read_b128 {V(P0,4)}, v20 offset:{TB-16}", f"ds_read_b128 {V(K0,4)}, v20 offset:{TB}",
               f"ds_read2_b32 {V(X1,2)}, v32 offset0:{(TB-12)//4} offset1:{(TB-8)//4}", f"ds_read_b32 v{X1+2}, v32 offset:{TB-4}",
               f"ds_read_b64 {V(Y1,2)}, v19 offset:{TB+1024}", f"ds_read_b32 v{Y1+2}, v19 offset:{TB+1024+8}",
               f"ds_read2_b32 {V(X2,2)}, v32 offset0:{(TB+512-8)//4} offset1:{(TB+512-4)//4}",
               f"ds_read_b64 {V(Y2,2)}, v19 offset:{TB+1536}", f"ds_read_b32 v{Y2+2}, v19 offset:{TB+1536+8}",
               f"ds_read2_b32 {V(HD,2)}, v33 offset0:0 offset1:1"]
        exr += [f"ds_read2_b32 {V(RB+8*kp+2*r,2)}, v35 offset0:{32*kp+2*(3-r)} offset1:{32*kp+2*(3-r)+1}"
                for kp in range(4) for r in range(4)]
        ex = [CVT(BK + 4 * kp + r, RB + 8 * kp + 2 * r, RB + 8 * kp + 2 * r + 1) for kp in range(4) for r in range(4)]
        for r in range(4):
            ex.append(f"v_cmp_gt_i32 vcc, {r}, v34\ns_nop 1\nv_cndmask_b32 v{BK+r}, v{BK+r}, v25, vcc")
        HO = 148
        ex += [f"v_cmp_eq_u32 vcc, 0, v24\n{CVT(HO+2, HD+1, HD+1)}\nv_and_b32 v{HO}, v{HO+2}, v36\n"
               f"v_cndmask_b32 v{HD}, v{HD+1}, v{HD}, vcc",
               "v_cmp_eq_u32 vcc, 0, v2", CVT(HO + 3, HD + 1, HD), f"v_and_b32 v{HO+1}, v{HO+2}, v37",
               f"v_and_b32 v{HO+2}, v{HO+2}, v38", f"v_and_b32 v{HO+3}, v{HO+3}, v38"]
        ex += [f"v_cndmask_b32 v{P0+i}, v{P0+i}, v25, vcc" for i in (1, 2, 3)]
        exw = [f"ds_write_b128 v23, {V(HO,4)}"]
        q0 = [P0 + 1, P0 + 2, P0 + 3, K0, K0 + 1, K0 + 2, K0 + 3]
        q1 = [X1, X1 + 1, X1 + 2, Y1, Y1, Y1 + 1, Y1 + 2]
        q2 = [X2, X2 + 1] + [Y2] * 4 + [Y2 + 1] * 3 + [Y2 + 2] * 2
        for dl in range(4):
            d, o = BS[1] + 8 * dl, dl * RCS
            for dd, q, n in ((d, q0, 4), (d + 2, q1, 4), (d + 4, q2, 8)):
                rv = q[dl:dl + n][::-1]
                ex += [CVT(dd + i, rv[2 * i], rv[2 * i + 1]) for i in range(n // 2)]
            exw += [f"ds_write_b64 v21, {V(d,2)} offset:{o+2104-1024}", f"ds_write_b64 v21, {V(d+2,2)} offset:{o+1592-1024}",
                    f"ds_write_b128 v22, {V(d+4,4)} offset:{o+1072-1024}"]
        adq = list(ad)
        a.label("L_helper")
        a(f"s_sub_u32 s{sW4}, s{sWave}, 4\ns_lshl_b32 s{sLb}, s{sW4}, 10\nv_lshrrev_b32 v3, 3, v2")
        flat = sched["p"] + sched.get(0, []) + ["S2"]
        assert "W" not in sched["p"]
        assert self.o("uhack", 0) or (flat.index("T") < flat.index("S2") if uearly else "U" not in flat)
        if self.o("uhack", 0):
            a(f"s_mul_i32 s{sScr}, s{sW4}, {SCR}")
        for o in sched["p"]:
            run(tok(o))
        run(setup_rest())
        self.prof_init()
        self.stamp(9)

        uc = [[f"s_lshl_b32 s{sT1}, s{sD}, 12", f"s_add_u32 s{sT1}, s{sT1}, {WS_UT}", f"s_mov_b32 m0, s{sUc}",
               (f"buffer_load_dwordx4 v{vOob}, {S(rWS,4)}, 0 offen lds", "uc"), f"s_add_u32 m0, s{sUc}, 480",
               f"s_lshl_b32 s{sPX}, s{sW4}, 16", f"s_add_u32 s{sPX}, s{sPX}, s{sWB}",
               f"s_lshl_b32 s{sPW}, s{sW4}, 14", f"s_add_u32 s{sPW}, s{sPW}, s{sWB}", f"v_mov_b32 v14, {L_MISC}"]]
        uc += [(f"buffer_load_dwordx4 v{vL16}, {S(rWS,4)}, s{sT1} offen offset:{1024*k} sc1 lds", "uc") for k in range(4)]
        wlate = [f"s_add_u32 s{sT0}, s{sPX}, {(NE+4*j)*65536+pc*16384}\n"
                 f"buffer_load_dwordx4 {V(WL+16*j+4*pc,4)}, v{vWo}, {S(rWo,4)}, s{sT0} offen"
                 for j in range(2) for pc in range(4)]

        def wo_dma(h):
            return (f"s_add_u32 m0, s{sLb}, {WO_SLOTS[h]}\ns_add_u32 s{sT0}, s{sPW}, {h*65536}\n"
                    f"buffer_load_dwordx4 v{vWo}, {S(rWo,4)}, s{sT0} offen {self.o('fr', '').replace('+', ' ')} lds")

        def barrier(k):
            if self.prof >= 20 and isinstance(k, int) and 0 <= k - 3 * (self.prof - 20) < 3:
                j = k - 3 * (self.prof - 20)
                a(f"s_memtime {S(72 + 4 * j, 2)}\ns_barrier\ns_memtime {S(74 + 4 * j, 2)}")
                return
            a("s_barrier")
            if self.prof in (6, 7, 8) and isinstance(k, int) and 0 <= k - 6 * (self.prof - 6) < 7:
                a(f"s_memtime {S(72 + 2 * (k - 6 * (self.prof - 6)), 2)}")

        assert explicit == {0, 1}
        kt = [k for k, v in sched.items() if "t3" in v][0]
        if kt == "p":
            assert sched["p"].index("t3") < sched["p"].index("S1")
            atrip = 0
        else:
            atrip = (kt + 3) // 3
            assert atrip < 3 and all(o[0] == "t" for k, v in sched.items() if k != "p" for o in v)
        usc = "u" in self.o("sat", "u12y")
        assert not usc or "F" in sched["p"]
        wait_tag(("st", 0))
        loop, wsc, wl = self.o("hloop", 1), self.o("wsc", 1), self.o("wl", 2)
        worder = [p for p in list(range(7)) + list(range(12, 16)) + list(range(7, 12)) if p >= 4 * wl] if wsc else []

        def wpf(st, n):
            ps = [worder.pop(0) for _ in range(min(n, len(worder)))]
            x = [f"s_load_dwordx2 s[16:17], {S(bO,2)}, {(p-8)*131072+60}" for p in ps]
            return interleave(st, x, 1, 2, 1)
        for trip in range(1 if loop else 4):
            if loop:
                a(".p2align 3")
                a.label("L_hloop")
            x = sp_trip()
            for i in range(3):
                barrier(None if loop else 3 * trip + i)
                if i == 0 and trip == 0:
                    self.stamp(1, 1 if not loop else 99)
                xi = x[4 * i:4 * i + 4]
                pos = (1, 3, 6, 8)
                if wsc and i >= 3 - wl:
                    xi.insert(2, f"s_load_dwordx2 s[16:17], {S(bO,2)}, 60"
                                 f"\ns_add_u32 s{bO}, s{bO}, 131072\ns_addc_u32 s{bO+1}, s{bO+1}, 0")
                    pos = (0, 2, 4, 6, 8)
                st = stage(2 + i)
                run([y for j, d in enumerate(st) for y in [d] + ([xi[pos.index(j)]] if j in pos else [])])
                for tr in range(4):
                    if 3 * tr + i in sched:
                        l = self.lab("ts")
                        a(f"s_cmp_lg_u32 s{sTrip}, {tr}\ns_cbranch_scc1 {l}")
                        for o in sched[3 * tr + i]:
                            self.out(tok(o))
                        a.label(l)
                if usc and i == 1:
                    l = self.lab("ev")
                    a(f"s_xor_b32 s{sT0}, s{sTrip}, {atrip}\ns_or_b32 s{sT0}, s{sT0}, s{sW4}")
                    a(f"s_cbranch_scc1 {l}")
                    l2, l3 = self.lab("evs"), self.lab("evd")
                    a(f"s_mov_b32 s{sT1}, {SPIN}\ns_mov_b32 s39, 1 ; nowait")
                    a.label(l2)
                    a("v_cmp_ne_u32 vcc, 0, v5")
                    a(f"s_cbranch_vccnz {l3}")
                    a(f"global_load_dword v5, v4, {S(pDbg,2)} sc1")
                    a(f"s_sub_u32 s{sT1}, s{sT1}, 1")
                    a("s_waitcnt vmcnt(0)")
                    a(f"s_cbranch_scc0 {l2}")
                    a.label(l3)
                    a(f"s_atomic_add s39, {S(pWs,2)}, s{sUcnt} ; nowait")
                    a.label(l)
                if not usc and (i == 0 or i == 2):
                    l = self.lab("ev")
                    if atrip:
                        a(f"s_xor_b32 s{sT0}, s{sTrip}, {atrip}\ns_or_b32 s{sT0}, s{sT0}, s{sW4}")
                    else:
                        a(f"s_or_b32 s{sT0}, s{sTrip}, s{sW4}")
                    a(f"s_cbranch_scc1 {l}")
                    if i == 0:
                        a(f"global_load_dword v5, v4, {S(pDbg,2)} sc1")
                    else:
                        l2, l3 = self.lab("evs"), self.lab("evd")
                        a(f"s_mov_b32 s{sT1}, {SPIN}")
                        a.label(l2)
                        a("v_cmp_ne_u32 vcc, 0, v5")
                        a(f"s_cbranch_vccnz {l3}")
                        a(f"global_load_dword v5, v4, {S(pDbg,2)} sc1")
                        a(f"s_sub_u32 s{sT1}, s{sT1}, 1")
                        a("s_waitcnt vmcnt(0)")
                        a(f"s_cbranch_scc0 {l2}")
                        a.label(l3)
                        a(f"buffer_atomic_add v6, v{vFo}, {S(rWS,4)}, s{sUcnt} offen sc1")
                    a.label(l)
                if i == 2:
                    a(f"s_add_u32 s{sXo}, s{sXo}, {3*128}\ns_add_u32 s{sWo_}, s{sWo_}, {3*64*6144}")
                    a(f"s_add_u32 s{sTrip}, s{sTrip}, 1\ns_cmp_lt_u32 s{sTrip}, 4")
                a("s_waitcnt vmcnt(10)")
            if loop:
                a("s_cbranch_scc1 L_hloop")
        barrier(12)
        l = self.lab("ev")
        a(f"s_cmp_lg_u32 s{sW4}, 0\ns_cbranch_scc1 {l}")
        a(f"buffer_load_dword v5, v{vFo}, {S(rWS,4)}, s{sUcnt} offen sc1")
        a.label(l)
        a(f"s_load_dwordx2 s[16:17], {S(bF,2)}, {-64*6144+384+60}")
        n = -(-len(adq) // 20)
        if wsc and wl != 2:
            d_ = (8 - 4 * wl) * 131072
            a(f"s_add_u32 s{bO}, s{bO}, {d_}\ns_addc_u32 s{bO+1}, s{bO+1}, 0" if d_ > 0 else
              f"s_sub_u32 s{bO}, s{bO}, {-d_}\ns_subb_u32 s{bO+1}, s{bO+1}, 0")
        wn = self.o("wn", 4)
        st = wpf(stage(14, 12), wn)
        xe = self.o("xe", 0)
        n12, n13 = (self.o("n12", 8), self.o("n13", 8)) if xe else (0, 0)
        run(interleave(st, adq[:10 * n], 0, 1, n))
        run(exr[:n12])
        a("s_waitcnt vmcnt(10)")
        barrier(13)
        run(interleave(wpf(stage(15, 12), wn), adq[10 * n:], 0, 1, n))
        run(exr[n12:n12 + n13])
        exr = exr[n12 + n13:]
        if not wsc:
            run(tok("W"))
        wait_tag(("st", 14))
        l, l2 = self.lab("ev"), self.lab("evs")
        a(f"s_cmp_lg_u32 s{sW4}, 0\ns_cbranch_scc1 {l}")
        a(f"s_mov_b32 s{sT1}, {SPIN}")
        a.label(l2)
        a(f"v_readfirstlane_b32 s{sT0}, v5")
        a(f"s_cmp_ge_u32 s{sT0}, 32")
        a(f"s_cbranch_scc1 {l}")
        a("v_mov_b32 v5, 0")
        a(f"buffer_atomic_add v5, v{vFo}, {S(rWS,4)}, s{sUcnt} offen sc0 sc1")
        a(f"s_sub_u32 s{sT1}, s{sT1}, 1")
        a("s_waitcnt vmcnt(0)")
        a(f"s_cbranch_scc0 {l2}")
        a.label(l)
        barrier(14)
        self.stamp(7)
        ne0 = self.o("ne0", 4)
        run(wpf(uc + [wo_dma(h) for h in range(ne0)], wn))
        nr = self.o("nr", 0) if not xe else len(exr)
        run(exr[:nr])
        wait_tag(("st", 15))
        barrier(15)
        if xe:
            run(interleave([(wo_dma(h), "e1") for h in range(ne0, 14)], ex, 0, 1, 4))
            ex = []
        else:
            run(wpf([(wo_dma(h), "e1") for h in range(ne0, 14)], wn))
        assert not worder
        self.stamp(8)
        e2 = [wo_dma(h) for h in range(14, NE)]
        if xe:
            run(interleave(wlate, exw, 0, 1, 2) if xe == 1 else wlate + exw)
        else:
            run(interleave(wlate, exr[nr:], 0, 1, 3))
            run(ex + exw)
        paced = e2
        wait_tag("e1")
        self.lds_inc(14, 15, LF_W0)
        def creads(p0):
            s = p0 & 1
            ra = lambda d, p: [f"ds_read_b64 {V(d+2*t,2)}, v{vKA} offset:{2048-64*p+8*t}" for t in range(2)]
            rb = lambda d, off: [f"ds_read_b128 {V(d,4)}, v{vUA} offset:{off}"]
            r = []
            for i in range(8):
                x = ra(AS[s] + 4 * i, 8 * i + p0) if i < 4 else (ra(A32, 32) if i == 4 and p0 == 0 else [])
                y = rb(BS[s] + 4 * i, 512 * i + 448 - 64 * p0)
                r += (x + y) if i == 0 else (y + x)
                if p0 == 0 and i < 4:
                    r += rb(BH + 4 * i, 512 * i + 448 - 16)
            return r

        def cmf(p0):
            s = p0 & 1
            m = []
            for n in range(8):
                for p1 in range(min(n, 3) + 1):
                    m.append(MF(CA + 4 * n, AS[s] + 4 * p1, BS[s] + 4 * (n - p1), "0" if p0 == 0 and p1 == 0 else None))
                if p0 == 0 and n >= 4:
                    m.append(MF(CA + 4 * n, A32, BS[0] + 4 * (n - 4)))
                if p0 == 1 and n >= 4:
                    m += [MF(CA + 4 * n, BH + 4 * (n - 4 - kp), BK + 4 * kp) for kp in range(n - 3)]
            if p0 == 0:
                o = []
                for e in range(4):
                    o += [MF(GT, BS[0] + 4 * e, BD, "0"), MF(GT + 4, BH + 4 * e, BD + 4, "0")]
                    blk = m[7 * e:7 * e + 7]
                    blk[4] += "".join("\n" + CVT(BH + 4 * e + r, GT + r, GT + 4 + r) for r in (0, 1))
                    blk[5] += "".join("\n" + CVT(BH + 4 * e + r, GT + r, GT + 4 + r) for r in (2, 3))
                    o += blk
                m = o + m[28:]
            return m

        self.out(creads(0))
        cw = self.o("cwait", 1)
        self.stamp(2)
        a("v_and_b32 v4, 3, v2\nv_lshl_add_u32 v4, v4, 2, v14")
        self.poll_lds(4, LF_P1 if cw == 1 else LF_PQ, 1, 5)
        self.stamp(3)
        pause, dper = self.o("pause", 1), self.o("dper", 2)
        if "C" in self.o("abl", ""):
            self.out(paced)
            paced = []
        for p0 in range(8 if "C" not in self.o("abl", "") else 0):
            fill = creads(p0 + 1) if p0 < 7 else []
            d, paced = paced[:dper], paced[dper:]
            if d:
                fill = interleave(fill, d, 2, len(fill) // len(d), 1)
            mm = cmf(p0)
            if pause and p0 < 7:
                fill += [""] * (len(mm) - 5 - len(fill))
                fill.append(f"ds_read2_b32 v[4:5], v{vMy} offset0:{LF_PA//4} offset1:{LF_OD//4}")
            self.stamp(1 + p0, 4)
            self.out(interleave(mm, fill, 0, 1, 1))
            if p0 == 7:
                self.stamp(9, 4)
            if pause and p0 < 7:
                l = self.lab("cp")
                a("v_cmp_le_u32 vcc, v4, v5")
                a(f"s_cbranch_vccnz {l}")
                self.poll_lds(vMy, LF_OD, 1, 5)
                a.label(l)
        assert not paced
        self.stamp(4)
        YS = 128
        a("s_waitcnt vmcnt(0)")
        self.lds_inc(14, 15, LF_WA)
        ylay = self.o("ylay", 0)
        if ylay:
            a(f"s_lshl_b32 s{sT1}, s{sD}, 7\ns_add_u32 s{sT1}, s{sT1}, {WS_YT}")
            a("v_and_b32 v6, 7, v2\nv_lshlrev_b32 v6, 4, v6\nv_lshl_add_u32 v6, v3, 17, v6")
        else:
            a(f"s_lshl_b32 s{sT1}, s{sD}, 12\ns_add_u32 s{sT1}, s{sT1}, {WS_YT}")
        for k in range(4):
            for i in range(4):
                a(CVT(YS + 4 * k + i, CA + 8 * k + 2 * i, CA + 8 * k + 2 * i + 1))
            if ylay:
                a(f"buffer_store_dwordx4 {V(YS+4*k,4)}, v6, {S(rWS,4)}, s{sT1} offen sc1")
                a(f"s_add_u32 s{sT1}, s{sT1}, {1<<20}" if k < 3 else "")
            else:
                a(f"buffer_store_dwordx4 {V(YS+4*k,4)}, v{vL16}, {S(rWS,4)}, s{sT1} offen offset:{1024*k} sc1")
        for j in range(8):
            a(f"ds_write_b128 v20, {V(WL+4*j,4)} offset:{1024*j}")
        self.lds_inc(14, 15, LF_WB)
        if "Y" in self.o("abl", ""):
            a("s_endpgm")
        abl = self.o("abl", "")
        a(f"s_mul_i32 s{sT2}, s{sST}, {CSTR}\ns_add_u32 s{sT2}, s{sT2}, {WS_CNT+32*CSTR}")
        self.arrive(14, 15, vFo, LF_CY, sT2, 4, 70)
        self.stamp(5)
        vYi, vYr, vYo = 32, 34, 35
        a("v_lshrrev_b32 v4, 2, v2\nv_and_b32 v5, 3, v2\nv_lshlrev_b32 v6, 4, v5")
        a(f"v_lshl_add_u32 v{vYi}, v4, {7 if ylay else 12}, v6")
        a("v_and_b32 v6, 1, v2\nv_mul_u32_u24 v6, 2112, v6\nv_and_b32 v37, 3, v4\nv_lshl_add_u32 v6, v37, 6, v6")
        a("v_and_b32 v37, 48, v2\nv_and_b32 v38, 2, v2\nv_lshl_add_u32 v37, v38, 2, v37")
        a(f"v_add3_u32 v{vYr}, v6, v37, s{sUc}")
        a("v_and_b32 v6, 8, v2\nv_and_b32 v37, 48, v2\nv_lshl_add_u32 v6, v6, 5, v37")
        a(f"v_and_b32 v38, 7, v2\nv_lshlrev_b32 v38, 4, v38\nv_lshl_add_u32 v{vYo}, v6, 12, v38")
        if ylay:
            a(f"s_lshr_b32 s{sT1}, s{sW4}, 1\ns_lshl1_add_u32 s{sUo}, s{sST}, s{sT1}\ns_lshl4_add_u32 s{sUo}, s{sUo}, s{sDG}")
            a(f"s_lshl_b32 s{sUo}, s{sUo}, 7\ns_and_b32 s{sT1}, s{sW4}, 1\ns_add_u32 s{sUo}, s{sUo}, s{sT1}")
        else:
            a(f"s_lshl2_add_u32 s{sUo}, s{sST}, s{sW4}\ns_lshl_b32 s{sT1}, s{sDG}, 12\ns_add_u32 s{sUo}, s{sUo}, s{sT1}")
        a(f"s_lshl_b32 s{sUo}, s{sUo}, 6")
        a(f"s_mul_i32 s{sT1}, s{sDG}, {CSTR}\ns_add_u32 s{sT1}, s{sT1}, {WS_CNT+32*CSTR}")
        self.await_(14, 15, vFo, LF_GY, sT1, 4, 70, 96, 71)
        self.stamp(6)
        if self.o("yh", -1) >= 0:
            self.poll_lds(vMy, LF_YG, 1, 4)
        YT_ = 56
        if "y" in abl:
            a("s_endpgm")
        for k in range(4):
            a(f"s_add_u32 m0, s{sUc}, {k*1056}\ns_add_u32 s{sT1}, s{sUo}, {WS_YT+k*(2048 if ylay else 65536)}")
            if "l" not in abl:
                a(f"buffer_load_dwordx4 v{vYi}, {S(rWS,4)}, s{sT1} offen sc1 lds")
        a(f"s_lshr_b32 s{sT0}, s{sST}, 2\ns_lshl3_add_u32 s{sT0}, s{sT0}, s{sW4}\ns_and_b32 s{sT1}, s{sST}, 3")
        a(f"s_lshl4_add_u32 s{sT0}, s{sT0}, s{sT1}\ns_lshl_b32 s{sT0}, s{sT0}, 7\ns_add_u32 s{sT0}, s{sT0}, s{sDG}")
        a(f"s_lshl_b32 s{sT0}, s{sT0}, 7")
        a("s_waitcnt vmcnt(0)")
        if "w" in abl:
            a("s_endpgm")
        for k in range(4):
            for t in range(2):
                a(f"ds_read_b64_tr_b16 {V(YT_+4*k+2*t,2)}, v{vYr} offset:{(k>>1)*1056+(k&1)*512+256*t}")
        self.out(self.quad_t(YT_, YT_ + 16))
        if "z" in abl:
            a("s_endpgm")
        if self.o("ys", -1) >= 0:
            self.poll_lds(vMy, LF_YG, 1, 4)
        for k in range(4):
            a(f"s_add_u32 s{sT1}, s{sT0}, {k*4096}")
            a(f"buffer_store_dwordx4 {V(YT_+4*k,4)}, v{vYo}, {S(rO,4)}, s{sT1} offen offset:2048 {self.o('fy', 'nt').replace('+', ' ')}")
        self.dump_stamps()
        a("s_endpgm")

    def build(self):
        self.entry()
        self.helper()
        self.compute()
        self.a.finish()
        body = self.a.text()
        head = open("concat_heads__linear_attn_block__ssm_conv_s4__prompt.s.ref").read()
        cm = []
        for l in head.split("\n"):
            if l.startswith("; @launch"):
                cm.append(f"; @launch grid=(256,1,1) block=(512,1,1) lds={LDS_BYTES}")
                break
            cm.append(l)
        txt = "\n".join(cm) + "\n"
        txt += f""".amdgcn_target "amdgcn-amd-amdhsa--gfx950"
.text
.globl {NAME}
.p2align 8
.type {NAME},@function
{NAME}:
"""
        txt += body.replace("CODE_LEFT", str(self.opt.get("code_left", 0)))
        txt += f""".section .rodata,"a"
.p2align 6
.amdhsa_kernel {NAME}
  .amdhsa_next_free_vgpr 256
  .amdhsa_next_free_sgpr 102
  .amdhsa_accum_offset 256
  .amdhsa_group_segment_fixed_size 0
  .amdhsa_kernarg_size 120
  .amdhsa_user_sgpr_count 2
  .amdhsa_user_sgpr_kernarg_segment_ptr 1
  .amdhsa_system_sgpr_workgroup_id_x 1
.end_amdhsa_kernel
"""
        return txt


def code_size(txt):
    import subprocess, tempfile
    d = tempfile.mkdtemp()
    open(d + "/k.s", "w").write(txt)
    r = subprocess.run(["clang", "-x", "assembler", "-target", "amdgcn-amd-amdhsa", "-mcpu=gfx950",
                        "-c", d + "/k.s", "-o", d + "/k.o"], capture_output=True, text=True)
    if r.returncode:
        print(r.stderr[:3000])
        raise SystemExit("assemble failed")
    o = subprocess.run(["llvm-objdump", "-h", d + "/k.o"], capture_output=True, text=True).stdout
    for l in o.split("\n"):
        p = l.split()
        if len(p) > 2 and p[1] == ".text":
            return int(p[2], 16)


def make(prof=0, **opt):
    t = Gen(prof, code_left=1024, **opt).build()
    n = code_size(t)
    assert prof or n < 32768 + 128
    return Gen(prof, code_left=n - 128, **opt).build(), n


if __name__ == "__main__":
    t, n = make(0)
    out = sys.argv[1] if len(sys.argv) > 1 else "concat_heads__linear_attn_block__ssm_conv_s4__prompt.s"
    open(out, "w").write(t)
    print("wrote", out, "code bytes", n, "lines", t.count("\n"))
```

```python
import sys, struct, math
from asmgen import *

NAME = "concat_heads__linear_attn_block__ssm_conv_s4__prompt_kernel"


def fbits(x):
    return "0x%08x" % struct.unpack("<I", struct.pack("<f", x))[0]


LOG2E = 1.4426950408889634
EPS = 1e-6

CSTR = 8448
NCNT = 56
RSTR = 2304
WS_ZP = 65536
WS_CNT = 512 << 10
WS_KVP = 1 << 20
WS_UT = 4 << 20
WS_YT = 8 << 20
WS_OF = 12 << 20
WS_PROF = 16 << 20
WS_SIZE = 20 << 20

SLOT = 40960
SL = lambda s: SLOT * (s + 1)
SCR = 8704
L_MISC = 34816
L_UC = SL(1)
UC = 4608
RCS = 2112
L_EX = (SL(1) + 36864, 36864)
L_EZ = L_MISC + 1024
LDS_BYTES = 163840
LF_P1, LF_P2, LF_OD = 0, 16, 32
LF_WA, LF_WB, LF_C1, LF_G1, LF_C2, LF_G2, LF_CY, LF_GY, LF_YG, LF_PQ, LF_PA, LF_W0 = 48, 52, 56, 60, 64, 68, 72, 76, 80, 96, 112, 128
WO_E0 = [SL(1) + 20480 + 4096 * i for i in range(4)]
WO_E1 = [SL(2) + 4096 * i for i in range(10)]
WO_E2 = [SL(0) + 4096 * i for i in range(10)]
WO_LATE = [SCR * w + 4096 * j for j in range(2) for w in range(4)]
WO_SLOTS = WO_E0 + WO_E1 + WO_E2 + WO_LATE
NE = 24
TB = 16

pX, pW, pWo, pU, pAre, pAim, pBre, pBim, pCre, pCim, pLdt, pDsk, pOut, pDbg, pWs = range(8, 38, 2)
rX, rW, rWS, rO, rWo, rU = 40, 44, 48, 52, 56, 60
sWave, sRT, sHP, sRT2, sCT = 3, 4, 5, 6, 7
SPIN = 20000


def srd(r, p, size):
    return f"s_mov_b32 s{r}, s{p}\ns_mov_b32 s{r+1}, s{p+1}\ns_mov_b32 s{r+2}, {size}\ns_mov_b32 s{r+3}, 0x20000"


def bfe(d, s, off, w):
    return f"s_bfe_u32 s{d}, s{s}, {hex((w << 16) | off)}"


def MF(d, x, y, c=None):
    c = V(d, 4) if c is None else c
    return f"v_mfma_f32_16x16x32_bf16 {V(d,4)}, {V(x,4)}, {V(y,4)}, {c}"


def CVT(d, x, y, neg=False):
    return f"v_cvt_pk_bf16_f32 v{d}, v{x}, {'-' if neg else ''}v{y}"


class Gen:
    def __init__(self, prof=0, **opt):
        self.a = Asm()
        self.prof = prof
        self.opt = opt
        self.nlab = 0
        self.sched = {}
        for part in opt.get("sched", "p=A0,S0,U,A1,R,a99,T,t0,t1,t2,t3,S1").split("/"):
            k, v = part.split("=")
            self.sched[k if k == "p" else int(k)] = v.split(",")

    def o(self, k, d):
        return self.opt.get(k, d)

    def lab(self, base):
        self.nlab += 1
        return f"L_{base}_{self.nlab}"

    def out(self, lst):
        for l in lst:
            if isinstance(l, list):
                self.out(l)
            else:
                self.a(l)

    def stamp(self, idx, mode=1):
        if not self.prof or (self.prof != mode and idx != 15):
            return
        self.a(f"s_memrealtime s[68:69]\ns_waitcnt lgkmcnt(0)\ns_mov_b32 s{72+idx}, s68")

    def cstamp(self, idx):
        if self.prof == 5:
            self.a(f"s_memtime s[68:69]\ns_waitcnt lgkmcnt(0)\ns_mov_b32 s{72+idx}, s68")
            self.stamp(idx + 1, 5)

    def dump_stamps(self):
        if not self.prof:
            return
        a = self.a
        a("s_waitcnt vmcnt(0)")
        self.stamp(15)
        for i in range(16):
            a(f"v_mov_b32 v{16+i}, s{72+i}")
        a(f"s_lshl_b32 s68, s2, 3\ns_add_u32 s68, s68, s{sWave}\ns_lshl_b32 s68, s68, 6\ns_add_u32 s68, s68, {WS_PROF}")
        a("v_mov_b32 v3, 0")
        for i in range(4):
            a(f"buffer_store_dwordx4 {V(16+4*i,4)}, v3, {S(rWS,4)}, s68 offen offset:{16*i}")

    def arrive(self, vM, vOne, vFo, lf_cnt, soff, vtmp, slast, vret=None):
        a = self.a
        l = self.lab("arr")
        a("s_waitcnt vmcnt(0)")
        a("s_mov_b64 exec, 1")
        a(f"ds_add_rtn_u32 v{vtmp}, v{vM}, v{vOne} offset:{lf_cnt}")
        a("s_mov_b64 exec, -1")
        a(f"v_readfirstlane_b32 s{slast}, v{vtmp}")
        a(f"s_cmp_lg_u32 s{slast}, 3")
        a(f"s_cbranch_scc1 {l}")
        if self.scal(lf_cnt):
            a("s_mov_b32 s39, 1")
            a(f"s_atomic_add s39, {S(pWs,2)}, s{soff}{' glc' if vret is not None else ''}")
        elif vret is None:
            a(f"buffer_atomic_add v{vOne}, v{vFo}, {S(rWS,4)}, s{soff} offen sc1")
        else:
            a(f"buffer_atomic_add v{vret}, v{vFo}, {S(rWS,4)}, s{soff} offen sc0 sc1")
        a.label(l)

    def scal(self, lf):
        return {LF_C1: "1", LF_G1: "1", LF_C2: "2", LF_G2: "2", LF_CY: "y", LF_GY: "y"}[lf] in self.o("sat", "u12y")

    def poll_issue(self, vFo, soff, vp, slast):
        a = self.a
        l = self.lab("pre")
        a(f"v_mov_b32 v{vp}, 0")
        a(f"s_cmp_lg_u32 s{slast}, 3")
        a(f"s_cbranch_scc1 {l}")
        a(f"buffer_atomic_add v{vp}, v{vFo}, {S(rWS,4)}, s{soff} offen sc0 sc1")
        a.label(l)

    def await_(self, vM, vOne, vFo, lf_go, soff, vtmp, slast, scnt, stmp, vret=None, pre=()):
        a = self.a
        l, d, o, e = self.lab("poll"), self.lab("polld"), self.lab("pollo"), self.lab("polle")
        look = lambda v: f"v_mov_b32 v{v}, 0\nbuffer_atomic_add v{v}, v{vFo}, {S(rWS,4)}, s{soff} offen sc0 sc1"
        a(f"s_cmp_lg_u32 s{slast}, 3")
        a(f"s_cbranch_scc1 {o}")
        a(f"s_mov_b32 s{scnt}, {SPIN}")
        if self.scal(lf_go):
            assert not pre
            if vret is not None:
                a("s_cmp_eq_u32 s39, 15")
                a(f"s_cbranch_scc1 {d}")
            a.label(l)
            a(f"s_mov_b32 s{stmp}, 0")
            a(f"s_atomic_add s{stmp}, {S(pWs,2)}, s{soff} glc")
            a(f"s_sub_u32 s{scnt}, s{scnt}, 1")
            a("s_waitcnt lgkmcnt(0)")
            a(f"s_cbranch_scc1 {d}")
            a(f"s_cmp_lt_u32 s{stmp}, 16")
            a(f"s_cbranch_scc1 {l}")
            a.label(d)
            a(f"ds_write_b32 v{vM}, v{vOne} offset:{lf_go}")
            a(f"s_branch {e}")
            a.label(o)
            self.poll_lds(vM, lf_go, 1, vtmp)
            a.label(e)
            return
        if vret is not None:
            a(f"s_waitcnt vmcnt({len(pre)}) ; trust")
            a(f"v_cmp_eq_u32 vcc, 15, v{vret} ; nowait")
            a(f"s_cbranch_vccnz {d}")
        a(look(vtmp))
        ring = list(pre) + [vtmp]
        a.label(l)
        for v in ring:
            a(f"s_waitcnt vmcnt({len(ring)-1})")
            a(f"v_readfirstlane_b32 s{stmp}, v{v} ; nowait")
            a(f"s_cmp_ge_u32 s{stmp}, 16")
            a(f"s_cbranch_scc1 {d}")
            a(look(v).replace("\n", " ; nowait\n") + " ; nowait")
        a(f"s_sub_u32 s{scnt}, s{scnt}, 1")
        a(f"s_cbranch_scc0 {l}")
        a.label(d)
        a(f"ds_write_b32 v{vM}, v{vOne} offset:{lf_go}")
        a(f"s_branch {e}")
        a.label(o)
        self.poll_lds(vM, lf_go, 1, vtmp)
        a.label(e)

    def poll_lds(self, vaddr, off, val, vtmp, after=()):
        a = self.a
        l = self.lab("lpoll")
        slp = self.o("slp", 0) if off in (LF_GY, LF_YG) else (self.o("slp2", 0) if off in (LF_G1, LF_G2, LF_OD, LF_PQ) else 0)
        if slp:
            l2 = self.lab("lpollin")
            a(f"s_branch {l2}")
        a.label(l)
        if slp:
            a(f"s_sleep {slp}")
            a.label(l2)
        a(f"ds_read_b32 v{vtmp}, v{vaddr} offset:{off}")
        self.out(list(after))
        a(f"v_cmp_ne_u32 vcc, {val}, v{vtmp}")
        a(f"s_cbranch_vccnz {l}")

    def lds_inc(self, vM, vOne, off):
        self.a(f"s_mov_b64 exec, 1\nds_add_u32 v{vM}, v{vOne} offset:{off}\ns_mov_b64 exec, -1")

    def quad_t(self, src, tmp):
        r = []
        for a_, b_, bit, mask, qp in ((src, tmp, 1, 0x55555555, "[1,0,3,2]"), (tmp, src, 2, 0x33333333, "[2,3,0,1]")):
            for hi in (0, 1):
                pre = f"s_mov_b32 vcc_lo, {hex(mask)}\ns_mov_b32 vcc_hi, {hex(mask)}\n" if hi == 0 else "s_not_b64 vcc, vcc\n"
                for k in range(4):
                    if bool(k & bit) != bool(hi):
                        continue
                    for d in range(4):
                        r.append(pre + f"v_cndmask_b32_dpp v{b_+4*k+d}, v{a_+4*(k^bit)+d}, v{a_+4*k+d}, vcc "
                                       f"quad_perm:{qp} row_mask:0xf bank_mask:0xf")
                        pre = ""
        return r

    def ids2(self, t):
        if self.o("omap", 1) == 0:
            return [f"s_and_b32 s{sRT2}, s2, 7", bfe(t, 2, 3, 1), f"s_lshl1_add_u32 s{sRT2}, s{sRT2}, s{t}",
                    f"s_lshr_b32 s{sCT}, s2, 4"]
        return [bfe(sRT2, 2, 1, 2), bfe(t, 2, 3, 2), f"s_lshl2_add_u32 s{sRT2}, s{sRT2}, s{t}",
                f"s_and_b32 s{sCT}, s2, 1", f"s_lshr_b32 s{t}, s2, 5", f"s_lshl3_add_u32 s{sCT}, s{sCT}, s{t}"]

    def ids1(self, t):
        return [f"s_and_b32 s{sRT}, s2, 1", bfe(t, 2, 3, 3), f"s_lshl3_add_u32 s{sRT}, s{sRT}, s{t}",
                bfe(sHP, 2, 1, 2), f"s_lshr_b32 s{t}, s2, 6", f"s_lshl2_add_u32 s{sHP}, s{sHP}, s{t}"]

    PR, vDs = 80, 87

    def entry(self):
        a = self.a
        a("s_cmp_ge_u32 s2, 256")
        a("s_cbranch_scc1 L_end")
        a("s_load_dwordx16 s[8:23], s[0:1], 0")
        if self.o("perm", 0):
            a(bfe(3, 2, 1, 2) + "\ns_and_b32 s4, s2, 1\ns_lshl2_add_u32 s3, s4, s3\ns_andn2_b32 s2, s2, 7\ns_or_b32 s2, s2, s3")
        a("s_load_dwordx8 s[24:31], s[0:1], 64")
        a("s_load_dwordx4 s[32:35], s[0:1], 96")
        a("s_load_dwordx2 s[36:37], s[0:1], 112")
        if self.prof:
            a("s_memrealtime s[68:69]")
        a("s_getpc_b64 s[88:89]")
        a("s_and_b32 s90, s2, 56\ns_lshl_b32 s90, s90, 4")
        a("v_lshrrev_b32 v6, 4, v0\nv_lshl_add_u32 v6, v6, 10, s90")
        a("v_min_u32 v6, CODE_LEFT, v6")
        a("v_lshrrev_b32 v1, 6, v0")
        a("global_load_dword v7, v6, s[88:89]")
        a(f"v_readfirstlane_b32 s{sWave}, v1")
        a("v_and_b32 v2, 63, v0")
        a(f"s_cmp_ge_u32 s{sWave}, 4")
        a("s_cbranch_scc1 L_helper")
        a("s_lshl_b32 s91, s2, 10\nv_lshl_add_u32 v3, v0, 2, s91")
        a("s_lshl_b32 s91, s2, 3\nv_lshl_add_u32 v5, v1, 1, s91")
        a(f"s_or_b32 s90, s2, s{sWave}")
        a("s_waitcnt lgkmcnt(0)")
        a("s_cbranch_scc1 L_par")
        a(f"v_min_u32 v8, {NCNT-1}, v2\nv_mul_u32_u24 v8, {CSTR}, v8\nv_add_u32 v8, {WS_CNT}, v8\nv_mov_b32 v9, 0")
        a(f"global_store_dword v8, v9, {S(pWs,2)} sc1\nglobal_store_dword v8, v9, {S(pWs,2)} offset:{RSTR} sc1")
        a(f"v_add_u32 v8, {2*RSTR}, v8")
        a(f"global_store_dword v8, v9, {S(pWs,2)} sc1\nglobal_store_dword v8, v9, {S(pWs,2)} offset:{RSTR} sc1")
        a.label("L_par")
        a(f"global_load_ushort v{self.PR+6}, v5, {S(pLdt,2)}")
        for i, p in enumerate((pAre, pAim, pBre, pBim, pCre, pCim)):
            a(f"global_load_dword v{self.PR+i}, v3, {S(p,2)}")
        a(f"global_load_ushort v{self.vDs}, v5, {S(pDsk,2)}")
        a("s_branch L_compute")

    def prof_init(self):
        if self.prof:
            self.a("s_mov_b32 s72, s68")
            for i in range(1, 16):
                self.a(f"s_mov_b32 s{72+i}, 0")

    def kgen(self, sScr):
        a = self.a
        PR, vDs = self.PR, self.vDs
        vDt, vTR, vA0, vA1, vA2, vSt, vB0, vB1 = 68, 70, 71, 72, 73, 74, 75, 76
        ST = lambda n, i: 8 + n * 30 + 2 * i
        RT0, RS0, RS1, RT1 = 100, 132, 164, 196
        FT, FS = (RT0, 212), (RS0, RS1)
        KD = lambda tt, st: 196 + (tt * 2 + st) * 4
        a("v_and_b32 v3, 15, v2\nv_mul_u32_u24 v5, 544, v3\nv_and_b32 v6, 48, v2")
        a(f"v_add3_u32 v{vTR}, v5, v6, s{sScr}")
        a("v_max_u32 v6, 1, v4\nv_sub_u32 v6, 6, v6")
        a(f"v_lshlrev_b32 v{vA0}, v6, v3")
        a(f"v_mov_b32 v{vSt}, 16\nv_lshlrev_b32 v{vSt}, v6, v{vSt}")
        a("v_lshlrev_b32 v6, 4, v4\nv_lshlrev_b32 v5, 9, v4")
        a("v_cmp_gt_u32 vcc, 2, v4")
        a(f"v_lshl_add_u32 v{vA2}, v3, 2, v5\nv_add_u32 v{vA2}, s{sScr}, v{vA2}")
        a("v_cndmask_b32 v6, v5, v6, vcc")
        a(f"v_add3_u32 v{vA0}, v{vA0}, v6, s{sScr}")
        a("v_cmp_eq_u32 vcc, 3, v4")
        a("v_mov_b32 v6, 8\nv_mov_b32 v5, 256")
        a("v_cndmask_b32 v6, v6, v5, vcc")
        a(f"v_add_u32 v{vA1}, v{vA0}, v6")
        a(f"v_add_u32 v{vB0}, v{vA0}, v{vSt}\nv_add_u32 v{vB1}, v{vA1}, v{vSt}")
        a(f"s_mov_b32 m0, s{sScr}")
        a(f"v_mov_b32 v{RS0}, 0x3f80\nv_mov_b32 v{RS0+1}, 0x3f80")
        a("v_cmp_eq_u32 vcc, 0, v2")
        a(f"v_lshlrev_b32 v{vDt}, 16, v{PR+6}\nv_mul_f32 v{vDt}, {fbits(LOG2E)}, v{vDt}\nv_exp_f32 v{vDt}, v{vDt}")
        for i in range(3):
            for c in range(2):
                a(f"v_lshlrev_b32 v{ST(0,i)+c}, 16, v{PR+2*i+c}")
                a(f"v_and_b32 v{ST(1,i)+c}, 0xffff0000, v{PR+2*i+c}")
            if i == 0:
                a(f"v_cvt_pk_bf16_f32 v{vDt}, v{vDt}, v{vDt}\nv_lshlrev_b32 v{vDt}, 16, v{vDt}")
        self.stamp(11)
        a(f"s_or_b32 s88, s2, s{sWave}")
        a("s_cbranch_scc1 L_noflag")
        a("s_waitcnt vmcnt(0)")
        a("v_mov_b32 v5, 0\nv_mov_b32 v6, 1")
        a(f"global_store_dword v5, v6, {S(pDbg,2)} sc1")
        a.label("L_noflag")
        for i in range(2):
            for n in range(2):
                a(f"v_pk_mul_f32 {V(ST(n,i),2)}, {V(ST(n,i),2)}, {V(vDt,2)} op_sel_hi:[1,0]")
        for n in range(2):
            a(f"v_mul_f32 v{ST(n,0)}, {fbits(LOG2E)}, v{ST(n,0)}")
            a(f"v_mul_f32 v{ST(n,0)+1}, {fbits(1/(2*math.pi))}, v{ST(n,0)+1}")
        pend = []
        lq = []
        soon = []
        nrow = [0]
        g0, rate = self.o("kg0", 99), self.o("kgr", 4)

        def CM(dst, x, y):
            lq.extend(soon)
            soon.clear()
            take = [lq.pop(0) for _ in range(min(rate, len(lq)))] if nrow[0] >= g0 else []
            seq = [f"v_pk_mul_f32 {V(ST(n,dst),2)}, {V(ST(n,x),2)}, {V(ST(n,y),2)} op_sel_hi:[1,0]" for n in range(2)]
            for c, w in pend:
                seq.append(c)
                soon.extend(w)
            pend.clear()
            seq += [f"v_pk_fma_f32 {V(ST(n,dst),2)}, {V(ST(n,x),2)}, {V(ST(n,y),2)}, {V(ST(n,dst),2)} "
                    f"op_sel:[1,1,0] op_sel_hi:[0,1,1] neg_lo:[1,0,0]" for n in range(2)]
            self.out(interleave(seq, take, 0, 1, 1))

        def wr(base, r, n):
            return f"ds_write_addtid_b32 v{base+2*r+n} offset:{r*544+n*256}"

        def rd(dst):
            return [f"ds_read_b128 {V(dst+4*f,4)}, v{vTR} offset:{64*f}" for f in range(8)]

        def row(base, r, pair, neg, pre=(), post=()):
            nrow[0] += 1
            for n in range(2):
                pend.append((CVT(base + 2 * r + n, ST(n, pair), ST(n, pair) + 1, neg),
                             (list(pre) if n == 0 else []) + [wr(base, r, n)] + (list(post) if n == 1 else [])))

        for zi, L, t in ((3, 1.0, 12), (4, 8.0, 13), (5, 256.0, 14)):
            for n in range(2):
                if L != 1.0:
                    a(f"v_mul_f32 v{ST(n,t)}, {fbits(L)}, v{ST(n,0)}")
                    a(f"v_mul_f32 v{ST(n,t)+1}, {fbits(L)}, v{ST(n,0)+1}")
            for n in range(2):
                src = t if L != 1.0 else 0
                a(f"v_fract_f32 v{ST(n,t)+1}, v{ST(n,src)+1}")
                a(f"v_exp_f32 v{ST(n,t)}, v{ST(n,src)}")
            for n in range(2):
                a(f"v_cos_f32 v{ST(n,zi)}, v{ST(n,t)+1}")
                a(f"v_sin_f32 v{ST(n,zi)+1}, v{ST(n,t)+1}")
        CM(6, 2, 1)
        for zi, t in ((3, 12), (4, 13), (5, 14)):
            for n in range(2):
                a(f"v_pk_mul_f32 {V(ST(n,zi),2)}, {V(ST(n,zi),2)}, {V(ST(n,t),2)} op_sel_hi:[1,0]")
        row(RT0, 0, 6, True)
        for j in range(4):
            CM(10, 6 + j, 3); row(RT0, 2 * j + 1, 10, True)
            if j < 3:
                CM(7 + j, 10, 3); row(RT0, 2 * j + 2, 7 + j, True)
        for dst, x, r in ((12, 7, 9), (10, 6, 8), (12, 9, 11), (11, 8, 10), (6, 10, 12), (8, 11, 13), (10, 6, 14), (11, 8, 15)):
            CM(dst, x, 5); row(RT0, r, dst, True, post=rd(FT[0]) if r == 15 else ())
        cur = 10
        for r in range(5):
            nxt = 6 if cur == 10 else 10
            CM(nxt, cur, 5); row(RT1, r, nxt, True, post=rd(FT[1]) if r == 4 else ())
            cur = nxt
        row(RS0, 1, 4, False, pre=[wr(RS0, 0, 0), wr(RS0, 0, 1)])
        cur = 4
        for j in range(2, 32):
            nxt = 10 if cur != 10 else 11
            CM(nxt, cur, 4)
            row(RS0 if j < 16 else RS1, j % 16, nxt, False, post=rd(FS[j >> 4]) if j % 16 == 15 else ())
            cur = nxt
        a(f"v_lshlrev_b32 v{vDs}, 16, v{vDs}\nv_mov_b32 v6, 0")
        lq.extend(soon)
        for c, w in pend:
            a(c)
            lq.extend(w)
        a(f"v_cndmask_b32 v{vDs}, v6, v{vDs}, vcc")
        self.stamp(12)
        if self.o("b0", 1) == 0:
            a("s_barrier")
            self.stamp(1)

        def mm(st):
            return [MF(KD(tt, st), FT[tt] + 4 * f, FS[st] + 4 * f, "0" if f == 0 else None) for tt in range(2) for f in range(8)]

        def tw(st):
            return [f"ds_write_b64 v{(vA0,vB0)[st]}, {V(KD(0,st),2)} offset:{TB}",
                    f"ds_write_b64 v{(vA1,vB1)[st]}, {V(KD(0,st)+2,2)} offset:{TB}"] + \
                   [f"ds_write_b32 v{vA2}, v{KD(1,st)+r} offset:{TB+2048+128*r+64*st}" for r in range(4)]
        nt = min(len(lq), 34)
        self.out(lq[:len(lq) - nt])
        self.out(interleave(mm(0), lq[len(lq) - nt:], 0, 1, -(-nt // 16)))
        a(f"v_add_f32 v{KD(0,0)}, v{KD(0,0)}, v{vDs}")
        self.out(interleave(mm(1), tw(0), 0, 2, 1))
        return tw(1)

    def phi(self, s, tmp, sL):
        out = [f"v_fma_f32 v{tmp+i}, v{s+i}, s{sL}, -s{sL}" for i in range(4)]
        out += [f"v_exp_f32_e64 v{tmp+i}, v{tmp+i} clamp" for i in range(4)]
        out += [f"v_max_f32 v{s+i}, v{s+i}, v{tmp+i}" for i in range(4)]
        return out

    def compute(self):
        a = self.a
        acc = 100
        XS, WR = (8, 40), (72, 80, 88)
        vXA, vXB, vWA, vWB = 244, 246, 248, 252
        sHI, sMI, sSl, sIt, sE, sL, sScr, sEvt = 64, 65, 66, 67, 90, 91, 92, 96
        AQ = lambda mt, nt: acc + (mt * 2 + nt) * 4
        AK = lambda mt, nt: acc + 32 + (mt * 2 + nt) * 4
        AV = lambda mt, nt: acc + 64 + (mt * 2 + nt) * 4
        a.label("L_compute")
        self.prof_init()
        a(f"v_lshlrev_b32 v3, 2, v2\nv_mov_b32 v5, 0\nds_write_b32 v3, v5 offset:{L_MISC}")
        self.out(self.ids1(88) + self.ids2(88))
        a(f"s_mul_i32 s{sScr}, s{sWave}, {SCR}")
        a(f"s_and_b32 s{sHI}, s{sWave}, 1\ns_lshr_b32 s{sMI}, s{sWave}, 1")
        a("v_and_b32 v3, 15, v2\nv_lshrrev_b32 v4, 4, v2\nv_lshrrev_b32 v5, 1, v3\nv_xor_b32 v5, v5, v4")
        a("v_lshlrev_b32 v5, 4, v5\nv_lshl_add_u32 v5, v3, 7, v5")
        a(f"s_lshl_b32 s88, s{sMI}, 13\nv_add_u32 v{vXB}, s88, v5\nv_xor_b32 v{vXB+1}, 64, v{vXB}")
        a("v_bfe_u32 v3, v2, 2, 2\nv_lshl_add_u32 v5, v4, 3, v3\nv_lshlrev_b32 v5, 7, v5\nv_lshrrev_b32 v3, 1, v3")
        a(f"v_xor_b32 v6, s{sHI}, v4\nv_and_b32 v6, 1, v6\nv_lshl_add_u32 v3, v6, 1, v3\nv_lshl_add_u32 v5, v3, 5, v5")
        a("v_and_b32 v3, 3, v2\nv_lshl_add_u32 v5, v3, 3, v5")
        a(f"v_add_u32 v{vWB}, 16384, v5\nv_xor_b32 v{vWB+1}, 32, v{vWB}")
        a(f"s_lshl_b32 s88, s{sMI}, 5\nv_xor_b32 v{vWB+2}, s88, v{vWB}\nv_xor_b32 v{vWB+3}, s88, v{vWB+1}")
        a(f"s_mov_b32 s{sE}, {fbits(EPS)}\ns_mov_b32 s{sL}, {fbits(LOG2E)}")
        a(srd(rWS, pWs, WS_SIZE))
        a(srd(rO, pOut, 8 << 20))
        GR = ((1, 0), (1, 1), (2, 0), (2, 1), (0, 0), (0, 1))

        def rx(par, ks, mt):
            return f"ds_read_b128 {V(XS[par]+16*ks+4*mt,4)}, v{vXA+ks} offset:{mt*2048}"

        def rw(g, buf=None):
            sec, nt = GR[g]
            b = WR[g % 3] if buf is None else buf
            return [f"ds_read_b64_tr_b16 {V(b+4*ks+2*t,2)}, v{vWA+nt+(2 if sec == 2 else 0)} offset:{sec*8192+ks*4096+t*512}"
                    for ks in range(2) for t in range(2)]

        def head_reads(par):
            w0 = rw(0)
            return [rx(par, 0, 0)] + w0[:2] + [rx(par, 1, 0)] + w0[2:] + \
                   [rx(par, 1, 1), rx(par, 0, 1), rx(par, 0, 2), rx(par, 1, 2), rx(par, 1, 3), rx(par, 0, 3)] + rw(1)[:1]

        def grp(par, g, first=False, buf=None):
            sec, nt = GR[g]
            b = WR[g % 3] if buf is None else buf
            m = []
            for j, mt in enumerate(range(4) if g % 2 == 0 else range(3, -1, -1)):
                for i, ks in enumerate((0, 1) if j % 2 == 0 else (1, 0)):
                    c = acc + sec * 32 + (mt * 2 + nt) * 4
                    xa, wa = XS[par] + 16 * ks + 4 * mt, b + 4 * ks
                    c0 = ("0" if sec == 2 else "1.0") if first and i == 0 else None
                    m.append(MF(c, xa, wa, c0) if sec else MF(c, wa, xa, c0))
            return m

        sa = [f"v_add_u32 v{vXA+i}, s{sSl}, v{vXB+i}" for i in range(2)] + \
             [f"v_add_u32 v{vWA+i}, s{sSl}, v{vWB+i}" for i in range(4)]

        def stage_body(par, first=False, tail=()):
            sal = [f"s_add_u32 s{sSl}, s{sSl}, {SLOT}", f"s_cmp_eq_u32 s{sSl}, {SL(3)}",
                   f"s_cselect_b32 s{sSl}, {SL(0)}, s{sSl}"]
            W4 = "s_waitcnt lgkmcnt(4)"
            f0 = rw(1)[1:] + rw(2) + [W4]
            f0[3] += "\ns_waitcnt lgkmcnt(5)"
            self.out(interleave(grp(par, 0, first), f0, 0, 1, 1))
            self.out(interleave(grp(par, 1, first), rw(3) + sal + [W4], 0, 1, 1))
            self.out(interleave(grp(par, 2, first), rw(4) + [sa[0], sa[1], sa[4], W4], 0, 1, 1))
            self.out(interleave(grp(par, 3, first), rw(5) + [sa[2], sa[3], sa[5] + "\n" + "\n".join(tail), W4], 0, 1, 1))
            m = grp(par, 4, first) + grp(par, 5, first)
            hr = head_reads(1 - par)
            hr[-1] += "\ns_waitcnt lgkmcnt(5)"
            self.out(interleave(m, ["s_waitcnt lgkmcnt(0)", "s_barrier"] + hr, 0, 1, 1))

        a("v_mov_b32 v97, 1")
        a(f"s_mov_b32 s{sSl}, {SL(0)}\ns_mov_b32 s{sIt}, 1")
        self.out(sa)
        tw1 = self.kgen(sScr) if 'K' not in self.o('abl', '') else []
        self.out(tw1)
        self.stamp(10)
        if self.o("b0", 1) == 1:
            a("s_waitcnt lgkmcnt(0)")
            a("s_barrier")
            self.stamp(1)
        self.cstamp(1)
        a(f"s_setprio {self.o('prio', 3)}")
        self.out(head_reads(0))
        stage_body(0, True)
        a(f".p2align {self.o('cal', 3)}")
        a.label("L_cloop")
        stage_body(1, tail=[f"s_add_u32 s{sIt}, s{sIt}, 2"])
        stage_body(0, tail=[f"s_cmp_lt_u32 s{sIt}, 15"])
        a("s_cbranch_scc1 L_cloop")
        vL16, vEx, vLF, vOne, vZo, vFo, vM, vPE, vPF, v1, vEz, vPz = 197, 198, 199, 200, 204, 205, 206, 207, 96, 97, 98, 99
        sLast, sHead, sT0, sT1 = 70, 92, 93, 94
        WQ = (8, 16)
        KF = lambda ch, dt: 208 + (ch * 2 + dt) * 4
        VF = lambda ch, e: 224 + (ch * 2 + e) * 4
        D = lambda dt, e: 240 + (e * 2 + dt) * 4
        Z = lambda dt: 24 + dt * 4
        tmp, RX, PK, vEA, EC = 32, 72, 32, 36, 80
        EPSB = struct.unpack("<I", struct.pack("<f", EPS))[0]
        EPSB = (EPSB + 0x7fff + ((EPSB >> 16) & 1)) >> 16
        EPSB = hex(EPSB << 16 | EPSB)
        pre = [f"v_mov_b32 v{vM}, {L_MISC}", f"v_lshlrev_b32 v{vL16}, 4, v2", f"s_mov_b32 s{sT1}, {L_EX[1]}",
               f"s_cmp_eq_u32 s{sHI}, 0\ns_cselect_b32 s{sT1}, {L_EX[0]}, s{sT1}",
               f"s_lshl_b32 s{sT0}, s{sMI}, 11\ns_add_u32 s{sT0}, s{sT0}, s{sT1}", f"v_add_u32 v{vEx}, s{sT0}, v{vL16}",
               f"v_lshl_add_u32 v{vLF}, v1, 2, v{vM}", f"v_lshlrev_b32 v{vEz}, 2, v0"]
        rd = rw(1)[1:] + rw(2) + rw(4, WQ[0])[:1]
        self.out(interleave(grp(1, 0), [x + "\n" + y for x, y in zip(rd, pre)], 0, 1, 1))
        self.stamp(2)
        self.stamp(2, 3)
        self.stamp(2, 4)
        self.cstamp(3)
        rd = rw(3) + rw(4, WQ[0])[1:] + rw(5, WQ[1])
        pend = grp(1, 1) + grp(1, 2) + grp(1, 3)
        pend = [x + "\n" + rd[i] if i < len(rd) else x for i, x in enumerate(pend)]
        e1 = [f"v_mov_b32 v{vOne+i}, 0x3f803f80" for i in range(4)] + [f"v_mov_b32 v{vEA+i}, {EPSB}" for i in range(4)]

        def phik(dt, ch):
            r = []
            for h in range(2):
                s = AK(2 * ch + h, dt)
                r += self.phi(s, tmp, sL) + [CVT(KF(ch, dt) + 2 * h, s, s + 1), CVT(KF(ch, dt) + 2 * h + 1, s + 2, s + 3)]
            return r

        def cvtv(e):
            return [CVT(VF(ch, e) + 2 * h + i, AV(2 * ch + h, e) + 2 * i, AV(2 * ch + h, e) + 2 * i + 1)
                    for ch in range(2) for h in range(2) for i in range(2)]

        def kvm(dt, e, chs=(0, 1)):
            return [MF(D(dt, e), KF(ch, dt), VF(ch, e), V(EC + 4 * e, 4) if ch == 0 else None) for ch in chs]
        epsm = lambda e: [MF(EC + 4 * e, vEA, VF(ch, e), "0" if ch == 0 else None) for ch in range(2)]
        zm = lambda dt, chs=(0, 1): [MF(Z(dt), vOne, KF(ch, dt), "0" if ch == 0 else None) for ch in chs]
        e1 += phik(0, 0) + phik(0, 1) + [("M", zm(0))]
        e1 += cvtv(0) + [("M", epsm(0))] + cvtv(1) + [("M", epsm(1) + kvm(0, 0) + kvm(0, 1))]
        e1 += phik(1, 0) + [("M", kvm(1, 1, (0,)) + zm(1, (0,)) + kvm(1, 0, (0,)))]
        x = phik(1, 1)
        e1 += x[:14] + [f"ds_write_b128 v{vEx}, {V(D(0,1),4)} offset:0"] + x[14:]
        e1 += [("M", kvm(1, 1, (1,)) + zm(1, (1,)) + kvm(1, 0, (1,)))]
        sc = [f"s_lshl1_add_u32 s{sHead}, s{sHP}, s{sHI}\ns_lshl1_add_u32 s96, s{sHead}, s{sMI}",
              f"v_xor_b32 v{vPE}, 2048, v{vEx}\nv_xor_b32 v{vPF}, 8, v{vLF}",
              f"v_xor_b32 v{vPz}, 512, v{vEz}\nv_cmp_lt_u32 vcc, 1, v1",
              f"s_lshr_b32 s{sT0}, s{sRT}, 2\ns_lshl2_add_u32 s{sT1}, s96, s{sT0}"]
        cnt = 2
        for l in e1:
            if isinstance(l, tuple):
                cnt = 0 if not pend else cnt
                pend += l[1]
                continue
            if pend and cnt >= 2:
                x = pend.pop(0)
                a(x)
                cnt = x.count("ds_read")
            a(l)
            cnt += 2 if l.startswith("v_exp") else 1
        a(sc[0])
        self.out(interleave(pend, sc[1:], 0, 1, 1))
        self.stamp(1, 3)
        a(f"ds_write_b128 v{vEx}, {V(D(1,1),4)} offset:1024")
        a(f"v_cndmask_b32 v5, v{Z(1)}, v{Z(0)}, vcc")
        a(f"v_cndmask_b32 v6, v{Z(0)}, v{Z(1)}, vcc")
        a(f"ds_write_b32 v{vEz}, v5 offset:{L_EZ}")
        a(f"ds_write_b32 v{vLF}, v{v1} offset:{LF_P1}")
        a(f"s_lshl_b32 s{sT1}, s{sT1}, 8\ns_and_b32 s{sT0}, s{sRT}, 3")
        a(f"s_lshl2_add_u32 s{sT1}, s{sT0}, s{sT1}\ns_add_u32 s{sT1}, s{sT1}, {WS_ZP}")
        a(f"s_lshl_b32 s96, s96, 14\ns_add_u32 s96, s96, {WS_KVP}")
        a(f"s_lshl_b32 s{sT0}, s{sRT}, 10\ns_add_u32 s{sT0}, s{sT0}, s96")
        a(f"v_lshl_add_u32 v{vZo}, v4, 26, v{vL16}\nv_lshlrev_b32 v{vFo}, 26, v2")
        self.poll_lds(vPF, LF_P1, 1, 3, [f"ds_read_b128 {V(RX,4)}, v{vPE} offset:0",
                                         f"ds_read_b128 {V(RX+4,4)}, v{vPE} offset:1024",
                                         f"ds_read_b32 v5, v{vPz} offset:{L_EZ}"])
        for i in range(8):
            a(f"v_add_f32 v{RX+i}, v{RX+i}, v{D(0,0)+i}")
        for i in range(4):
            a(CVT(PK + i, RX + 2 * i, RX + 2 * i + 1))
        a(CVT(5, 5, 6))
        a(f"buffer_store_dwordx4 {V(PK,4)}, v{vL16}, {S(rWS,4)}, s{sT0} offen sc1")
        a(f"buffer_store_dword v5, v{vZo}, {S(rWS,4)}, s{sT1} offen sc1")
        self.stamp(3)
        self.stamp(3, 3)
        self.stamp(3, 4)
        if "X" in self.o("abl", ""):
            self.dump_stamps()
            a("s_endpgm")
        SEL, vEps = 208, 216
        su = ["v_and_b32 v3, 15, v2", "v_lshlrev_b32 v6, 2, v4", "v_sub_u32 v6, v3, v6",
              "v_mov_b32 v220, 0x3f80", "v_mov_b32 v221, 0x3f800000"]
        su += [f"v_mov_b32 v{SEL+i}, 0" for i in (0, 1, 4, 5)]
        for j in range(2):
            su += [f"v_cmp_eq_u32 vcc, {2*j}, v6", f"v_mov_b32 v{vEps+2*j}, s{sE}",
                   f"v_cndmask_b32 v{SEL+2+j}, v{SEL}, v220, vcc",
                   f"v_cmp_eq_u32 vcc, {2*j+1}, v6", f"v_mov_b32 v{vEps+2*j+1}, s{sE}",
                   f"v_cndmask_b32 v{SEL+2+j}, v{SEL+2+j}, v221, vcc"]
        NR, vRa = self.o("rep", 1), 232
        su += [f"s_mul_i32 s95, s{sHP}, {CSTR}\ns_add_u32 s95, s95, {WS_CNT}",
               f"v_mul_u32_u24 v{vRa}, {RSTR}, v2", f"v_lshrrev_b32 v233, {NR.bit_length()-1}, v2",
               f"v_lshl_add_u32 v{vRa}, v233, 26, v{vRa}",
               f"s_and_b32 s89, s{sRT}, {NR-1}\ns_mul_i32 s89, s89, {RSTR}\ns_add_u32 s89, s89, s95",
               f"s_lshl_b32 s{sT1}, s{sHead}, 11\ns_add_u32 s{sT1}, s{sT1}, {WS_ZP}",
               f"v_min_u32 v222, v{vEx}, v{vPE}", "v_mov_b32 v223, 1",
               (f"s_and_b32 s88, s{sRT}, 3\ns_lshl_b32 s88, s88, 12\ns_xor_b32 s96, s96, s88" if self.o("krot", 0) else ""),
               f"s_lshl1_add_u32 s{sT0}, s{sRT}, s{sMI}\ns_lshl_b32 s{sT0}, s{sT0}, 7",
               f"s_add_u32 s{sT0}, s{sT0}, s{sHead}\ns_lshl_b32 s{sT0}, s{sT0}, 10", f"s_add_u32 s{sT0}, s{sT0}, {WS_OF}"]
        vEB, vZc = 224, 228
        su += [f"v_mov_b32 v{vEB+i}, {EPSB}" for i in range(4)] + [f"v_mov_b32 v{vZc+i}, {fbits(2048*EPS)}" for i in range(4)]
        self.out(interleave(grp(1, 4, buf=WQ[0]) + grp(1, 5, buf=WQ[1]), su, 0, 1, 2))
        PQ = lambda mt: 24 + mt * 4
        tmp, PK = 76, 20
        pre1 = []
        for mt in range(4):
            if mt == self.o("arr1", 1):
                self.stamp(4, 3)
                self.arrive(vM, v1, vRa, LF_C1, 95, 3, sLast, 223)
                self.stamp(4)
                self.stamp(5, 3)
            for nt in range(2):
                s = AQ(mt, nt)
                if str(2 * mt + nt) in self.o("pp1", "x"):
                    self.poll_issue(vFo, 89, 234 + len(pre1), sLast)
                    pre1.append(234 + len(pre1))
                self.out(self.phi(s, tmp, sL))
                self.out([CVT(PQ(mt) + 2 * nt, s, s + 1), CVT(PQ(mt) + 2 * nt + 1, s + 2, s + 3)])
        self.stamp(6, 3)
        if self.o("cwait", 1) == 2:
            a(f"ds_write_b32 v{vLF}, v{v1} offset:{LF_PQ}")
        if "1" not in self.o("abl", ""):
            self.await_(vM, v1, vFo, LF_G1, 89, 238, sLast, 97, 71, 223, pre1)
        self.stamp(5)
        self.stamp(7, 3)
        PF, ZL, ZD, ZF, SD, KV = 132, 40, 48, 8, 56, 64
        DEN = lambda mt: 72 + 4 * mt
        for dt in range(2):
            a(f"buffer_load_dwordx4 {V(ZL+4*dt,4)}, v{vL16}, {S(rWS,4)}, s{sT1} offen offset:{1024*dt} sc1")
        lds_ = []
        for i in range(16):
            l = f"buffer_load_dwordx4 {V(PF+4*i,4)}, v{vL16}, {S(rWS,4)}, s96 offen offset:{(i%4)*1024} sc1"
            lds_.append((f"s_xor_b32 s96, s96, {4096 if i % 8 else 12288}\n" if i and i % 4 == 0 else "") + l)
        RL = self.o("rlead", 7)
        self.out(lds_[:RL])
        a(f"s_mul_i32 s95, s{sRT}, {CSTR}\ns_add_u32 s95, s95, {WS_CNT+16*CSTR}")
        self.stamp(8, 3)
        self.out([MF(ZD, ZL, vOne, V(vZc, 4)), MF(ZD + 4, ZL + 4, vOne, V(vZc, 4))])
        self.stamp(9, 3)
        zr = [[] for _ in range(32)]
        zr[3] = [CVT(ZF + i, ZD + 2 * i, ZD + 2 * i + 1) for i in range(4)]
        zr[4] = [MF(vEps, ZF, vEB)]
        zr[7] = [MF(DEN(mt), ZF, PQ(mt), V(vEps, 4)) for mt in range(4)]
        zr[10] = [f"v_rcp_f32 v{DEN(mt)}, v{DEN(mt)}" for mt in range(2)]
        zr[11] = [f"v_rcp_f32 v{DEN(mt)}, v{DEN(mt)}" for mt in range(2, 4)]
        sq = [f"v_mul_f32 v{DEN(mt)+1}, s{sE}, v{DEN(mt)}" for mt in range(4)]
        for mt in range(4):
            sq += [f"v_fma_f32 v{AQ(mt,0)+i}, v{AQ(mt,0)+i}, v{DEN(mt)}, v{DEN(mt)+1}" for i in range(8)]
            sq += [CVT(PQ(mt) + i, AQ(mt, 0) + 2 * i, AQ(mt, 0) + 2 * i + 1) for i in range(4)]
        for g in range(18):
            zr[12 + g] = sq[3 * g:3 * g + 3]
        for i in range(16):
            if i == self.o("pi", 10) and self.o("pause", 1):
                a(f"ds_write_b32 v{vLF}, v{v1} offset:{LF_PA}")
            a(MF(SD, SEL + 2, PF + 4 * i, "0" if i == 0 else None))
            self.out(zr[2 * i])
            a(MF(SD + 4, SEL, PF + 4 * i, "0" if i == 0 else None))
            if i + RL < 16:
                a(lds_[i + RL])
            self.out(zr[2 * i + 1])
        self.stamp(10, 3)
        for i in range(4):
            a(CVT(PK + i, SD + 2 * i, SD + 2 * i + 1))
        a(f"ds_write_b128 v{vEx}, {V(PK,4)} offset:0")
        a(f"ds_write_b32 v{vLF}, v{v1} offset:{LF_P2}")
        self.poll_lds(vPF, LF_P2, 1, 3, [f"ds_read_b128 {V(KV,4)}, v222 offset:0", f"ds_read_b128 {V(KV+4,4)}, v222 offset:2048"])
        self.stamp(11, 3)
        NUM = lambda mt, et: 100 + (mt * 2 + et) * 4
        OFR = lambda mt: 132 + 4 * mt
        self.out([MF(NUM(mt, et), KV + 4 * et, PQ(mt), "0") for mt in range(4) for et in range(2)])
        for mt in range(4):
            for i in range(4):
                a(CVT(OFR(mt) + i, NUM(mt, 0) + 2 * i, NUM(mt, 0) + 2 * i + 1))
            a(f"buffer_store_dwordx4 {V(OFR(mt),4)}, v{vL16}, {S(rWS,4)}, s{sT0} offen sc1")
            if mt < 3:
                a(f"s_add_u32 s{sT0}, s{sT0}, 32768")
        a(f"ds_write_b32 v{vLF}, v{v1} offset:{LF_OD}")
        self.stamp(6)
        self.stamp(12, 3)
        WB, vSo = 20, 8
        OR, OA, WF = 128, 32, [64, 80]

        def wreads(h):
            base = WO_SLOTS[h]
            win = min(base // 61440, 2)
            off = base - win * 61440
            assert off + 2048 < 65536
            return [f"ds_read_b64_tr_b16 {V(WF[h&1]+4*nt+2*t,2)}, v{WB+4*win+nt} offset:{off+2048*t}"
                    for nt in range(4) for t in range(2)]

        a("v_lshrrev_b32 v3, 2, v2\nv_bfe_u32 v5, v2, 3, 2")
        a("v_lshlrev_b32 v5, 5, v5\nv_lshl_add_u32 v5, v3, 7, v5")
        a(f"v_and_b32 v3, 3, v2\nv_lshl_add_u32 v{WB}, v3, 3, v5")
        for nt in range(4):
            if nt:
                a(f"v_xor_b32 v{WB+nt}, {32*nt}, v{WB}")
            for win in (1, 2):
                a(f"v_add_u32 v{WB+4*win+nt}, {win*61440}, v{WB+nt}")
        sO0, sO1 = 98, 99
        a(f"s_lshl2_add_u32 s88, s{sRT2}, s{sWave}\ns_lshl_b32 s{sO0}, s88, 16\ns_add_u32 s{sO0}, s{sO0}, {WS_OF}")
        a(f"s_add_u32 s{sO1}, s{sO0}, 32768")
        a(f"s_mul_i32 s96, s{sRT2}, {CSTR}\ns_add_u32 s96, s96, {WS_CNT+16*CSTR}")
        a(f"s_and_b32 s89, s{sCT}, {NR-1}\ns_mul_i32 s89, s89, {RSTR}\ns_add_u32 s96, s96, s89")
        def arrive2():
            self.stamp(13, 3)
            if "3" not in self.o("abl", ""):
                self.arrive(vM, v1, vRa, LF_C2, 95, 3, sLast)
            self.stamp(7)
            self.stamp(14, 3)
        if not self.scal(LF_C2):
            arrive2()
        pre2 = []
        if self.o("pp2", 0) >= 1:
            self.poll_issue(vFo, 96, 234, sLast)
            pre2.append(234)
        vEw, vEr = 9, 13
        a(f"v_sub_u32 v14, v{vEx}, v{vL16}")
        a("v_lshrrev_b32 v3, 3, v2\nv_and_b32 v5, 7, v2\nv_lshlrev_b32 v6, 4, v5")
        a(f"v_lshl_add_u32 v{vSo}, v3, 12, v6\nv_xor_b32 v6, v5, v3\nv_lshlrev_b32 v6, 4, v6")
        a(f"v_lshl_add_u32 v6, v3, 7, v6\nv_add_u32 v{vEr}, v14, v6")
        a("v_lshrrev_b32 v6, 1, v4\nv_xor_b32 v6, v6, v5\nv_lshlrev_b32 v6, 4, v6\nv_and_b32 v3, 15, v2")
        a(f"v_lshl_add_u32 v6, v3, 7, v6\nv_and_b32 v3, 1, v4\nv_lshl_add_u32 v6, v3, 3, v6\nv_add_u32 v{vEw}, v14, v6")
        for nt in range(1, 4):
            a(f"v_xor_b32 v{vEw+nt}, {32*nt}, v{vEw}")
        a(f"s_lshl_b32 s{sT0}, s88, 17\ns_lshl_b32 s{sT1}, s{sCT}, 7\ns_add_u32 s{sT0}, s{sT0}, s{sT1}")
        self.poll_lds(vM, LF_W0, 4, 3)
        if self.o("pp2", 0) >= 2:
            self.poll_issue(vFo, 96, 235, sLast)
            pre2.append(235)
        WF2 = (64, 72, 80, 88)

        def wr2(i):
            u, nt = divmod(i, 4)
            return [wreads(2 * u + hh)[2 * nt + t].replace(V(WF[hh] + 4 * nt + 2 * t, 2), V(WF2[i % 4] + 4 * hh + 2 * t, 2))
                    for hh in range(2) for t in range(2)]
        self.out(wr2(0) + wr2(1) if self.o("och", 1) else wreads(0))
        a("s_waitcnt lgkmcnt(0)")
        if self.scal(LF_C2):
            arrive2()
        if "2" not in self.o("abl", ""):
            self.await_(vM, v1, vFo, LF_G2, 96, 238, sLast, 97, 71, None, pre2)
        self.stamp(8)

        def oload(h):
            r = []
            if h and h % 4 == 0:
                r += [f"s_add_u32 s{sO0}, s{sO0}, 4096", f"s_add_u32 s{sO1}, s{sO1}, 4096"]
            for m_ in range(2):
                r.append(f"buffer_load_dwordx4 {V(OR+(h%8)*8+4*m_,4)}, v{vL16}, {S(rWS,4)}, s{sO0+m_} offen offset:{(h%4)*1024} sc1")
            return r

        if self.o("och", 1):
            LEAD = self.o("lead", 3)
            assert LEAD <= 3
            for h in range(2 * LEAD):
                self.out(oload(h))
            steps = [(u, nt) for u in range(16) for nt in range(4)]
            for i, (u, nt) in enumerate(steps):
                if nt == 2 and 2 * u + 2 == 14:
                    self.poll_lds(vM, LF_WA, 4, 3)
                if nt == 2 and 2 * u + 2 == NE:
                    self.poll_lds(vM, LF_WB, 4, 3)
                if i == 2:
                    self.cstamp(5)
                    self.stamp(13)
                if i == 32:
                    self.stamp(14)
                b = WF2[i % 4]
                mm = []
                for j, m_ in enumerate((0, 1) if nt % 2 == 0 else (1, 0)):
                    for k, hh in enumerate((0, 1) if j == 0 else (1, 0)):
                        mm.append(MF(OA + (m_ * 4 + nt) * 4, b + 4 * hh, OR + ((2 * u + hh) % 8) * 8 + 4 * m_,
                                     "0" if u == 0 and k == 0 else None))
                gaps = [[x] for x in wr2(i + 2)] if i + 2 < 64 else [[] for _ in range(4)]
                if u + LEAD < 16:
                    ld = oload(2 * (u + LEAD) + (nt >> 1))
                    if nt & 1 == 0:
                        gaps[0] += ld[:-2]
                    gaps[self.o("lg", 3)].append(ld[-2 + (nt & 1)])
                for m_, g_ in zip(mm, gaps):
                    a(m_)
                    self.out(g_)
        else:
            LEAD = self.o("lead", 5)
            assert LEAD <= 7
            for h in range(LEAD):
                self.out(oload(h))
            for h in range(32):
                if h + 1 == 14:
                    self.poll_lds(vM, LF_WA, 4, 3)
                if h + 1 == NE:
                    self.poll_lds(vM, LF_WB, 4, 3)
                mm = [MF(OA + (m_ * 4 + nt) * 4, WF[h & 1] + 4 * nt, OR + (h % 8) * 8 + 4 * m_, "0" if h == 0 else None)
                      for nt in range(4) for m_ in ((0, 1) if nt % 2 == 0 else (1, 0))]
                rd = wreads(h + 1) if h < 31 else []
                ld = oload(h + LEAD) if h + LEAD < 32 else []
                if h == 1:
                    self.cstamp(5)
                    self.stamp(13)
                if h == 16:
                    self.stamp(14)
                gaps = [[] for _ in range(8)]
                g0, g1 = divmod(self.o("lg", 37), 10)
                for r_, g_ in zip(rd, range(8)):
                    gaps[g_].append(r_)
                if ld:
                    gaps[0] += ld[:-2]
                    gaps[g0].append(ld[-2])
                    gaps[g1].append(ld[-1])
                if h == max(self.o("yh", -1), self.o("ys", -1)):
                    gaps[0].append(f"ds_write_b32 v{vLF}, v{v1} offset:{LF_YG}")
                for m_, g_ in zip(mm, gaps):
                    a(m_)
                    self.out(g_)
        self.stamp(9)
        self.cstamp(7)
        ST, SO = 64, 128
        for m_ in range(2):
            for nt in range(4):
                s, d = OA + (m_ * 4 + nt) * 4, ST + (m_ * 4 + nt) * 2
                self.out([CVT(d, s, s + 1), CVT(d + 1, s + 2, s + 3), f"ds_write_b64 v{vEw+nt}, {V(d,2)}"])
            for j in range(2):
                a(f"ds_read_b128 {V(SO+(m_*2+j)*4,4)}, v{vEr} offset:{1024*j}")
        for j in range(4):
            a(f"buffer_store_dwordx4 {V(SO+4*j,4)}, v{vSo}, {S(rO,4)}, s{sT0} offen {self.o('fa', 'nt').replace('+', ' ')}")
            if j < 3:
                a(f"s_add_u32 s{sT0}, s{sT0}, {8*4096}")
        self.dump_stamps()
        a.label("L_end")
        a("s_endpgm")

    def helper(self):
        a = self.a
        sched = self.sched
        sW4, sXo, sWo_, sLb = 64, 65, 66, 67
        sT0, sT1, sD, sScr, sUc, sST, sDG, sT2, sPX, sPW, sWB, sUo = range(88, 100)
        vFo, vX, vW, vWo, vL16, vPX, vPW, vU = 7, 8, 9, 10, 11, 12, 13, 14
        UTR, USG = 240, 4352
        sU1, sU2 = 24, 25
        vmq = []

        def emit(l, tag=None):
            n0 = len(a.ins)
            a(l)
            vmq.extend(tag for x in a.ins[n0:] if x.kind == "vmem")

        def wait_tag(tag):
            last = max(i for i, t in enumerate(vmq) if t == tag)
            a(f"s_waitcnt vmcnt({len(vmq)-1-last})")

        def run(lst):
            for l in lst:
                if isinstance(l, list):
                    run(l)
                elif isinstance(l, tuple):
                    if l[0] == "WAIT":
                        wait_tag(l[1])
                    else:
                        emit(l[0], l[1])
                else:
                    emit(l)

        uearly = "U" in sched["p"] and not self.o("uhack", 0)
        explicit = {int(o[1:]) for v in sched.values() for o in v if o[0] == "S"}
        done = set()

        def once(key, lst):
            if key in done:
                return []
            done.add(key)
            return lst

        def setup_ring():
            return once("ring", self.ids1(sT0) + [
                "v_bfe_u32 v4, v0, 3, 5", "v_lshrrev_b32 v5, 1, v4", "v_xor_b32 v6, v5, v2", "v_and_b32 v6, 7, v6",
                "v_lshlrev_b32 v6, 4, v6", f"v_lshl_add_u32 v{vX}, v4, 11, v6",
                "v_and_b32 v5, 4, v5", "v_and_or_b32 v5, v4, 2, v5", "v_xor_b32 v5, v5, v2", "v_and_b32 v5, 7, v5",
                "v_mul_u32_u24 v6, 6144, v4", f"v_lshl_add_u32 v{vW}, v5, 4, v6",
                f"s_lshl_b32 s{sXo}, s{sRT}, 18", f"s_lshl_b32 s{sWo_}, s{sHP}, 7"])

        def setup_touch():
            return once("touch", [
                "v_and_b32 v5, 3, v2", "v_lshlrev_b32 v5, 7, v5", "v_lshrrev_b32 v6, 2, v2",
                f"v_lshl_add_u32 v{vPW}, v6, 11, v5", f"v_lshl_add_u32 v{vPX}, v3, 26, v{vPW}",
                f"s_lshr_b32 s{sT0}, s2, 3", f"s_lshl2_add_u32 s{sT0}, s{sT0}, s{sW4}",
                f"s_and_b32 s{sT1}, s2, 1", bfe(sT2, 2, 1, 2),
                f"s_mul_i32 s{sPW}, s{sT0}, 24", f"s_add_u32 s{sPW}, s{sPW}, s{sT2}", f"s_lshl_b32 s{sPW}, s{sPW}, 9",
                f"s_lshl2_add_u32 s{sPX}, s{sT1}, s{sT2}", f"s_lshl_b32 s{sPX}, s{sPX}, 7", f"s_add_u32 s{sPX}, s{sPX}, s{sT0}",
                f"s_lshl_b32 s{sPX}, s{sPX}, 12",
                f"s_mul_i32 s{sT1}, s{sT1}, 12", f"s_lshl_b32 s{sT1}, 0xfff, s{sT1}",
                f"s_or_b32 vcc_lo, s{sT1}, {0x888888 if self.o('fixw', 1) else 0}", "s_mov_b32 vcc_hi, 0", "v_mov_b32 v5, 0x4000000",
                f"v_cndmask_b32 v{vPW}, v5, v{vPW}, vcc"])

        def setup_u():
            return once("u", [
                f"s_lshr_b32 s{sST}, s2, 4", f"s_and_b32 s{sDG}, s2, 15",
                "v_and_b32 v5, 3, v2", "v_lshlrev_b32 v5, 4, v5", "v_lshrrev_b32 v6, 2, v2", f"v_lshl_add_u32 v{vU}, v6, 11, v5",
                *([f"s_and_b32 s{sU1}, s2, 31", f"s_lshr_b32 s{sT0}, s2, 5", f"s_lshl2_add_u32 s{sU2}, s{sT0}, s{sW4}"]
                  if self.o("umap", 1) else
                  [f"s_lshr_b32 s{sT0}, s{sW4}, 1", f"s_lshl1_add_u32 s{sU1}, s{sST}, s{sT0}",
                   f"s_and_b32 s{sT0}, s{sW4}, 1", f"s_lshl1_add_u32 s{sU2}, s{sDG}, s{sT0}"]),
                f"s_lshl_b32 s{sUo}, s{sU1}, 11", f"s_add_u32 s{sUo}, s{sUo}, s{sU2}", f"s_lshl_b32 s{sUo}, s{sUo}, 6"])

        UP = 4096 if uearly else 1024

        def setup_t():
            return once("t", [
                srd(rWS, pWs, WS_SIZE), f"s_lshl2_add_u32 s{sD}, s2, s{sW4}", f"s_mul_i32 s{sScr}, s{sW4}, {SCR}",
                f"v_lshlrev_b32 v{vFo}, 26, v2",
                "v_and_b32 v4, 1, v2", f"v_mul_u32_u24 v4, {2*UP}, v4", "v_bfe_u32 v5, v2, 2, 2", "v_lshl_add_u32 v4, v5, 6, v4",
                "v_and_b32 v5, 48, v2", "v_and_b32 v6, 2, v2", "v_lshl_add_u32 v5, v6, 2, v5",
                f"s_add_u32 s{sT0}, s{sLb}, {SL(2)}" if uearly else f"s_add_u32 s{sT0}, s{sScr}, {USG}",
                f"v_add3_u32 v17, v4, v5, s{sT0}",
                "v_and_b32 v6, 7, v2", "v_lshlrev_b32 v5, 4, v6", "v_lshl_add_u32 v18, v3, 14, v5"])

        bX, bW, bO, bF, bG = 18, 20, 22, 26, 28

        covered = {int(o[1]) for v in sched.values() for o in v if o[0] == "A"}
        k0 = self.o("spk", 4 * (max(covered) + 1) if covered else 2)

        def setup_sp():
            return once("sp", setup_touch() + kwait() + [
                f"s_add_u32 s{bX}, s{pX}, s{sPX}", f"s_addc_u32 s{bX+1}, s{pX+1}, 0",
                f"s_lshr_b32 s{sT0}, s2, 3", f"s_and_b32 s{sT1}, s2, 1", f"s_lshl1_add_u32 s{sT0}, s{sT0}, s{sT1}",
                f"s_add_u32 s{sT0}, s{sT0}, {64*k0}", f"s_mul_i32 s{sT0}, s{sT0}, 12", bfe(sT1, 2, 1, 2),
                f"s_add_u32 s{sT0}, s{sT0}, s{sT1}", f"s_lshl2_add_u32 s{sT0}, s{sT0}, s{sW4}", f"s_lshl_b32 s{sT0}, s{sT0}, 7",
                f"s_add_u32 s{bW}, s{pW}, s{sT0}", f"s_addc_u32 s{bW+1}, s{pW+1}, 0",
                f"s_lshr_b32 s{sT0}, s2, 3", f"s_andn2_b32 s{sT2}, 1, s2", f"s_lshl1_add_u32 s{sT0}, s{sT0}, s{sT2}",
                f"s_add_u32 s{sT0}, s{sT0}, {64*k0}", f"s_mul_i32 s{sT0}, s{sT0}, 12", f"s_add_u32 s{sT0}, s{sT0}, s{sT1}",
                f"s_min_u32 s{sT2}, s{sW4}, 2", f"s_lshl2_add_u32 s{sT0}, s{sT2}, s{sT0}", f"s_lshl_b32 s{sT0}, s{sT0}, 9",
                f"s_add_u32 s{bF}, s{pW}, s{sT0}", f"s_addc_u32 s{bF+1}, s{pW+1}, 0",
                f"s_lshl2_add_u32 s{sT0}, s2, s{sW4}", f"s_lshl_b32 s{sT0}, s{sT0}, 7",
                f"s_add_u32 s{bO}, s{pWo}, s{sT0}", f"s_addc_u32 s{bO+1}, s{pWo+1}, 0"])
        assert k0 == 8

        def sp_trip():
            ld = lambda b, off: f"s_load_dwordx2 s[16:17], {S(b,2)}, {off+60}"
            r = []
            for i in range(2):
                r += [ld(bW, i * 64 * 6144 + sec * 2048) for sec in range(3)] + [ld(bX, rr * 2048 + (k0 + i) * 128) for rr in range(2)]
                r.append(ld(bF, (i - 1) * 64 * 6144 + 384) if self.o("fixs", 1) else "")
            r[-1] += (f"\ns_add_u32 s{bW}, s{bW}, {128*6144}\ns_addc_u32 s{bW+1}, s{bW+1}, 0"
                      f"\ns_add_u32 s{bF}, s{bF}, {128*6144}\ns_addc_u32 s{bF+1}, s{bF+1}, 0"
                      f"\ns_add_u32 s{bX}, s{bX}, 256\ns_addc_u32 s{bX+1}, s{bX+1}, 0")
            return r

        sTrip, sUcnt = 30, 31

        def setup_rest():
            return setup_ring() + setup_touch() + setup_u() + setup_t() + setup_sp() + once("rest", [
                srd(rO, pOut, 8 << 20), srd(rWo, pWo, 2 << 20),
                f"s_lshr_b32 s{sUcnt}, s2, 5", f"s_mul_i32 s{sUcnt}, s{sUcnt}, {CSTR}",
                f"s_add_u32 s{sUcnt}, s{sUcnt}, {WS_CNT+48*CSTR}", f"s_mov_b32 s{sTrip}, 0",
                "v_mov_b32 v4, 0", "v_mov_b32 v6, 1"]) + once("l16", [f"v_lshlrev_b32 v{vL16}, 4, v2"])

        def kwait():
            return once("k", ["s_waitcnt lgkmcnt(0)", srd(rX, pX, 4 << 20), srd(rW, pW, 6 << 20)])

        def stage(k, kb=0):
            sl = SL(k % 3)
            tag, k = ("st", k), k - kb
            r = []
            for j in range(4):
                r.append([f"s_add_u32 m0, s{sLb}, {sl+j*4096}", f"s_add_u32 s{sT0}, s{sXo}, {k*128+j*32*2048}",
                          (f"buffer_load_dwordx4 v{vX}, {S(rX,4)}, s{sT0} offen {self.o('fr', '').replace('+', ' ')} lds", tag)])
            for sec in range(3):
                for j in range(2):
                    r.append([f"s_add_u32 m0, s{sLb}, {sl+16384+sec*8192+j*4096}",
                              f"s_add_u32 s{sT0}, s{sWo_}, {(k*64+j*32)*6144+sec*2048}",
                              (f"buffer_load_dwordx4 v{vW}, {S(rW,4)}, s{sT0} offen {self.o('fr', '').replace('+', ' ')} lds", tag)])
            return r

        def tok(o):
            if "U" in self.o("abl", "") and (o == "U" or o[0] == "t"):
                return []
            if "U" in self.o("abl", "") and o == "T":
                return setup_u() + [x for x in tok0(o) if not isinstance(x, tuple) and "dpp" not in x and "ds_read" not in x]
            return tok0(o)

        def tok0(o):
            if o[0] == "A":
                q = int(o[1])
                return setup_touch() + kwait() + [
                    f"s_add_u32 s{sT0}, s{sPX}, {q*512}", f"buffer_load_dword v16, v{vPX}, {S(rX,4)}, s{sT0} offen",
                    f"s_add_u32 s{sT0}, s{sPW}, {q*256*6144}", f"buffer_load_dword v16, v{vPW}, {S(rW,4)}, s{sT0} offen"]
            if o[0] == "S":
                return setup_ring() + kwait() + stage(int(o[1:]))
            if o == "R":
                return setup_rest()
            if o == "F":
                return setup_rest() + [f"global_load_dword v5, v4, {S(pDbg,2)} sc1"]
            if o[0] == "a":
                n = int(o[1:])
                r = setup_t() + once("l16", [f"v_lshlrev_b32 v{vL16}, 4, v2"]) + adq[:n]
                del adq[:n]
                return r
            if o == "U":
                r = kwait() + setup_u() + [srd(rU, pU, 4 << 20)]
                for j in range(4):
                    r += [f"s_add_u32 m0, s{sLb}, {SL(2)+j*4096}" if uearly else f"s_add_u32 m0, s{sScr}, {USG+j*1024}",
                          f"s_add_u32 s{sT0}, s{sUo}, {j*16*2048}",
                          (f"buffer_load_dwordx4 v{vU}, {S(rU,4)}, s{sT0} offen lds", "ut")]
                return r
            if o == "T":
                r = setup_t() + [("WAIT", "ut")]
                r += [f"ds_read_b64_tr_b16 {V(UTR+4*k+2*t,2)}, v17 offset:{(k>>1)*UP+(k&1)*512+256*t}" for k in range(4) for t in range(2)]
                r += [
                      f"s_lshl_b32 s{sUo}, s{sU2}, 10", f"s_add_u32 s{sUo}, s{sUo}, s{sU1}", f"s_lshl_b32 s{sUo}, s{sUo}, 7"]
                return r + self.quad_t(UTR, UTR - 16)
            if o[0] == "t":
                k = int(o[1])
                return [f"s_add_u32 s{sT2}, s{sUo}, {WS_UT+k*4096}",
                        f"buffer_store_dwordx4 {V(UTR+4*k,4)}, v18, {S(rWS,4)}, s{sT2} offen sc1"]
            if o == "W":
                return ["v_and_b32 v4, 15, v2", "v_lshlrev_b32 v4, 7, v4", f"s_lshl_b32 s{sT1}, s{sD}, 11",
                        f"buffer_load_dword v16, v4, {S(rWo,4)}, s{sT1} offen"]
            raise ValueError(o)

        vKA, vUA, vMy, vOob = 30, 31, 27, 26
        WL, BK, BD, CA = 40, 72, 88, 96
        AS, A32, BS, BH, GT = [128, 148], 144, [164, 196], 228, 244
        ad = ["\n".join(self.ids2(sWB)), f"s_lshl_b32 s{sWB}, s{sCT}, 7",
              f"s_mul_i32 s{sUc}, s{sW4}, {UC}", f"s_add_u32 s{sUc}, s{sUc}, {L_UC}",
              f"v_add_u32 v20, s{sScr}, v{vL16}", f"v_lshl_add_u32 v19, v2, 3, s{sScr}",
              "v_min_u32 v32, 1, v2", "v_lshl_add_u32 v32, v32, 2, v19", "v_add_u32 v32, 1024, v32",
              f"v_mov_b32 v33, {TB+2044}", f"v_add_u32 v33, s{sScr}, v33",
              "v_and_b32 v28, 15, v2", "v_lshrrev_b32 v29, 4, v2", "v_lshlrev_b32 v34, 2, v29", "v_sub_u32 v34, v28, v34",
              f"v_lshl_add_u32 v35, v34, 3, s{sScr}", f"v_add_u32 v35, {TB+2048+4-24}, v35"]
        nad0 = len(ad)
        ad += ["v_and_b32 v21, 6, v3", "v_xor_b32 v21, v21, v2", "v_and_b32 v21, 7, v21", "v_lshlrev_b32 v21, 4, v21",
               f"v_lshl_add_u32 v{vWo}, v3, 11, v21",
               "v_mov_b32 v21, 1024", f"v_add_u32 v21, s{sScr}, v21", f"v_sub_u32 v22, v21, v{vL16}",
               "v_lshlrev_b32 v23, 3, v2", "v_sub_u32 v21, v21, v23",
               "v_min_u32 v23, 19, v2", "v_lshrrev_b32 v24, 2, v23", "v_and_b32 v25, 3, v23",
               f"v_mul_u32_u24 v23, {RCS}, v24", "v_lshl_add_u32 v23, v25, 4, v23", f"v_add_u32 v23, s{sScr}, v23",
               "v_lshlrev_b32 v36, 4, v24", "v_lshlrev_b64 v[36:37], v36, -1",
               "v_add_u32 v25, 1, v25", "v_bfe_i32 v38, v25, 2, 1", "v_and_b32 v36, v36, v38", "v_and_b32 v37, v37, v38",
               "v_and_b32 v15, 3, v2", f"v_mul_u32_u24 v{vKA}, {RCS}, v15", "v_and_b32 v15, 48, v2",
               f"v_add3_u32 v{vKA}, v{vKA}, v15, s{sScr}", f"v_lshl_add_u32 v{vUA}, v28, 5, v15", f"v_add_u32 v{vUA}, s{sUc}, v{vUA}",
               "v_and_b32 v15, 12, v2", "v_lshlrev_b32 v15, 1, v15", "v_sub_u32 v15, 24, v15", f"v_add_u32 v{vKA}, v{vKA}, v15",
               f"v_mov_b32 v{vOob}, 0x4000000", f"v_mov_b32 v15, {L_MISC-16}", f"v_lshl_add_u32 v{vMy}, v1, 2, v15",
               "v_mov_b32 v15, 1", "v_mov_b32 v25, 0", "v_lshlrev_b32 v29, 3, v29"]
        for b, w in enumerate((3, 4)):
            ad += [f"v_mov_b32 v39, {((1 << (2*w+1)) - 1) << (8-w)}", "v_lshlrev_b32 v39, v28, v39", "v_lshrrev_b32 v39, v29, v39"]
            for st_ in range(4):
                for j in range(4):
                    d = BD + 4 * b + j
                    ad.append([f"v_bfe_u32 v{d}, v39, {2*j}, 2", f"v_mul_u32_u24 v{d}, 0x8001, v{d}",
                               f"v_and_b32 v{d}, 0x10001, v{d}", f"v_mul_u32_u24 v{d}, 0x3f80, v{d}"][st_])
        P0, K0, X1, Y1, X2, Y2, HD, RB = 128, 132, 136, 140, 144, 228, 146, 164
        exr = [f"ds_read_b128 {V(P0,4)}, v20 offset:{TB-16}", f"ds_read_b128 {V(K0,4)}, v20 offset:{TB}",
               f"ds_read2_b32 {V(X1,2)}, v32 offset0:{(TB-12)//4} offset1:{(TB-8)//4}", f"ds_read_b32 v{X1+2}, v32 offset:{TB-4}",
               f"ds_read_b64 {V(Y1,2)}, v19 offset:{TB+1024}", f"ds_read_b32 v{Y1+2}, v19 offset:{TB+1024+8}",
               f"ds_read2_b32 {V(X2,2)}, v32 offset0:{(TB+512-8)//4} offset1:{(TB+512-4)//4}",
               f"ds_read_b64 {V(Y2,2)}, v19 offset:{TB+1536}", f"ds_read_b32 v{Y2+2}, v19 offset:{TB+1536+8}",
               f"ds_read2_b32 {V(HD,2)}, v33 offset0:0 offset1:1"]
        exr += [f"ds_read2_b32 {V(RB+8*kp+2*r,2)}, v35 offset0:{32*kp+2*(3-r)} offset1:{32*kp+2*(3-r)+1}"
                for kp in range(4) for r in range(4)]
        ex = [CVT(BK + 4 * kp + r, RB + 8 * kp + 2 * r, RB + 8 * kp + 2 * r + 1) for kp in range(4) for r in range(4)]
        for r in range(4):
            ex.append(f"v_cmp_gt_i32 vcc, {r}, v34\ns_nop 1\nv_cndmask_b32 v{BK+r}, v{BK+r}, v25, vcc")
        HO = 148
        ex += [f"v_cmp_eq_u32 vcc, 0, v24\n{CVT(HO+2, HD+1, HD+1)}\nv_and_b32 v{HO}, v{HO+2}, v36\n"
               f"v_cndmask_b32 v{HD}, v{HD+1}, v{HD}, vcc",
               "v_cmp_eq_u32 vcc, 0, v2", CVT(HO + 3, HD + 1, HD), f"v_and_b32 v{HO+1}, v{HO+2}, v37",
               f"v_and_b32 v{HO+2}, v{HO+2}, v38", f"v_and_b32 v{HO+3}, v{HO+3}, v38"]
        ex += [f"v_cndmask_b32 v{P0+i}, v{P0+i}, v25, vcc" for i in (1, 2, 3)]
        exw = [f"ds_write_b128 v23, {V(HO,4)}"]
        q0 = [P0 + 1, P0 + 2, P0 + 3, K0, K0 + 1, K0 + 2, K0 + 3]
        q1 = [X1, X1 + 1, X1 + 2, Y1, Y1, Y1 + 1, Y1 + 2]
        q2 = [X2, X2 + 1] + [Y2] * 4 + [Y2 + 1] * 3 + [Y2 + 2] * 2
        for dl in range(4):
            d, o = BS[1] + 8 * dl, dl * RCS
            for dd, q, n in ((d, q0, 4), (d + 2, q1, 4), (d + 4, q2, 8)):
                rv = q[dl:dl + n][::-1]
                ex += [CVT(dd + i, rv[2 * i], rv[2 * i + 1]) for i in range(n // 2)]
            exw += [f"ds_write_b64 v21, {V(d,2)} offset:{o+2104-1024}", f"ds_write_b64 v21, {V(d+2,2)} offset:{o+1592-1024}",
                    f"ds_write_b128 v22, {V(d+4,4)} offset:{o+1072-1024}"]
        adq = list(ad)
        a.label("L_helper")
        a(f"s_sub_u32 s{sW4}, s{sWave}, 4\ns_lshl_b32 s{sLb}, s{sW4}, 10\nv_lshrrev_b32 v3, 3, v2")
        flat = sched["p"] + sched.get(0, []) + ["S2"]
        assert "W" not in sched["p"]
        assert self.o("uhack", 0) or (flat.index("T") < flat.index("S2") if uearly else "U" not in flat)
        if self.o("uhack", 0):
            a(f"s_mul_i32 s{sScr}, s{sW4}, {SCR}")
        for o in sched["p"]:
            run(tok(o))
        run(setup_rest())
        self.prof_init()
        self.stamp(9)

        uc = [[f"s_lshl_b32 s{sT1}, s{sD}, 12", f"s_add_u32 s{sT1}, s{sT1}, {WS_UT}", f"s_mov_b32 m0, s{sUc}",
               (f"buffer_load_dwordx4 v{vOob}, {S(rWS,4)}, 0 offen lds", "uc"), f"s_add_u32 m0, s{sUc}, 480",
               f"s_lshl_b32 s{sPX}, s{sW4}, 16", f"s_add_u32 s{sPX}, s{sPX}, s{sWB}",
               f"s_lshl_b32 s{sPW}, s{sW4}, 14", f"s_add_u32 s{sPW}, s{sPW}, s{sWB}", f"v_mov_b32 v14, {L_MISC}"]]
        uc += [(f"buffer_load_dwordx4 v{vL16}, {S(rWS,4)}, s{sT1} offen offset:{1024*k} sc1 lds", "uc") for k in range(4)]
        wlate = [f"s_add_u32 s{sT0}, s{sPX}, {(NE+4*j)*65536+pc*16384}\n"
                 f"buffer_load_dwordx4 {V(WL+16*j+4*pc,4)}, v{vWo}, {S(rWo,4)}, s{sT0} offen"
                 for j in range(2) for pc in range(4)]

        def wo_dma(h):
            return (f"s_add_u32 m0, s{sLb}, {WO_SLOTS[h]}\ns_add_u32 s{sT0}, s{sPW}, {h*65536}\n"
                    f"buffer_load_dwordx4 v{vWo}, {S(rWo,4)}, s{sT0} offen {self.o('fr', '').replace('+', ' ')} lds")

        def barrier(k):
            if self.prof >= 20 and isinstance(k, int) and 0 <= k - 3 * (self.prof - 20) < 3:
                j = k - 3 * (self.prof - 20)
                a(f"s_memtime {S(72 + 4 * j, 2)}\ns_barrier\ns_memtime {S(74 + 4 * j, 2)}")
                return
            a("s_barrier")
            if self.prof in (6, 7, 8) and isinstance(k, int) and 0 <= k - 6 * (self.prof - 6) < 7:
                a(f"s_memtime {S(72 + 2 * (k - 6 * (self.prof - 6)), 2)}")

        assert explicit == {0, 1}
        kt = [k for k, v in sched.items() if "t3" in v][0]
        if kt == "p":
            assert sched["p"].index("t3") < sched["p"].index("S1")
            atrip = self.o('atrip', 1)
        else:
            atrip = (kt + 3) // 3
            assert atrip < 3 and all(o[0] == "t" for k, v in sched.items() if k != "p" for o in v)
        usc = "u" in self.o("sat", "u12y")
        wait_tag(("st", 0))
        loop, wsc, wl = self.o("hloop", 1), self.o("wsc", 1), self.o("wl", 2)
        worder = [p for p in list(range(7)) + list(range(12, 16)) + list(range(7, 12)) if p >= 4 * wl] if wsc else []

        def wpf(st, n):
            ps = [worder.pop(0) for _ in range(min(n, len(worder)))]
            x = [f"s_load_dwordx2 s[16:17], {S(bO,2)}, {(p-8)*131072+60}" for p in ps]
            return interleave(st, x, 1, 2, 1)
        for trip in range(1 if loop else 4):
            if loop:
                a(".p2align 3")
                a.label("L_hloop")
            x = sp_trip()
            for i in range(3):
                barrier(None if loop else 3 * trip + i)
                if i == 0 and trip == 0:
                    self.stamp(1, 1 if not loop else 99)
                xi = x[4 * i:4 * i + 4]
                pos = (1, 3, 6, 8)
                if wsc and i >= 3 - wl:
                    xi.insert(2, f"s_load_dwordx2 s[16:17], {S(bO,2)}, 60"
                                 f"\ns_add_u32 s{bO}, s{bO}, 131072\ns_addc_u32 s{bO+1}, s{bO+1}, 0")
                    pos = (0, 2, 4, 6, 8)
                st = stage(2 + i)
                run([y for j, d in enumerate(st) for y in [d] + ([xi[pos.index(j)]] if j in pos else [])])
                for tr in range(4):
                    if 3 * tr + i in sched:
                        l = self.lab("ts")
                        a(f"s_cmp_lg_u32 s{sTrip}, {tr}\ns_cbranch_scc1 {l}")
                        for o in sched[3 * tr + i]:
                            self.out(tok(o))
                        a.label(l)
                if i == 0 or i == 2:
                    l = self.lab("ev")
                    if atrip:
                        a(f"s_xor_b32 s{sT0}, s{sTrip}, {atrip}\ns_or_b32 s{sT0}, s{sT0}, s{sW4}")
                    else:
                        a(f"s_or_b32 s{sT0}, s{sTrip}, s{sW4}")
                    a(f"s_cbranch_scc1 {l}")
                    if i == 0:
                        a(f"global_load_dword v5, v4, {S(pDbg,2)} sc1")
                    else:
                        l2, l3 = self.lab("evs"), self.lab("evd")
                        a(f"s_mov_b32 s{sT1}, {SPIN}")
                        a.label(l2)
                        a("v_cmp_ne_u32 vcc, 0, v5")
                        a(f"s_cbranch_vccnz {l3}")
                        a(f"global_load_dword v5, v4, {S(pDbg,2)} sc1")
                        a(f"s_sub_u32 s{sT1}, s{sT1}, 1")
                        a("s_waitcnt vmcnt(0)")
                        a(f"s_cbranch_scc0 {l2}")
                        a.label(l3)
                        if usc:
                            a(f"s_mov_b32 s39, 1 ; nowait\ns_atomic_add s39, {S(pWs,2)}, s{sUcnt} ; nowait")
                        else:
                            a(f"buffer_atomic_add v6, v{vFo}, {S(rWS,4)}, s{sUcnt} offen sc1")
                    a.label(l)
                if i == 2:
                    a(f"s_add_u32 s{sXo}, s{sXo}, {3*128}\ns_add_u32 s{sWo_}, s{sWo_}, {3*64*6144}")
                    a(f"s_add_u32 s{sTrip}, s{sTrip}, 1\ns_cmp_lt_u32 s{sTrip}, 4")
                a("s_waitcnt vmcnt(10)")
            if loop:
                a("s_cbranch_scc1 L_hloop")
        barrier(12)
        l = self.lab("ev")
        a(f"s_cmp_lg_u32 s{sW4}, 0\ns_cbranch_scc1 {l}")
        a(f"buffer_load_dword v5, v{vFo}, {S(rWS,4)}, s{sUcnt} offen sc1")
        a.label(l)
        a(f"s_load_dwordx2 s[16:17], {S(bF,2)}, {-64*6144+384+60}")
        n = -(-len(adq) // 20)
        if wsc and wl != 2:
            d_ = (8 - 4 * wl) * 131072
            a(f"s_add_u32 s{bO}, s{bO}, {d_}\ns_addc_u32 s{bO+1}, s{bO+1}, 0" if d_ > 0 else
              f"s_sub_u32 s{bO}, s{bO}, {-d_}\ns_subb_u32 s{bO+1}, s{bO+1}, 0")
        wn = self.o("wn", 4)
        st = wpf(stage(14, 12), wn)
        xe = self.o("xe", 0)
        n12, n13 = (self.o("n12", 8), self.o("n13", 8)) if xe else (0, 0)
        run(interleave(st, adq[:10 * n], 0, 1, n))
        run(exr[:n12])
        a("s_waitcnt vmcnt(10)")
        barrier(13)
        run(interleave(wpf(stage(15, 12), wn), adq[10 * n:], 0, 1, n))
        run(exr[n12:n12 + n13])
        exr = exr[n12 + n13:]
        if not wsc:
            run(tok("W"))
        wait_tag(("st", 14))
        l, l2 = self.lab("ev"), self.lab("evs")
        a(f"s_cmp_lg_u32 s{sW4}, 0\ns_cbranch_scc1 {l}")
        a(f"s_mov_b32 s{sT1}, {SPIN}")
        a.label(l2)
        a(f"v_readfirstlane_b32 s{sT0}, v5")
        a(f"s_cmp_ge_u32 s{sT0}, 32")
        a(f"s_cbranch_scc1 {l}")
        a("v_mov_b32 v5, 0")
        a(f"buffer_atomic_add v5, v{vFo}, {S(rWS,4)}, s{sUcnt} offen sc0 sc1")
        a(f"s_sub_u32 s{sT1}, s{sT1}, 1")
        a("s_waitcnt vmcnt(0)")
        a(f"s_cbranch_scc0 {l2}")
        a.label(l)
        barrier(14)
        self.stamp(7)
        ne0 = self.o("ne0", 4)
        run(wpf(uc + [wo_dma(h) for h in range(ne0)], wn))
        nr = self.o("nr", 0) if not xe else len(exr)
        run(exr[:nr])
        wait_tag(("st", 15))
        barrier(15)
        if xe:
            run(interleave([(wo_dma(h), "e1") for h in range(ne0, 14)], ex, 0, 1, 4))
            ex = []
        else:
            run(wpf([(wo_dma(h), "e1") for h in range(ne0, 14)], wn))
        assert not worder
        self.stamp(8)
        e2 = [wo_dma(h) for h in range(14, NE)]
        if xe:
            run(interleave(wlate, exw, 0, 1, 2) if xe == 1 else wlate + exw)
        else:
            run(interleave(wlate, exr[nr:], 0, 1, 3))
            run(ex + exw)
        paced = e2
        wait_tag("e1")
        self.lds_inc(14, 15, LF_W0)
        def creads(p0):
            s = p0 & 1
            ra = lambda d, p: [f"ds_read_b64 {V(d+2*t,2)}, v{vKA} offset:{2048-64*p+8*t}" for t in range(2)]
            rb = lambda d, off: [f"ds_read_b128 {V(d,4)}, v{vUA} offset:{off}"]
            r = []
            for i in range(8):
                x = ra(AS[s] + 4 * i, 8 * i + p0) if i < 4 else (ra(A32, 32) if i == 4 and p0 == 0 else [])
                y = rb(BS[s] + 4 * i, 512 * i + 448 - 64 * p0)
                r += (x + y) if i == 0 else (y + x)
                if p0 == 0 and i < 4:
                    r += rb(BH + 4 * i, 512 * i + 448 - 16)
            return r

        def cmf(p0):
            s = p0 & 1
            m = []
            for n in range(8):
                for p1 in range(min(n, 3) + 1):
                    m.append(MF(CA + 4 * n, AS[s] + 4 * p1, BS[s] + 4 * (n - p1), "0" if p0 == 0 and p1 == 0 else None))
                if p0 == 0 and n >= 4:
                    m.append(MF(CA + 4 * n, A32, BS[0] + 4 * (n - 4)))
                if p0 == 1 and n >= 4:
                    m += [MF(CA + 4 * n, BH + 4 * (n - 4 - kp), BK + 4 * kp) for kp in range(n - 3)]
            if p0 == 0:
                o = []
                for e in range(4):
                    o += [MF(GT, BS[0] + 4 * e, BD, "0"), MF(GT + 4, BH + 4 * e, BD + 4, "0")]
                    blk = m[7 * e:7 * e + 7]
                    blk[4] += "".join("\n" + CVT(BH + 4 * e + r, GT + r, GT + 4 + r) for r in (0, 1))
                    blk[5] += "".join("\n" + CVT(BH + 4 * e + r, GT + r, GT + 4 + r) for r in (2, 3))
                    o += blk
                m = o + m[28:]
            return m

        self.out(creads(0))
        cw = self.o("cwait", 1)
        self.stamp(2)
        a("v_and_b32 v4, 3, v2\nv_lshl_add_u32 v4, v4, 2, v14")
        self.poll_lds(4, LF_P1 if cw == 1 else LF_PQ, 1, 5)
        self.stamp(3)
        pause, dper = self.o("pause", 1), self.o("dper", 2)
        if "C" in self.o("abl", ""):
            self.out(paced)
            paced = []
        for p0 in range(8 if "C" not in self.o("abl", "") else 0):
            fill = creads(p0 + 1) if p0 < 7 else []
            d, paced = paced[:dper], paced[dper:]
            if d:
                fill = interleave(fill, d, 2, len(fill) // len(d), 1)
            mm = cmf(p0)
            if pause and p0 < 7:
                fill += [""] * (len(mm) - 5 - len(fill))
                fill.append(f"ds_read2_b32 v[4:5], v{vMy} offset0:{LF_PA//4} offset1:{LF_OD//4}")
            self.stamp(1 + p0, 4)
            self.out(interleave(mm, fill, 0, 1, 1))
            if p0 == 7:
                self.stamp(9, 4)
            if pause and p0 < 7:
                l = self.lab("cp")
                a("v_cmp_le_u32 vcc, v4, v5")
                a(f"s_cbranch_vccnz {l}")
                self.poll_lds(vMy, LF_OD, 1, 5)
                a.label(l)
        assert not paced
        self.stamp(4)
        YS = 128
        a("s_waitcnt vmcnt(0)")
        self.lds_inc(14, 15, LF_WA)
        ylay = self.o("ylay", 0)
        if ylay:
            a(f"s_lshl_b32 s{sT1}, s{sD}, 7\ns_add_u32 s{sT1}, s{sT1}, {WS_YT}")
            a("v_and_b32 v6, 7, v2\nv_lshlrev_b32 v6, 4, v6\nv_lshl_add_u32 v6, v3, 17, v6")
        else:
            a(f"s_lshl_b32 s{sT1}, s{sD}, 12\ns_add_u32 s{sT1}, s{sT1}, {WS_YT}")
        for k in range(4):
            for i in range(4):
                a(CVT(YS + 4 * k + i, CA + 8 * k + 2 * i, CA + 8 * k + 2 * i + 1))
            if ylay:
                a(f"buffer_store_dwordx4 {V(YS+4*k,4)}, v6, {S(rWS,4)}, s{sT1} offen sc1")
                a(f"s_add_u32 s{sT1}, s{sT1}, {1<<20}" if k < 3 else "")
            else:
                a(f"buffer_store_dwordx4 {V(YS+4*k,4)}, v{vL16}, {S(rWS,4)}, s{sT1} offen offset:{1024*k} sc1")
        for j in range(8):
            a(f"ds_write_b128 v20, {V(WL+4*j,4)} offset:{1024*j}")
        self.lds_inc(14, 15, LF_WB)
        if "Y" in self.o("abl", ""):
            a("s_endpgm")
        abl = self.o("abl", "")
        a(f"s_mul_i32 s{sT2}, s{sST}, {CSTR}\ns_add_u32 s{sT2}, s{sT2}, {WS_CNT+32*CSTR}")
        self.arrive(14, 15, vFo, LF_CY, sT2, 4, 70)
        self.stamp(5)
        vYi, vYr, vYo = 32, 34, 35
        a("v_lshrrev_b32 v4, 2, v2\nv_and_b32 v5, 3, v2\nv_lshlrev_b32 v6, 4, v5")
        a(f"v_lshl_add_u32 v{vYi}, v4, {7 if ylay else 12}, v6")
        a("v_and_b32 v6, 1, v2\nv_mul_u32_u24 v6, 2112, v6\nv_and_b32 v37, 3, v4\nv_lshl_add_u32 v6, v37, 6, v6")
        a("v_and_b32 v37, 48, v2\nv_and_b32 v38, 2, v2\nv_lshl_add_u32 v37, v38, 2, v37")
        a(f"v_add3_u32 v{vYr}, v6, v37, s{sUc}")
        a("v_and_b32 v6, 8, v2\nv_and_b32 v37, 48, v2\nv_lshl_add_u32 v6, v6, 5, v37")
        a(f"v_and_b32 v38, 7, v2\nv_lshlrev_b32 v38, 4, v38\nv_lshl_add_u32 v{vYo}, v6, 12, v38")
        if ylay:
            a(f"s_lshr_b32 s{sT1}, s{sW4}, 1\ns_lshl1_add_u32 s{sUo}, s{sST}, s{sT1}\ns_lshl4_add_u32 s{sUo}, s{sUo}, s{sDG}")
            a(f"s_lshl_b32 s{sUo}, s{sUo}, 7\ns_and_b32 s{sT1}, s{sW4}, 1\ns_add_u32 s{sUo}, s{sUo}, s{sT1}")
        else:
            a(f"s_lshl2_add_u32 s{sUo}, s{sST}, s{sW4}\ns_lshl_b32 s{sT1}, s{sDG}, 12\ns_add_u32 s{sUo}, s{sUo}, s{sT1}")
        a(f"s_lshl_b32 s{sUo}, s{sUo}, 6")
        a(f"s_mul_i32 s{sT1}, s{sDG}, {CSTR}\ns_add_u32 s{sT1}, s{sT1}, {WS_CNT+32*CSTR}")
        self.await_(14, 15, vFo, LF_GY, sT1, 4, 70, 96, 71)
        self.stamp(6)
        if self.o("yh", -1) >= 0:
            self.poll_lds(vMy, LF_YG, 1, 4)
        YT_ = 56
        if "y" in abl:
            a("s_endpgm")
        for k in range(4):
            a(f"s_add_u32 m0, s{sUc}, {k*1056}\ns_add_u32 s{sT1}, s{sUo}, {WS_YT+k*(2048 if ylay else 65536)}")
            if "l" not in abl:
                a(f"buffer_load_dwordx4 v{vYi}, {S(rWS,4)}, s{sT1} offen sc1 lds")
        a(f"s_lshr_b32 s{sT0}, s{sST}, 2\ns_lshl3_add_u32 s{sT0}, s{sT0}, s{sW4}\ns_and_b32 s{sT1}, s{sST}, 3")
        a(f"s_lshl4_add_u32 s{sT0}, s{sT0}, s{sT1}\ns_lshl_b32 s{sT0}, s{sT0}, 7\ns_add_u32 s{sT0}, s{sT0}, s{sDG}")
        a(f"s_lshl_b32 s{sT0}, s{sT0}, 7")
        a("s_waitcnt vmcnt(0)")
        if "w" in abl:
            a("s_endpgm")
        for k in range(4):
            for t in range(2):
                a(f"ds_read_b64_tr_b16 {V(YT_+4*k+2*t,2)}, v{vYr} offset:{(k>>1)*1056+(k&1)*512+256*t}")
        self.out(self.quad_t(YT_, YT_ + 16))
        if "z" in abl:
            a("s_endpgm")
        if self.o("ys", -1) >= 0:
            self.poll_lds(vMy, LF_YG, 1, 4)
        for k in range(4):
            a(f"s_add_u32 s{sT1}, s{sT0}, {k*4096}")
            a(f"buffer_store_dwordx4 {V(YT_+4*k,4)}, v{vYo}, {S(rO,4)}, s{sT1} offen offset:2048 {self.o('fy', 'nt').replace('+', ' ')}")
        self.dump_stamps()
        a("s_endpgm")

    def build(self):
        self.entry()
        self.helper()
        self.compute()
        self.a.finish()
        body = self.a.text()
        head = open("concat_heads__linear_attn_block__ssm_conv_s4__prompt.s.ref").read()
        cm = []
        for l in head.split("\n"):
            if l.startswith("; @launch"):
                cm.append(f"; @launch grid=(256,1,1) block=(512,1,1) lds={LDS_BYTES}")
                break
            cm.append(l)
        txt = "\n".join(cm) + "\n"
        txt += f""".amdgcn_target "amdgcn-amd-amdhsa--gfx950"
.text
.globl {NAME}
.p2align 8
.type {NAME},@function
{NAME}:
"""
        txt += body.replace("CODE_LEFT", str(self.opt.get("code_left", 0)))
        txt += f""".section .rodata,"a"
.p2align 6
.amdhsa_kernel {NAME}
  .amdhsa_next_free_vgpr 256
  .amdhsa_next_free_sgpr 102
  .amdhsa_accum_offset 256
  .amdhsa_group_segment_fixed_size 0
  .amdhsa_kernarg_size 120
  .amdhsa_user_sgpr_count 2
  .amdhsa_user_sgpr_kernarg_segment_ptr 1
  .amdhsa_system_sgpr_workgroup_id_x 1
.end_amdhsa_kernel
"""
        return txt


def code_size(txt):
    import subprocess, tempfile
    d = tempfile.mkdtemp()
    open(d + "/k.s", "w").write(txt)
    r = subprocess.run(["clang", "-x", "assembler", "-target", "amdgcn-amd-amdhsa", "-mcpu=gfx950",
                        "-c", d + "/k.s", "-o", d + "/k.o"], capture_output=True, text=True)
    if r.returncode:
        print(r.stderr[:3000])
        raise SystemExit("assemble failed")
    o = subprocess.run(["llvm-objdump", "-h", d + "/k.o"], capture_output=True, text=True).stdout
    for l in o.split("\n"):
        p = l.split()
        if len(p) > 2 and p[1] == ".text":
            return int(p[2], 16)


def make(prof=0, **opt):
    t = Gen(prof, code_left=1024, **opt).build()
    n = code_size(t)
    assert prof or n < 32768 + 128
    return Gen(prof, code_left=n - 128, **opt).build(), n


if __name__ == "__main__":
    t, n = make(0)
    out = sys.argv[1] if len(sys.argv) > 1 else "concat_heads__linear_attn_block__ssm_conv_s4__prompt.s"
    open(out, "w").write(t)
    print("wrote", out, "code bytes", n, "lines", t.count("\n"))
```

```python
import sys, struct, math
from asmgen import *

NAME = "concat_heads__linear_attn_block__ssm_conv_s4__prompt_kernel"


def fbits(x):
    return "0x%08x" % struct.unpack("<I", struct.pack("<f", x))[0]


LOG2E = 1.4426950408889634
EPS = 1e-6

CSTR = 8448
NCNT = 56
RSTR = 2304
WS_ZP = 65536
WS_CNT = 512 << 10
WS_KVP = 1 << 20
WS_UT = 4 << 20
WS_YT = 8 << 20
WS_OF = 12 << 20
WS_PROF = 16 << 20
WS_SIZE = 20 << 20

SLOT = 40960
SL = lambda s: SLOT * (s + 1)
SCR = 8704
L_MISC = 34816
L_UC = SL(1)
UC = 4608
RCS = 2112
L_EX = (SL(1) + 36864, 36864)
L_EZ = L_MISC + 1024
LDS_BYTES = 163840
LF_P1, LF_P2, LF_OD = 0, 16, 32
LF_WA, LF_WB, LF_C1, LF_G1, LF_C2, LF_G2, LF_CY, LF_GY, LF_YG, LF_PQ, LF_PA, LF_W0 = 48, 52, 56, 60, 64, 68, 72, 76, 80, 96, 112, 128
WO_E0 = [SL(1) + 20480 + 4096 * i for i in range(4)]
WO_E1 = [SL(2) + 4096 * i for i in range(10)]
WO_E2 = [SL(0) + 4096 * i for i in range(10)]
WO_LATE = [SCR * w + 4096 * j for j in range(2) for w in range(4)]
WO_SLOTS = WO_E0 + WO_E1 + WO_E2 + WO_LATE
NE = 24
TB = 16

pX, pW, pWo, pU, pAre, pAim, pBre, pBim, pCre, pCim, pLdt, pDsk, pOut, pDbg, pWs = range(8, 38, 2)
rX, rW, rWS, rO, rWo, rU = 40, 44, 48, 52, 56, 60
sWave, sRT, sHP, sRT2, sCT = 3, 4, 5, 6, 7
SPIN = 20000


def srd(r, p, size):
    return f"s_mov_b32 s{r}, s{p}\ns_mov_b32 s{r+1}, s{p+1}\ns_mov_b32 s{r+2}, {size}\ns_mov_b32 s{r+3}, 0x20000"


def bfe(d, s, off, w):
    return f"s_bfe_u32 s{d}, s{s}, {hex((w << 16) | off)}"


def MF(d, x, y, c=None):
    c = V(d, 4) if c is None else c
    return f"v_mfma_f32_16x16x32_bf16 {V(d,4)}, {V(x,4)}, {V(y,4)}, {c}"


def CVT(d, x, y, neg=False):
    return f"v_cvt_pk_bf16_f32 v{d}, v{x}, {'-' if neg else ''}v{y}"


class Gen:
    def __init__(self, prof=0, **opt):
        self.a = Asm()
        self.prof = prof
        self.opt = opt
        self.nlab = 0
        self.sched = {}
        for part in opt.get("sched", "p=A0,S0,U,A1,R,a99,T,t0,t1,t2,t3,S1").split("/"):
            k, v = part.split("=")
            self.sched[k if k in "pc" else int(k)] = v.split(",")
        self.ctok = self.sched.pop("c", [])

    def o(self, k, d):
        return self.opt.get(k, d)

    def lab(self, base):
        self.nlab += 1
        return f"L_{base}_{self.nlab}"

    def out(self, lst):
        for l in lst:
            if isinstance(l, list):
                self.out(l)
            else:
                self.a(l)

    def stamp(self, idx, mode=1):
        if not self.prof or (self.prof != mode and idx != 15):
            return
        self.a(f"s_memrealtime s[68:69]\ns_waitcnt lgkmcnt(0)\ns_mov_b32 s{72+idx}, s68")

    def cstamp(self, idx):
        if self.prof == 5:
            self.a(f"s_memtime s[68:69]\ns_waitcnt lgkmcnt(0)\ns_mov_b32 s{72+idx}, s68")
            self.stamp(idx + 1, 5)

    def dump_stamps(self):
        if not self.prof:
            return
        a = self.a
        a("s_waitcnt vmcnt(0)")
        self.stamp(15)
        for i in range(16):
            a(f"v_mov_b32 v{16+i}, s{72+i}")
        a(f"s_lshl_b32 s68, s2, 3\ns_add_u32 s68, s68, s{sWave}\ns_lshl_b32 s68, s68, 6\ns_add_u32 s68, s68, {WS_PROF}")
        a("v_mov_b32 v3, 0")
        for i in range(4):
            a(f"buffer_store_dwordx4 {V(16+4*i,4)}, v3, {S(rWS,4)}, s68 offen offset:{16*i}")

    def arrive(self, vM, vOne, vFo, lf_cnt, soff, vtmp, slast, vret=None):
        a = self.a
        l = self.lab("arr")
        if not ("D" in self.o("abl", "") and lf_cnt == LF_C1 or "E" in self.o("abl", "") and lf_cnt == LF_C2):
            a("s_waitcnt vmcnt(0)")
        a("s_mov_b64 exec, 1")
        a(f"ds_add_rtn_u32 v{vtmp}, v{vM}, v{vOne} offset:{lf_cnt}")
        a("s_mov_b64 exec, -1")
        a(f"v_readfirstlane_b32 s{slast}, v{vtmp}")
        a(f"s_cmp_lg_u32 s{slast}, 3")
        a(f"s_cbranch_scc1 {l}")
        if self.scal(lf_cnt):
            a("s_mov_b32 s39, 1")
            a(f"s_atomic_add s39, {S(pWs,2)}, s{soff}{' glc' if vret is not None else ''}")
        elif vret is None:
            a(f"buffer_atomic_add v{vOne}, v{vFo}, {S(rWS,4)}, s{soff} offen sc1")
        else:
            a(f"buffer_atomic_add v{vret}, v{vFo}, {S(rWS,4)}, s{soff} offen sc0 sc1")
        a.label(l)

    def scal(self, lf):
        return {LF_C1: "1", LF_G1: "1", LF_C2: "2", LF_G2: "2", LF_CY: "y", LF_GY: "y"}[lf] in self.o("sat", "x")

    def poll_issue(self, vFo, soff, vp, slast):
        a = self.a
        l = self.lab("pre")
        a(f"v_mov_b32 v{vp}, 0")
        a(f"s_cmp_lg_u32 s{slast}, 3")
        a(f"s_cbranch_scc1 {l}")
        a(f"buffer_atomic_add v{vp}, v{vFo}, {S(rWS,4)}, s{soff} offen sc0 sc1")
        a.label(l)

    def await_(self, vM, vOne, vFo, lf_go, soff, vtmp, slast, scnt, stmp, vret=None, pre=()):
        a = self.a
        l, d, o, e = self.lab("poll"), self.lab("polld"), self.lab("pollo"), self.lab("polle")
        look = lambda v: f"v_mov_b32 v{v}, 0\nbuffer_atomic_add v{v}, v{vFo}, {S(rWS,4)}, s{soff} offen sc0 sc1"
        a(f"s_cmp_lg_u32 s{slast}, 3")
        a(f"s_cbranch_scc1 {o}")
        a(f"s_mov_b32 s{scnt}, {SPIN}")
        if self.scal(lf_go):
            assert not pre
            if vret is not None:
                a("s_cmp_eq_u32 s39, 15")
                a(f"s_cbranch_scc1 {d}")
            a.label(l)
            a(f"s_mov_b32 s{stmp}, 0")
            a(f"s_atomic_add s{stmp}, {S(pWs,2)}, s{soff} glc")
            a(f"s_sub_u32 s{scnt}, s{scnt}, 1")
            a("s_waitcnt lgkmcnt(0)")
            a(f"s_cbranch_scc1 {d}")
            a(f"s_cmp_lt_u32 s{stmp}, 16")
            a(f"s_cbranch_scc1 {l}")
            a.label(d)
            a(f"ds_write_b32 v{vM}, v{vOne} offset:{lf_go}")
            a(f"s_branch {e}")
            a.label(o)
            self.poll_lds(vM, lf_go, 1, vtmp)
            a.label(e)
            return
        if vret is not None:
            a(f"s_waitcnt vmcnt({len(pre)}) ; trust")
            a(f"v_cmp_eq_u32 vcc, 15, v{vret} ; nowait")
            a(f"s_cbranch_vccnz {d}")
        a(look(vtmp))
        ring = list(pre) + [vtmp]
        a.label(l)
        for v in ring:
            a(f"s_waitcnt vmcnt({len(ring)-1})")
            a(f"v_readfirstlane_b32 s{stmp}, v{v} ; nowait")
            a(f"s_cmp_ge_u32 s{stmp}, 16")
            a(f"s_cbranch_scc1 {d}")
            a(look(v).replace("\n", " ; nowait\n") + " ; nowait")
        a(f"s_sub_u32 s{scnt}, s{scnt}, 1")
        a(f"s_cbranch_scc0 {l}")
        a.label(d)
        a(f"ds_write_b32 v{vM}, v{vOne} offset:{lf_go}")
        a(f"s_branch {e}")
        a.label(o)
        self.poll_lds(vM, lf_go, 1, vtmp)
        a.label(e)

    def poll_lds(self, vaddr, off, val, vtmp, after=()):
        a = self.a
        l = self.lab("lpoll")
        slp = self.o("slp", 0) if off in (LF_GY, LF_YG) else (self.o("slp2", 0) if off in (LF_G1, LF_G2, LF_OD, LF_PQ) else 0)
        if slp:
            l2 = self.lab("lpollin")
            a(f"s_branch {l2}")
        a.label(l)
        if slp:
            a(f"s_sleep {slp}")
            a.label(l2)
        a(f"ds_read_b32 v{vtmp}, v{vaddr} offset:{off}")
        self.out(list(after))
        a(f"v_cmp_ne_u32 vcc, {val}, v{vtmp}")
        a(f"s_cbranch_vccnz {l}")

    def lds_inc(self, vM, vOne, off):
        self.a(f"s_mov_b64 exec, 1\nds_add_u32 v{vM}, v{vOne} offset:{off}\ns_mov_b64 exec, -1")

    def quad_t(self, src, tmp):
        r = []
        for a_, b_, bit, mask, qp in ((src, tmp, 1, 0x55555555, "[1,0,3,2]"), (tmp, src, 2, 0x33333333, "[2,3,0,1]")):
            for hi in (0, 1):
                pre = f"s_mov_b32 vcc_lo, {hex(mask)}\ns_mov_b32 vcc_hi, {hex(mask)}\n" if hi == 0 else "s_not_b64 vcc, vcc\n"
                for k in range(4):
                    if bool(k & bit) != bool(hi):
                        continue
                    for d in range(4):
                        r.append(pre + f"v_cndmask_b32_dpp v{b_+4*k+d}, v{a_+4*(k^bit)+d}, v{a_+4*k+d}, vcc "
                                       f"quad_perm:{qp} row_mask:0xf bank_mask:0xf")
                        pre = ""
        return r

    def ids2(self, t):
        if self.o("omap", 1) == 0:
            return [f"s_and_b32 s{sRT2}, s2, 7", bfe(t, 2, 3, 1), f"s_lshl1_add_u32 s{sRT2}, s{sRT2}, s{t}",
                    f"s_lshr_b32 s{sCT}, s2, 4"]
        return [bfe(sRT2, 2, 1, 2), bfe(t, 2, 3, 2), f"s_lshl2_add_u32 s{sRT2}, s{sRT2}, s{t}",
                f"s_and_b32 s{sCT}, s2, 1", f"s_lshr_b32 s{t}, s2, 5", f"s_lshl3_add_u32 s{sCT}, s{sCT}, s{t}"]

    def ids1(self, t):
        return [f"s_and_b32 s{sRT}, s2, 1", bfe(t, 2, 3, 3), f"s_lshl3_add_u32 s{sRT}, s{sRT}, s{t}",
                bfe(sHP, 2, 1, 2), f"s_lshr_b32 s{t}, s2, 6", f"s_lshl2_add_u32 s{sHP}, s{sHP}, s{t}"]

    def touch_setup(self, sW4):
        sT0, sT1, sT2, sPX, sPW, vPX, vPW = 88, 89, 95, 96, 97, 12, 13
        return [
                "v_and_b32 v5, 3, v2", "v_lshlrev_b32 v5, 7, v5", "v_lshrrev_b32 v6, 2, v2",
                f"v_lshl_add_u32 v{vPW}, v6, 11, v5", f"v_lshl_add_u32 v{vPX}, v3, 26, v{vPW}",
                f"s_lshr_b32 s{sT0}, s2, 3", f"s_lshl2_add_u32 s{sT0}, s{sT0}, s{sW4}",
                f"s_and_b32 s{sT1}, s2, 1", bfe(sT2, 2, 1, 2),
                f"s_mul_i32 s{sPW}, s{sT0}, 24", f"s_add_u32 s{sPW}, s{sPW}, s{sT2}", f"s_lshl_b32 s{sPW}, s{sPW}, 9",
                f"s_lshl2_add_u32 s{sPX}, s{sT1}, s{sT2}", f"s_lshl_b32 s{sPX}, s{sPX}, 7", f"s_add_u32 s{sPX}, s{sPX}, s{sT0}",
                f"s_lshl_b32 s{sPX}, s{sPX}, 12",
                f"s_mul_i32 s{sT1}, s{sT1}, 12", f"s_lshl_b32 s{sT1}, 0xfff, s{sT1}",
                f"s_or_b32 vcc_lo, s{sT1}, {0x888888 if self.o('fixw', 1) else 0}", "s_mov_b32 vcc_hi, 0", "v_mov_b32 v5, 0x4000000",
                f"v_cndmask_b32 v{vPW}, v5, v{vPW}, vcc"]

    def touch(self, q, vd):
        sT0, sPX, sPW, vPX, vPW = 88, 96, 97, 12, 13
        return [f"s_add_u32 s{sT0}, s{sPX}, {q*512}", f"buffer_load_dword v{vd}, v{vPX}, {S(rX,4)}, s{sT0} offen",
                f"s_add_u32 s{sT0}, s{sPW}, {q*256*6144}", f"buffer_load_dword v{vd}, v{vPW}, {S(rW,4)}, s{sT0} offen"]

    PR, vDs = 80, 87

    def entry(self):
        a = self.a
        a("s_cmp_ge_u32 s2, 256")
        a("s_cbranch_scc1 L_end")
        a("s_load_dwordx16 s[8:23], s[0:1], 0")
        if self.o("perm", 0):
            a(bfe(3, 2, 1, 2) + "\ns_and_b32 s4, s2, 1\ns_lshl2_add_u32 s3, s4, s3\ns_andn2_b32 s2, s2, 7\ns_or_b32 s2, s2, s3")
        a("s_load_dwordx8 s[24:31], s[0:1], 64")
        a("s_load_dwordx4 s[32:35], s[0:1], 96")
        a("s_load_dwordx2 s[36:37], s[0:1], 112")
        if self.prof:
            a("s_memrealtime s[68:69]")
        if self.o("flip", 0):
            a("v_xor_b32 v0, 0x100, v0")
        a("s_getpc_b64 s[88:89]")
        a("s_and_b32 s90, s2, 56\ns_lshl_b32 s90, s90, 4")
        a("v_lshrrev_b32 v6, 4, v0\nv_lshl_add_u32 v6, v6, 10, s90")
        a("v_min_u32 v6, CODE_LEFT, v6")
        a("v_lshrrev_b32 v1, 6, v0")
        a("global_load_dword v7, v6, s[88:89]")
        a(f"v_readfirstlane_b32 s{sWave}, v1")
        a("v_and_b32 v2, 63, v0")
        a(f"s_cmp_ge_u32 s{sWave}, 4")
        a("s_cbranch_scc1 L_helper")
        if self.o("eprio", 0):
            a(f"s_setprio {self.o('eprio', 0)}")
        a("s_lshl_b32 s91, s2, 10\nv_lshl_add_u32 v3, v0, 2, s91")
        a("s_lshl_b32 s91, s2, 3\nv_lshl_add_u32 v5, v1, 1, s91")
        a(f"s_or_b32 s90, s2, s{sWave}")
        a("s_waitcnt lgkmcnt(0)")
        a("s_cbranch_scc1 L_par")
        a(f"v_min_u32 v8, {NCNT-1}, v2\nv_mul_u32_u24 v8, {CSTR}, v8\nv_add_u32 v8, {WS_CNT}, v8\nv_mov_b32 v9, 0")
        for r in range(self.o("rep", 1)):
            if r == 2:
                a(f"v_add_u32 v8, {2*RSTR}, v8")
            a(f"global_store_dword v8, v9, {S(pWs,2)} offset:{(r&1)*RSTR} sc1")
        a.label("L_par")
        a(f"global_load_ushort v{self.PR+6}, v5, {S(pLdt,2)}")
        for i, p in enumerate((pAre, pAim, pBre, pBim, pCre, pCim)):
            a(f"global_load_dword v{self.PR+i}, v3, {S(p,2)}")
        a(f"global_load_ushort v{self.vDs}, v5, {S(pDsk,2)}")
        if self.ctok:
            self.out(["v_lshrrev_b32 v3, 3, v2"] + self.touch_setup(sWave) + [srd(rX, pX, 4 << 20), srd(rW, pW, 6 << 20)])
            for o in self.ctok:
                self.out(self.touch(int(o[1]), 7))
        a("s_branch L_compute")

    def prof_init(self):
        if self.prof:
            self.a("s_mov_b32 s72, s68")
            for i in range(1, 16):
                self.a(f"s_mov_b32 s{72+i}, 0")

    def kgen(self, sScr):
        a = self.a
        PR, vDs = self.PR, self.vDs
        vDt, vTR, vA0, vA1, vA2, vSt, vB0, vB1 = 68, 70, 71, 72, 73, 74, 75, 76
        ST = lambda n, i: 8 + n * 30 + 2 * i
        RT0, RS0, RS1, RT1 = 100, 132, 164, 196
        FT, FS = (RT0, 212), (RS0, RS1)
        KD = lambda tt, st: 196 + (tt * 2 + st) * 4
        a("v_and_b32 v3, 15, v2\nv_mul_u32_u24 v5, 544, v3\nv_and_b32 v6, 48, v2")
        a(f"v_add3_u32 v{vTR}, v5, v6, s{sScr}")
        a("v_max_u32 v6, 1, v4\nv_sub_u32 v6, 6, v6")
        a(f"v_lshlrev_b32 v{vA0}, v6, v3")
        a(f"v_mov_b32 v{vSt}, 16\nv_lshlrev_b32 v{vSt}, v6, v{vSt}")
        a("v_lshlrev_b32 v6, 4, v4\nv_lshlrev_b32 v5, 9, v4")
        a("v_cmp_gt_u32 vcc, 2, v4")
        a(f"v_lshl_add_u32 v{vA2}, v3, 2, v5\nv_add_u32 v{vA2}, s{sScr}, v{vA2}")
        a("v_cndmask_b32 v6, v5, v6, vcc")
        a(f"v_add3_u32 v{vA0}, v{vA0}, v6, s{sScr}")
        a("v_cmp_eq_u32 vcc, 3, v4")
        a("v_mov_b32 v6, 8\nv_mov_b32 v5, 256")
        a("v_cndmask_b32 v6, v6, v5, vcc")
        a(f"v_add_u32 v{vA1}, v{vA0}, v6")
        a(f"v_add_u32 v{vB0}, v{vA0}, v{vSt}\nv_add_u32 v{vB1}, v{vA1}, v{vSt}")
        a(f"s_mov_b32 m0, s{sScr}")
        a(f"v_mov_b32 v{RS0}, 0x3f80\nv_mov_b32 v{RS0+1}, 0x3f80")
        a("v_cmp_eq_u32 vcc, 0, v2")
        a(f"v_lshlrev_b32 v{vDt}, 16, v{PR+6}\nv_mul_f32 v{vDt}, {fbits(LOG2E)}, v{vDt}\nv_exp_f32 v{vDt}, v{vDt}")
        for i in range(3):
            for c in range(2):
                a(f"v_lshlrev_b32 v{ST(0,i)+c}, 16, v{PR+2*i+c}")
                a(f"v_and_b32 v{ST(1,i)+c}, 0xffff0000, v{PR+2*i+c}")
            if i == 0:
                a(f"v_cvt_pk_bf16_f32 v{vDt}, v{vDt}, v{vDt}\nv_lshlrev_b32 v{vDt}, 16, v{vDt}")
        self.stamp(11)
        a(f"s_or_b32 s88, s2, s{sWave}")
        a("s_cbranch_scc1 L_noflag")
        a(f"s_waitcnt vmcnt({2*len(self.ctok)})")
        a("v_mov_b32 v5, 0\nv_mov_b32 v6, 1")
        a(f"global_store_dword v5, v6, {S(pDbg,2)} sc1")
        a.label("L_noflag")
        for i in range(2):
            for n in range(2):
                a(f"v_pk_mul_f32 {V(ST(n,i),2)}, {V(ST(n,i),2)}, {V(vDt,2)} op_sel_hi:[1,0]")
        for n in range(2):
            a(f"v_mul_f32 v{ST(n,0)}, {fbits(LOG2E)}, v{ST(n,0)}")
            a(f"v_mul_f32 v{ST(n,0)+1}, {fbits(1/(2*math.pi))}, v{ST(n,0)+1}")
        pend = []
        lq = []
        soon = []
        nrow = [0]
        g0, rate = self.o("kg0", 99), self.o("kgr", 4)

        def CM(dst, x, y):
            lq.extend(soon)
            soon.clear()
            take = [lq.pop(0) for _ in range(min(rate, len(lq)))] if nrow[0] >= g0 else []
            seq = [f"v_pk_mul_f32 {V(ST(n,dst),2)}, {V(ST(n,x),2)}, {V(ST(n,y),2)} op_sel_hi:[1,0]" for n in range(2)]
            for c, w in pend:
                seq.append(c)
                soon.extend(w)
            pend.clear()
            seq += [f"v_pk_fma_f32 {V(ST(n,dst),2)}, {V(ST(n,x),2)}, {V(ST(n,y),2)}, {V(ST(n,dst),2)} "
                    f"op_sel:[1,1,0] op_sel_hi:[0,1,1] neg_lo:[1,0,0]" for n in range(2)]
            self.out(interleave(seq, take, 0, 1, 1))

        def wr(base, r, n):
            return f"ds_write_addtid_b32 v{base+2*r+n} offset:{r*544+n*256}"

        def rd(dst):
            return [f"ds_read_b128 {V(dst+4*f,4)}, v{vTR} offset:{64*f}" for f in range(8)]

        def row(base, r, pair, neg, pre=(), post=()):
            nrow[0] += 1
            for n in range(2):
                pend.append((CVT(base + 2 * r + n, ST(n, pair), ST(n, pair) + 1, neg),
                             (list(pre) if n == 0 else []) + [wr(base, r, n)] + (list(post) if n == 1 else [])))

        for zi, L, t in ((3, 1.0, 12), (4, 8.0, 13), (5, 256.0, 14)):
            for n in range(2):
                if L != 1.0:
                    a(f"v_mul_f32 v{ST(n,t)}, {fbits(L)}, v{ST(n,0)}")
                    a(f"v_mul_f32 v{ST(n,t)+1}, {fbits(L)}, v{ST(n,0)+1}")
            for n in range(2):
                src = t if L != 1.0 else 0
                a(f"v_fract_f32 v{ST(n,t)+1}, v{ST(n,src)+1}")
                a(f"v_exp_f32 v{ST(n,t)}, v{ST(n,src)}")
            for n in range(2):
                a(f"v_cos_f32 v{ST(n,zi)}, v{ST(n,t)+1}")
                a(f"v_sin_f32 v{ST(n,zi)+1}, v{ST(n,t)+1}")
        CM(6, 2, 1)
        for zi, t in ((3, 12), (4, 13), (5, 14)):
            for n in range(2):
                a(f"v_pk_mul_f32 {V(ST(n,zi),2)}, {V(ST(n,zi),2)}, {V(ST(n,t),2)} op_sel_hi:[1,0]")
        row(RT0, 0, 6, True)
        for j in range(4):
            CM(10, 6 + j, 3); row(RT0, 2 * j + 1, 10, True)
            if j < 3:
                CM(7 + j, 10, 3); row(RT0, 2 * j + 2, 7 + j, True)
        for dst, x, r in ((12, 7, 9), (10, 6, 8), (12, 9, 11), (11, 8, 10), (6, 10, 12), (8, 11, 13), (10, 6, 14), (11, 8, 15)):
            CM(dst, x, 5); row(RT0, r, dst, True, post=rd(FT[0]) if r == 15 else ())
        cur = 10
        for r in range(5):
            nxt = 6 if cur == 10 else 10
            CM(nxt, cur, 5); row(RT1, r, nxt, True, post=rd(FT[1]) if r == 4 else ())
            cur = nxt
        row(RS0, 1, 4, False, pre=[wr(RS0, 0, 0), wr(RS0, 0, 1)])
        cur = 4
        for j in range(2, 32):
            nxt = 10 if cur != 10 else 11
            CM(nxt, cur, 4)
            row(RS0 if j < 16 else RS1, j % 16, nxt, False, post=rd(FS[j >> 4]) if j % 16 == 15 else ())
            cur = nxt
        a(f"v_lshlrev_b32 v{vDs}, 16, v{vDs}\nv_mov_b32 v6, 0")
        lq.extend(soon)
        for c, w in pend:
            a(c)
            lq.extend(w)
        a(f"v_cndmask_b32 v{vDs}, v6, v{vDs}, vcc")
        self.stamp(12)
        if self.o("b0", 1) == 0:
            a("s_barrier")
            self.stamp(1)

        def mm(st):
            return [MF(KD(tt, st), FT[tt] + 4 * f, FS[st] + 4 * f, "0" if f == 0 else None) for tt in range(2) for f in range(8)]

        def tw(st):
            return [f"ds_write_b64 v{(vA0,vB0)[st]}, {V(KD(0,st),2)} offset:{TB}",
                    f"ds_write_b64 v{(vA1,vB1)[st]}, {V(KD(0,st)+2,2)} offset:{TB}"] + \
                   [f"ds_write_b32 v{vA2}, v{KD(1,st)+r} offset:{TB+2048+128*r+64*st}" for r in range(4)]
        nt = min(len(lq), 34)
        self.out(lq[:len(lq) - nt])
        self.out(interleave(mm(0), lq[len(lq) - nt:], 0, 1, -(-nt // 16)))
        a(f"v_add_f32 v{KD(0,0)}, v{KD(0,0)}, v{vDs}")
        self.out(interleave(mm(1), tw(0), 0, 2, 1))
        return tw(1)

    def phi(self, s, tmp, sL):
        out = [f"v_fma_f32 v{tmp+i}, v{s+i}, s{sL}, -s{sL}" for i in range(4)]
        out += [f"v_exp_f32_e64 v{tmp+i}, v{tmp+i} clamp" for i in range(4)]
        out += [f"v_max_f32 v{s+i}, v{s+i}, v{tmp+i}" for i in range(4)]
        return out

    def compute(self):
        a = self.a
        acc = 100
        XS, WR = (8, 40), (72, 80, 88)
        vXA, vXB, vWA, vWB = 244, 246, 248, 252
        sHI, sMI, sSl, sIt, sE, sL, sScr, sEvt = 64, 65, 66, 67, 90, 91, 92, 96
        AQ = lambda mt, nt: acc + (mt * 2 + nt) * 4
        AK = lambda mt, nt: acc + 32 + (mt * 2 + nt) * 4
        AV = lambda mt, nt: acc + 64 + (mt * 2 + nt) * 4
        a.label("L_compute")
        self.prof_init()
        a(f"v_lshlrev_b32 v3, 2, v2\nv_mov_b32 v5, 0\nds_write_b32 v3, v5 offset:{L_MISC}")
        self.out(self.ids1(88) + self.ids2(88))
        a(f"s_mul_i32 s{sScr}, s{sWave}, {SCR}")
        a(f"s_and_b32 s{sHI}, s{sWave}, 1\ns_lshr_b32 s{sMI}, s{sWave}, 1")
        a("v_and_b32 v3, 15, v2\nv_lshrrev_b32 v4, 4, v2\nv_lshrrev_b32 v5, 1, v3\nv_xor_b32 v5, v5, v4")
        a("v_lshlrev_b32 v5, 4, v5\nv_lshl_add_u32 v5, v3, 7, v5")
        a(f"s_lshl_b32 s88, s{sMI}, 13\nv_add_u32 v{vXB}, s88, v5\nv_xor_b32 v{vXB+1}, 64, v{vXB}")
        a("v_bfe_u32 v3, v2, 2, 2\nv_lshl_add_u32 v5, v4, 3, v3\nv_lshlrev_b32 v5, 7, v5\nv_lshrrev_b32 v3, 1, v3")
        a(f"v_xor_b32 v6, s{sHI}, v4\nv_and_b32 v6, 1, v6\nv_lshl_add_u32 v3, v6, 1, v3\nv_lshl_add_u32 v5, v3, 5, v5")
        a("v_and_b32 v3, 3, v2\nv_lshl_add_u32 v5, v3, 3, v5")
        a(f"v_add_u32 v{vWB}, 16384, v5\nv_xor_b32 v{vWB+1}, 32, v{vWB}")
        a(f"s_lshl_b32 s88, s{sMI}, 5\nv_xor_b32 v{vWB+2}, s88, v{vWB}\nv_xor_b32 v{vWB+3}, s88, v{vWB+1}")
        a(f"s_mov_b32 s{sE}, {fbits(EPS)}\ns_mov_b32 s{sL}, {fbits(LOG2E)}")
        a(srd(rWS, pWs, WS_SIZE))
        a(srd(rO, pOut, 8 << 20))
        GR = ((1, 0), (1, 1), (2, 0), (2, 1), (0, 0), (0, 1))

        def rx(par, ks, mt):
            return f"ds_read_b128 {V(XS[par]+16*ks+4*mt,4)}, v{vXA+ks} offset:{mt*2048}"

        def rw(g, buf=None):
            sec, nt = GR[g]
            b = WR[g % 3] if buf is None else buf
            return [f"ds_read_b64_tr_b16 {V(b+4*ks+2*t,2)}, v{vWA+nt+(2 if sec == 2 else 0)} offset:{sec*8192+ks*4096+t*512}"
                    for ks in range(2) for t in range(2)]

        def head_reads(par):
            w0 = rw(0)
            return [rx(par, 0, 0)] + w0[:2] + [rx(par, 1, 0)] + w0[2:] + \
                   [rx(par, 1, 1), rx(par, 0, 1), rx(par, 0, 2), rx(par, 1, 2), rx(par, 1, 3), rx(par, 0, 3)] + rw(1)[:1]

        def grp(par, g, first=False, buf=None):
            sec, nt = GR[g]
            b = WR[g % 3] if buf is None else buf
            m = []
            for j, mt in enumerate(range(4) if g % 2 == 0 else range(3, -1, -1)):
                for i, ks in enumerate((0, 1) if j % 2 == 0 else (1, 0)):
                    c = acc + sec * 32 + (mt * 2 + nt) * 4
                    xa, wa = XS[par] + 16 * ks + 4 * mt, b + 4 * ks
                    c0 = ("0" if sec == 2 else "1.0") if first and i == 0 else None
                    m.append(MF(c, xa, wa, c0) if sec else MF(c, wa, xa, c0))
            return m

        sa = [f"v_add_u32 v{vXA+i}, s{sSl}, v{vXB+i}" for i in range(2)] + \
             [f"v_add_u32 v{vWA+i}, s{sSl}, v{vWB+i}" for i in range(4)]

        def stage_body(par, first=False, tail=()):
            sal = [f"s_add_u32 s{sSl}, s{sSl}, {SLOT}", f"s_cmp_eq_u32 s{sSl}, {SL(3)}",
                   f"s_cselect_b32 s{sSl}, {SL(0)}, s{sSl}"]
            W4 = "s_waitcnt lgkmcnt(4)"
            f0 = rw(1)[1:] + rw(2) + [W4]
            f0[3] += "\ns_waitcnt lgkmcnt(5)"
            self.out(interleave(grp(par, 0, first), f0, 0, 1, 1))
            self.out(interleave(grp(par, 1, first), rw(3) + sal + [W4], 0, 1, 1))
            self.out(interleave(grp(par, 2, first), rw(4) + [sa[0], sa[1], sa[4], W4], 0, 1, 1))
            self.out(interleave(grp(par, 3, first), rw(5) + [sa[2], sa[3], sa[5] + "\n" + "\n".join(tail), W4], 0, 1, 1))
            m = grp(par, 4, first) + grp(par, 5, first)
            hr = head_reads(1 - par)
            hr[-1] += "\ns_waitcnt lgkmcnt(5)"
            self.out(interleave(m, ["s_waitcnt lgkmcnt(0)", "s_barrier"] + hr, 0, 1, 1))

        a("v_mov_b32 v97, 1")
        a(f"s_mov_b32 s{sSl}, {SL(0)}\ns_mov_b32 s{sIt}, 1")
        self.out(sa)
        tw1 = self.kgen(sScr) if 'K' not in self.o('abl', '') else []
        self.out(tw1)
        self.stamp(10)
        if self.o("b0", 1) == 1:
            a("s_waitcnt lgkmcnt(0)")
            a("s_barrier")
            self.stamp(1)
        self.cstamp(1)
        a(f"s_setprio {self.o('prio', 3)}")
        self.out(head_reads(0))
        stage_body(0, True)
        a(f".p2align {self.o('cal', 3)}")
        a.label("L_cloop")
        stage_body(1, tail=[f"s_add_u32 s{sIt}, s{sIt}, 2"])
        stage_body(0, tail=[f"s_cmp_lt_u32 s{sIt}, 15"])
        a("s_cbranch_scc1 L_cloop")
        vL16, vEx, vLF, vOne, vZo, vFo, vM, vPE, vPF, v1, vEz, vPz = 197, 198, 199, 200, 204, 205, 206, 207, 96, 97, 98, 99
        sLast, sHead, sT0, sT1 = 70, 92, 93, 94
        WQ = (8, 16)
        KF = lambda ch, dt: 208 + (ch * 2 + dt) * 4
        VF = lambda ch, e: 224 + (ch * 2 + e) * 4
        D = lambda dt, e: 240 + (e * 2 + dt) * 4
        Z = lambda dt: 24 + dt * 4
        tmp, RX, PK, vEA, EC = 32, 72, 32, 36, 80
        EPSB = struct.unpack("<I", struct.pack("<f", EPS))[0]
        EPSB = (EPSB + 0x7fff + ((EPSB >> 16) & 1)) >> 16
        EPSB = hex(EPSB << 16 | EPSB)
        pre = [f"v_mov_b32 v{vM}, {L_MISC}", f"v_lshlrev_b32 v{vL16}, 4, v2", f"s_mov_b32 s{sT1}, {L_EX[1]}",
               f"s_cmp_eq_u32 s{sHI}, 0\ns_cselect_b32 s{sT1}, {L_EX[0]}, s{sT1}",
               f"s_lshl_b32 s{sT0}, s{sMI}, 11\ns_add_u32 s{sT0}, s{sT0}, s{sT1}", f"v_add_u32 v{vEx}, s{sT0}, v{vL16}",
               f"v_lshl_add_u32 v{vLF}, v1, 2, v{vM}", f"v_lshlrev_b32 v{vEz}, 2, v0"]
        rd = rw(1)[1:] + rw(2) + rw(4, WQ[0])[:1]
        self.out(interleave(grp(1, 0), [x + "\n" + y for x, y in zip(rd, pre)], 0, 1, 1))
        self.stamp(2)
        self.stamp(2, 3)
        self.stamp(2, 4)
        self.cstamp(3)
        rd = rw(3) + rw(4, WQ[0])[1:] + rw(5, WQ[1])
        pend = grp(1, 1) + grp(1, 2) + grp(1, 3)
        pend = [x + "\n" + rd[i] if i < len(rd) else x for i, x in enumerate(pend)]
        e1 = [f"v_mov_b32 v{vOne+i}, 0x3f803f80" for i in range(4)] + [f"v_mov_b32 v{vEA+i}, {EPSB}" for i in range(4)]

        def phik(dt, ch):
            r = []
            for h in range(2):
                s = AK(2 * ch + h, dt)
                r += self.phi(s, tmp, sL) + [CVT(KF(ch, dt) + 2 * h, s, s + 1), CVT(KF(ch, dt) + 2 * h + 1, s + 2, s + 3)]
            return r

        def cvtv(e):
            return [CVT(VF(ch, e) + 2 * h + i, AV(2 * ch + h, e) + 2 * i, AV(2 * ch + h, e) + 2 * i + 1)
                    for ch in range(2) for h in range(2) for i in range(2)]

        def kvm(dt, e, chs=(0, 1)):
            return [MF(D(dt, e), KF(ch, dt), VF(ch, e), V(EC + 4 * e, 4) if ch == 0 else None) for ch in chs]
        epsm = lambda e: [MF(EC + 4 * e, vEA, VF(ch, e), "0" if ch == 0 else None) for ch in range(2)]
        zm = lambda dt, chs=(0, 1): [MF(Z(dt), vOne, KF(ch, dt), "0" if ch == 0 else None) for ch in chs]
        e1 += phik(0, 0) + phik(0, 1) + [("M", zm(0))]
        e1 += cvtv(0) + [("M", epsm(0))] + cvtv(1) + [("M", epsm(1) + kvm(0, 0) + kvm(0, 1))]
        e1 += phik(1, 0) + [("M", kvm(1, 1, (0,)) + zm(1, (0,)) + kvm(1, 0, (0,)))]
        x = phik(1, 1)
        ea = self.o("ea", 0)
        NR, vRa, vRet, vCn = self.o("rep", 1), 88, 89, 90
        cnt_op = f"s_mov_b64 exec, 1\nds_add_rtn_u32 v{vCn}, v{vM}, v{v1} offset:{LF_C1}\ns_mov_b64 exec, -1"
        easet = [f"s_mul_i32 s95, s{sHP}, {CSTR}\ns_add_u32 s95, s95, {WS_CNT}", f"v_mul_u32_u24 v{vRa}, {RSTR}, v2",
                 f"v_lshrrev_b32 v{vRet}, {NR.bit_length()-1}, v2", f"v_lshl_add_u32 v{vRa}, v{vRet}, 26, v{vRa}", f"v_mov_b32 v{vRet}, 1"]

        def signal():
            l = self.lab("sig")
            a(f"v_readfirstlane_b32 s{sLast}, v{vCn}")
            a(f"s_cmp_lg_u32 s{sLast}, 3")
            a(f"s_cbranch_scc1 {l}")
            a(f"buffer_atomic_add v{vRet}, v{vRa}, {S(rWS,4)}, s95 offen sc0 sc1")
            a.label(l)
        e1 += (easet if ea else []) + x[:14] + [f"ds_write_b128 v{vEx}, {V(D(0,1),4)} offset:0"] + ([cnt_op] if ea == 2 else []) + x[14:]
        e1 += [("M", kvm(1, 1, (1,)) + zm(1, (1,)) + kvm(1, 0, (1,)))]
        sc = [f"s_lshl1_add_u32 s{sHead}, s{sHP}, s{sHI}\ns_lshl1_add_u32 s96, s{sHead}, s{sMI}",
              f"v_xor_b32 v{vPE}, 2048, v{vEx}\nv_xor_b32 v{vPF}, 8, v{vLF}",
              f"v_xor_b32 v{vPz}, 512, v{vEz}\nv_cmp_lt_u32 vcc, 1, v1",
              f"s_lshr_b32 s{sT0}, s{sRT}, 2\ns_lshl2_add_u32 s{sT1}, s96, s{sT0}"]
        cnt = 2
        for l in e1:
            if isinstance(l, tuple):
                cnt = 0 if not pend else cnt
                pend += l[1]
                continue
            if pend and cnt >= 2:
                x = pend.pop(0)
                a(x)
                cnt = x.count("ds_read")
            a(l)
            cnt += 2 if l.startswith("v_exp") else 1
        a(sc[0])
        self.out(interleave(pend, sc[1:], 0, 1, 1))
        self.stamp(1, 3)
        if ea == 2:
            signal()
        a(f"ds_write_b128 v{vEx}, {V(D(1,1),4)} offset:1024")
        a(f"v_cndmask_b32 v5, v{Z(1)}, v{Z(0)}, vcc")
        a(f"v_cndmask_b32 v6, v{Z(0)}, v{Z(1)}, vcc")
        a(f"ds_write_b32 v{vEz}, v5 offset:{L_EZ}")
        a(f"ds_write_b32 v{vLF}, v{v1} offset:{LF_P1}")
        if ea in (1, 3):
            a(cnt_op)
        a(f"s_lshl_b32 s{sT1}, s{sT1}, 8\ns_and_b32 s{sT0}, s{sRT}, 3")
        a(f"s_lshl2_add_u32 s{sT1}, s{sT0}, s{sT1}\ns_add_u32 s{sT1}, s{sT1}, {WS_ZP}")
        a(f"s_lshl_b32 s96, s96, 14\ns_add_u32 s96, s96, {WS_KVP}")
        a(f"s_lshl_b32 s{sT0}, s{sRT}, 10\ns_add_u32 s{sT0}, s{sT0}, s96")
        a(f"v_lshl_add_u32 v{vZo}, v4, 26, v{vL16}\nv_lshlrev_b32 v{vFo}, 26, v2")
        self.poll_lds(vPF, LF_P1, 1, 3, [f"ds_read_b128 {V(RX,4)}, v{vPE} offset:0",
                                         f"ds_read_b128 {V(RX+4,4)}, v{vPE} offset:1024",
                                         f"ds_read_b32 v5, v{vPz} offset:{L_EZ}"])
        if ea == 1:
            signal()
        for i in range(8):
            a(f"v_add_f32 v{RX+i}, v{RX+i}, v{D(0,0)+i}")
        for i in range(4):
            a(CVT(PK + i, RX + 2 * i, RX + 2 * i + 1))
        a(CVT(5, 5, 6))
        a(f"buffer_store_dwordx4 {V(PK,4)}, v{vL16}, {S(rWS,4)}, s{sT0} offen sc1")
        a(f"buffer_store_dword v5, v{vZo}, {S(rWS,4)}, s{sT1} offen sc1")
        if ea == 3:
            signal()
        self.stamp(3)
        self.stamp(3, 3)
        self.stamp(3, 4)
        if "X" in self.o("abl", ""):
            self.dump_stamps()
            a("s_endpgm")
        SEL, vEps = 208, 216
        su = ["v_and_b32 v3, 15, v2", "v_lshlrev_b32 v6, 2, v4", "v_sub_u32 v6, v3, v6",
              "v_mov_b32 v220, 0x3f80", "v_mov_b32 v221, 0x3f800000"]
        su += [f"v_mov_b32 v{SEL+i}, 0" for i in (0, 1, 4, 5)]
        for j in range(2):
            su += [f"v_cmp_eq_u32 vcc, {2*j}, v6", f"v_mov_b32 v{vEps+2*j}, s{sE}",
                   f"v_cndmask_b32 v{SEL+2+j}, v{SEL}, v220, vcc",
                   f"v_cmp_eq_u32 vcc, {2*j+1}, v6", f"v_mov_b32 v{vEps+2*j+1}, s{sE}",
                   f"v_cndmask_b32 v{SEL+2+j}, v{SEL+2+j}, v221, vcc"]
        vRa = 232
        su += [f"s_mul_i32 s95, s{sHP}, {CSTR}\ns_add_u32 s95, s95, {WS_CNT}",
               f"v_mul_u32_u24 v{vRa}, {RSTR}, v2", f"v_lshrrev_b32 v233, {NR.bit_length()-1}, v2",
               f"v_lshl_add_u32 v{vRa}, v233, 26, v{vRa}",
               f"s_and_b32 s89, s{sRT}, {NR-1}\ns_mul_i32 s89, s89, {RSTR}\ns_add_u32 s89, s89, s95",
               f"s_lshl_b32 s{sT1}, s{sHead}, 11\ns_add_u32 s{sT1}, s{sT1}, {WS_ZP}",
               f"v_min_u32 v222, v{vEx}, v{vPE}", "v_mov_b32 v223, 1",
               (f"s_and_b32 s88, s{sRT}, 3\ns_lshl_b32 s88, s88, 12\ns_xor_b32 s96, s96, s88" if self.o("krot", 0) else ""),
               f"s_lshl1_add_u32 s{sT0}, s{sRT}, s{sMI}\ns_lshl_b32 s{sT0}, s{sT0}, 7",
               f"s_add_u32 s{sT0}, s{sT0}, s{sHead}\ns_lshl_b32 s{sT0}, s{sT0}, 10", f"s_add_u32 s{sT0}, s{sT0}, {WS_OF}"]
        vEB, vZc = 224, 228
        su += [f"v_mov_b32 v{vEB+i}, {EPSB}" for i in range(4)] + [f"v_mov_b32 v{vZc+i}, {fbits(2048*EPS)}" for i in range(4)]
        self.out(interleave(grp(1, 4, buf=WQ[0]) + grp(1, 5, buf=WQ[1]), su, 0, 1, 2))
        PQ = lambda mt: 24 + mt * 4
        tmp, PK = 76, 20
        pre1 = []
        for mt in range(4):
            if mt == self.o("arr1", 1) and not ea:
                self.stamp(4, 3)
                self.arrive(vM, v1, vRa, LF_C1, 95, 3, sLast, 223)
                self.stamp(4)
                self.stamp(5, 3)
            for nt in range(2):
                s = AQ(mt, nt)
                if str(2 * mt + nt) in self.o("pp1", "x"):
                    self.poll_issue(vFo, 89, 234 + len(pre1), sLast)
                    pre1.append(234 + len(pre1))
                self.out(self.phi(s, tmp, sL))
                self.out([CVT(PQ(mt) + 2 * nt, s, s + 1), CVT(PQ(mt) + 2 * nt + 1, s + 2, s + 3)])
        self.stamp(6, 3)
        if self.o("cwait", 1) == 2:
            a(f"ds_write_b32 v{vLF}, v{v1} offset:{LF_PQ}")
        if "1" not in self.o("abl", ""):
            self.await_(vM, v1, vFo, LF_G1, 89, 238, sLast, 97, 71, vRet if ea else 223, pre1)
        self.stamp(5)
        self.stamp(7, 3)
        PF, ZL, ZD, ZF, SD, KV = 132, 40, 48, 8, 56, 64
        DEN = lambda mt: 72 + 4 * mt
        for dt in range(2):
            a(f"buffer_load_dwordx4 {V(ZL+4*dt,4)}, v{vL16}, {S(rWS,4)}, s{sT1} offen offset:{1024*dt} sc1")
        lds_ = []
        for i in range(16):
            l = f"buffer_load_dwordx4 {V(PF+4*i,4)}, v{vL16}, {S(rWS,4)}, s96 offen offset:{(i%4)*1024} sc1"
            lds_.append((f"s_xor_b32 s96, s96, {4096 if i % 8 else 12288}\n" if i and i % 4 == 0 else "") + l)
        if "P" in self.o("abl", ""):
            lds_ = [l if i < 4 else "" for i, l in enumerate(lds_)]
        RL = self.o("rlead", 7)
        self.out(lds_[:RL])
        a(f"s_mul_i32 s95, s{sRT}, {CSTR}\ns_add_u32 s95, s95, {WS_CNT+16*CSTR}")
        self.stamp(8, 3)
        self.out([MF(ZD, ZL, vOne, V(vZc, 4)), MF(ZD + 4, ZL + 4, vOne, V(vZc, 4))])
        self.stamp(9, 3)
        zr = [[] for _ in range(32)]
        zr[3] = [CVT(ZF + i, ZD + 2 * i, ZD + 2 * i + 1) for i in range(4)]
        zr[4] = [MF(vEps, ZF, vEB)]
        zr[7] = [MF(DEN(mt), ZF, PQ(mt), V(vEps, 4)) for mt in range(4)]
        zr[10] = [f"v_rcp_f32 v{DEN(mt)}, v{DEN(mt)}" for mt in range(2)]
        zr[11] = [f"v_rcp_f32 v{DEN(mt)}, v{DEN(mt)}" for mt in range(2, 4)]
        sq = [f"v_mul_f32 v{DEN(mt)+1}, s{sE}, v{DEN(mt)}" for mt in range(4)]
        for mt in range(4):
            sq += [f"v_fma_f32 v{AQ(mt,0)+i}, v{AQ(mt,0)+i}, v{DEN(mt)}, v{DEN(mt)+1}" for i in range(8)]
            sq += [CVT(PQ(mt) + i, AQ(mt, 0) + 2 * i, AQ(mt, 0) + 2 * i + 1) for i in range(4)]
        for g in range(18):
            zr[12 + g] = sq[3 * g:3 * g + 3]
        for i in range(16):
            if i == self.o("pi", 10) and self.o("pause", 1):
                a(f"ds_write_b32 v{vLF}, v{v1} offset:{LF_PA}")
            a(MF(SD, SEL + 2, PF + 4 * i, "0" if i == 0 else None))
            self.out(zr[2 * i])
            a(MF(SD + 4, SEL, PF + 4 * i, "0" if i == 0 else None))
            if i + RL < 16:
                a(lds_[i + RL])
            self.out(zr[2 * i + 1])
        self.stamp(10, 3)
        for i in range(4):
            a(CVT(PK + i, SD + 2 * i, SD + 2 * i + 1))
        a(f"ds_write_b128 v{vEx}, {V(PK,4)} offset:0")
        a(f"ds_write_b32 v{vLF}, v{v1} offset:{LF_P2}")
        self.poll_lds(vPF, LF_P2, 1, 3, [f"ds_read_b128 {V(KV,4)}, v222 offset:0", f"ds_read_b128 {V(KV+4,4)}, v222 offset:2048"])
        self.stamp(11, 3)
        NUM = lambda mt, et: 100 + (mt * 2 + et) * 4
        OFR = lambda mt: 132 + 4 * mt
        self.out([MF(NUM(mt, et), KV + 4 * et, PQ(mt), "0") for mt in range(4) for et in range(2)])
        for mt in range(4):
            for i in range(4):
                a(CVT(OFR(mt) + i, NUM(mt, 0) + 2 * i, NUM(mt, 0) + 2 * i + 1))
            a(f"buffer_store_dwordx4 {V(OFR(mt),4)}, v{vL16}, {S(rWS,4)}, s{sT0} offen sc1")
            if mt < 3:
                a(f"s_add_u32 s{sT0}, s{sT0}, 32768")
        a(f"ds_write_b32 v{vLF}, v{v1} offset:{LF_OD}")
        self.stamp(6)
        self.stamp(12, 3)
        WB, vSo = 20, 8
        OR, OA, WF = 128, 32, [64, 80]

        def wreads(h):
            base = WO_SLOTS[h]
            win = min(base // 61440, 2)
            off = base - win * 61440
            assert off + 2048 < 65536
            return [f"ds_read_b64_tr_b16 {V(WF[h&1]+4*nt+2*t,2)}, v{WB+4*win+nt} offset:{off+2048*t}"
                    for nt in range(4) for t in range(2)]

        a("v_lshrrev_b32 v3, 2, v2\nv_bfe_u32 v5, v2, 3, 2")
        a("v_lshlrev_b32 v5, 5, v5\nv_lshl_add_u32 v5, v3, 7, v5")
        a(f"v_and_b32 v3, 3, v2\nv_lshl_add_u32 v{WB}, v3, 3, v5")
        for nt in range(4):
            if nt:
                a(f"v_xor_b32 v{WB+nt}, {32*nt}, v{WB}")
            for win in (1, 2):
                a(f"v_add_u32 v{WB+4*win+nt}, {win*61440}, v{WB+nt}")
        sO0, sO1 = 98, 99
        a(f"s_lshl2_add_u32 s88, s{sRT2}, s{sWave}\ns_lshl_b32 s{sO0}, s88, 16\ns_add_u32 s{sO0}, s{sO0}, {WS_OF}")
        a(f"s_add_u32 s{sO1}, s{sO0}, 32768")
        a(f"s_mul_i32 s96, s{sRT2}, {CSTR}\ns_add_u32 s96, s96, {WS_CNT+16*CSTR}")
        a(f"s_and_b32 s89, s{sCT}, {NR-1}\ns_mul_i32 s89, s89, {RSTR}\ns_add_u32 s96, s96, s89")
        def arrive2():
            self.stamp(13, 3)
            if "3" not in self.o("abl", ""):
                self.arrive(vM, v1, vRa, LF_C2, 95, 3, sLast)
            self.stamp(7)
            self.stamp(14, 3)
        if not self.scal(LF_C2):
            arrive2()
        pre2 = []
        if self.o("pp2", 0) >= 1:
            self.poll_issue(vFo, 96, 234, sLast)
            pre2.append(234)
        vEw, vEr = 9, 13
        a(f"v_sub_u32 v14, v{vEx}, v{vL16}")
        a("v_lshrrev_b32 v3, 3, v2\nv_and_b32 v5, 7, v2\nv_lshlrev_b32 v6, 4, v5")
        a(f"v_lshl_add_u32 v{vSo}, v3, 12, v6\nv_xor_b32 v6, v5, v3\nv_lshlrev_b32 v6, 4, v6")
        a(f"v_lshl_add_u32 v6, v3, 7, v6\nv_add_u32 v{vEr}, v14, v6")
        a("v_lshrrev_b32 v6, 1, v4\nv_xor_b32 v6, v6, v5\nv_lshlrev_b32 v6, 4, v6\nv_and_b32 v3, 15, v2")
        a(f"v_lshl_add_u32 v6, v3, 7, v6\nv_and_b32 v3, 1, v4\nv_lshl_add_u32 v6, v3, 3, v6\nv_add_u32 v{vEw}, v14, v6")
        for nt in range(1, 4):
            a(f"v_xor_b32 v{vEw+nt}, {32*nt}, v{vEw}")
        a(f"s_lshl_b32 s{sT0}, s88, 17\ns_lshl_b32 s{sT1}, s{sCT}, 7\ns_add_u32 s{sT0}, s{sT0}, s{sT1}")
        self.poll_lds(vM, LF_W0, 4, 3)
        if self.o("pp2", 0) >= 2:
            self.poll_issue(vFo, 96, 235, sLast)
            pre2.append(235)
        WF2 = (64, 72, 80, 88)

        def wr2(i):
            u, nt = divmod(i, 4)
            return [wreads(2 * u + hh)[2 * nt + t].replace(V(WF[hh] + 4 * nt + 2 * t, 2), V(WF2[i % 4] + 4 * hh + 2 * t, 2))
                    for hh in range(2) for t in range(2)]
        self.out(wr2(0) + wr2(1) if self.o("och", 1) else wreads(0))
        a("s_waitcnt lgkmcnt(0)")
        if self.scal(LF_C2):
            arrive2()
        if "2" not in self.o("abl", ""):
            self.await_(vM, v1, vFo, LF_G2, 96, 238, sLast, 97, 71, None, pre2)
        self.stamp(8)

        def oload(h):
            r = []
            if h and h % 4 == 0:
                r += [f"s_add_u32 s{sO0}, s{sO0}, 4096", f"s_add_u32 s{sO1}, s{sO1}, 4096"]
            for m_ in range(2):
                r.append(f"buffer_load_dwordx4 {V(OR+(h%8)*8+4*m_,4)}, v{vL16}, {S(rWS,4)}, s{sO0+m_} offen offset:{(h%4)*1024} sc1")
            return r

        if self.o("och", 1):
            LEAD = self.o("lead", 3)
            assert LEAD <= 3
            for h in range(2 * LEAD):
                self.out(oload(h))
            steps = [(u, nt) for u in range(16) for nt in range(4)]
            skew = self.o("skew", 1)
            for i, (u, nt) in enumerate(steps):
                if skew and u == 15:
                    break
                if nt == 2 and 2 * u + 2 == 14:
                    self.poll_lds(vM, LF_WA, 4, 3)
                if nt == 2 and 2 * u + 2 == NE:
                    self.poll_lds(vM, LF_WB, 4, 3)
                if i == 2:
                    self.cstamp(5)
                    self.stamp(13)
                if i == 32:
                    self.stamp(14)
                b = WF2[i % 4]
                mm = []
                for j, m_ in enumerate((0, 1) if nt % 2 == 0 else (1, 0)):
                    for k, hh in enumerate((0, 1) if j == 0 else (1, 0)):
                        mm.append(MF(OA + (m_ * 4 + nt) * 4, b + 4 * hh, OR + ((2 * u + hh) % 8) * 8 + 4 * m_,
                                     "0" if u == 0 and k == 0 else None))
                gaps = [[x] for x in wr2(i + 2)] if i + 2 < 64 else [[] for _ in range(4)]
                if u + LEAD < (16 if "O" not in self.o("abl", "") else 8):
                    ld = oload(2 * (u + LEAD) + (nt >> 1))
                    if nt & 1 == 0:
                        gaps[0] += ld[:-2]
                    gaps[self.o("lg", 3)].append(ld[-2 + (nt & 1)])
                if i == 2 * max(self.o("yh", -1), self.o("ys", -1)):
                    gaps[0].append(f"ds_write_b32 v{vLF}, v{v1} offset:{LF_YG}")
                for m_, g_ in zip(mm, gaps):
                    a(m_)
                    self.out(g_)
        else:
            LEAD = self.o("lead", 5)
            assert LEAD <= 7
            for h in range(LEAD):
                self.out(oload(h))
            for h in range(32):
                if h + 1 == 14:
                    self.poll_lds(vM, LF_WA, 4, 3)
                if h + 1 == NE:
                    self.poll_lds(vM, LF_WB, 4, 3)
                mm = [MF(OA + (m_ * 4 + nt) * 4, WF[h & 1] + 4 * nt, OR + (h % 8) * 8 + 4 * m_, "0" if h == 0 else None)
                      for nt in range(4) for m_ in ((0, 1) if nt % 2 == 0 else (1, 0))]
                rd = wreads(h + 1) if h < 31 else []
                ld = oload(h + LEAD) if h + LEAD < 32 else []
                if h == 1:
                    self.cstamp(5)
                    self.stamp(13)
                if h == 16:
                    self.stamp(14)
                gaps = [[] for _ in range(8)]
                g0, g1 = divmod(self.o("lg", 37), 10)
                for r_, g_ in zip(rd, range(8)):
                    gaps[g_].append(r_)
                if ld:
                    gaps[0] += ld[:-2]
                    gaps[g0].append(ld[-2])
                    gaps[g1].append(ld[-1])
                if h == max(self.o("yh", -1), self.o("ys", -1)):
                    gaps[0].append(f"ds_write_b32 v{vLF}, v{v1} offset:{LF_YG}")
                for m_, g_ in zip(mm, gaps):
                    a(m_)
                    self.out(g_)
        self.stamp(9)
        self.cstamp(7)
        ST, SO = 100, 128
        fa = self.o('fa', 'nt').replace('+', ' ')

        def ep_w(m_):
            r = []
            for nt in range(4):
                s, d = OA + (m_ * 4 + nt) * 4, ST + (m_ * 4 + nt) * 2
                r += [CVT(d, s, s + 1), CVT(d + 1, s + 2, s + 3), f"ds_write_b64 v{vEw+nt}, {V(d,2)}"]
            return r
        ep_r = lambda m_: [f"ds_read_b128 {V(SO+(m_*2+j)*4,4)}, v{vEr} offset:{1024*j}" for j in range(2)]
        ep_s = lambda j: [f"buffer_store_dwordx4 {V(SO+4*j,4)}, v{vSo}, {S(rO,4)}, s{sT0} offen {fa}"] + \
                         ([f"s_add_u32 s{sT0}, s{sT0}, {8*4096}"] if j < 3 else [])
        if self.o("och", 1) and self.o("skew", 1):
            ml = lambda m_: [MF(OA + (m_ * 4 + nt) * 4, WF2[nt] + 4 * hh, OR + (6 + hh) * 8 + 4 * m_)
                             for nt in range(4) for hh in ((0, 1) if nt % 2 == 0 else (1, 0))]
            self.out(interleave(ml(0), wr2(62) + wr2(63), 0, 1, 2))
            self.out(interleave(ml(1), ["", ""] + ep_w(0) + ep_r(0), 0, 1, 2))
            w1 = ep_w(1)
            self.out(w1[:6] + ep_s(0) + w1[6:] + ep_r(1) + ep_s(1) + ep_s(2) + ep_s(3))
        else:
            self.out(ep_w(0) + ep_r(0) + ep_w(1) + ep_r(1) + ep_s(0) + ep_s(1) + ep_s(2) + ep_s(3))
        self.dump_stamps()
        a.label("L_end")
        a("s_endpgm")

    def helper(self):
        a = self.a
        sched = self.sched
        sW4, sXo, sWo_, sLb = 64, 65, 66, 67
        sT0, sT1, sD, sScr, sUc, sST, sDG, sT2, sPX, sPW, sWB, sUo = range(88, 100)
        vFo, vX, vW, vWo, vL16, vPX, vPW, vU = 7, 8, 9, 10, 11, 12, 13, 14
        UTR, USG = 240, 4352
        sU1, sU2 = 24, 25
        vmq = []

        def emit(l, tag=None):
            n0 = len(a.ins)
            a(l)
            vmq.extend(tag for x in a.ins[n0:] if x.kind == "vmem")

        def wait_tag(tag):
            last = max(i for i, t in enumerate(vmq) if t == tag)
            a(f"s_waitcnt vmcnt({len(vmq)-1-last})")

        def run(lst):
            for l in lst:
                if isinstance(l, list):
                    run(l)
                elif isinstance(l, tuple):
                    if l[0] == "WAIT":
                        wait_tag(l[1])
                    else:
                        emit(l[0], l[1])
                else:
                    emit(l)

        uearly = "U" in sched["p"] and not self.o("uhack", 0)
        explicit = {int(o[1:]) for v in sched.values() for o in v if o[0] == "S"}
        done = set()

        def once(key, lst):
            if key in done:
                return []
            done.add(key)
            return lst

        def setup_ring():
            return once("ring", self.ids1(sT0) + [
                "v_bfe_u32 v4, v0, 3, 5", "v_lshrrev_b32 v5, 1, v4", "v_xor_b32 v6, v5, v2", "v_and_b32 v6, 7, v6",
                "v_lshlrev_b32 v6, 4, v6", f"v_lshl_add_u32 v{vX}, v4, 11, v6",
                "v_and_b32 v5, 4, v5", "v_and_or_b32 v5, v4, 2, v5", "v_xor_b32 v5, v5, v2", "v_and_b32 v5, 7, v5",
                "v_mul_u32_u24 v6, 6144, v4", f"v_lshl_add_u32 v{vW}, v5, 4, v6",
                f"s_lshl_b32 s{sXo}, s{sRT}, 18", f"s_lshl_b32 s{sWo_}, s{sHP}, 7"])

        def setup_touch():
            return once("touch", self.touch_setup(sW4))

        def setup_u():
            return once("u", [
                f"s_lshr_b32 s{sST}, s2, 4", f"s_and_b32 s{sDG}, s2, 15",
                "v_and_b32 v5, 3, v2", "v_lshlrev_b32 v5, 4, v5", "v_lshrrev_b32 v6, 2, v2", f"v_lshl_add_u32 v{vU}, v6, 11, v5",
                *([f"s_and_b32 s{sU1}, s2, 31", f"s_lshr_b32 s{sT0}, s2, 5", f"s_lshl2_add_u32 s{sU2}, s{sT0}, s{sW4}"]
                  if self.o("umap", 1) else
                  [f"s_lshr_b32 s{sT0}, s{sW4}, 1", f"s_lshl1_add_u32 s{sU1}, s{sST}, s{sT0}",
                   f"s_and_b32 s{sT0}, s{sW4}, 1", f"s_lshl1_add_u32 s{sU2}, s{sDG}, s{sT0}"]),
                f"s_lshl_b32 s{sUo}, s{sU1}, 11", f"s_add_u32 s{sUo}, s{sUo}, s{sU2}", f"s_lshl_b32 s{sUo}, s{sUo}, 6"])

        UP = 4096 if uearly else 1024

        def setup_t():
            return once("t", [
                srd(rWS, pWs, WS_SIZE), f"s_lshl2_add_u32 s{sD}, s2, s{sW4}", f"s_mul_i32 s{sScr}, s{sW4}, {SCR}",
                f"v_lshlrev_b32 v{vFo}, 26, v2",
                "v_and_b32 v4, 1, v2", f"v_mul_u32_u24 v4, {2*UP}, v4", "v_bfe_u32 v5, v2, 2, 2", "v_lshl_add_u32 v4, v5, 6, v4",
                "v_and_b32 v5, 48, v2", "v_and_b32 v6, 2, v2", "v_lshl_add_u32 v5, v6, 2, v5",
                f"s_add_u32 s{sT0}, s{sLb}, {SL(2)}" if uearly else f"s_add_u32 s{sT0}, s{sScr}, {USG}",
                f"v_add3_u32 v17, v4, v5, s{sT0}",
                "v_and_b32 v6, 7, v2", "v_lshlrev_b32 v5, 4, v6", "v_lshl_add_u32 v18, v3, 14, v5"])

        bX, bW, bO, bF, bG = 18, 20, 22, 26, 28

        covered = {int(o[1]) for v in list(sched.values()) + [self.ctok] for o in v if o[0] == "A"}
        k0 = self.o("spk", 4 * (max(covered) + 1) if covered else 2)

        def setup_sp():
            return once("sp", setup_touch() + kwait() + [
                f"s_add_u32 s{bX}, s{pX}, s{sPX}", f"s_addc_u32 s{bX+1}, s{pX+1}, 0",
                f"s_lshr_b32 s{sT0}, s2, 3", f"s_and_b32 s{sT1}, s2, 1", f"s_lshl1_add_u32 s{sT0}, s{sT0}, s{sT1}",
                f"s_add_u32 s{sT0}, s{sT0}, {64*k0}", f"s_mul_i32 s{sT0}, s{sT0}, 12", bfe(sT1, 2, 1, 2),
                f"s_add_u32 s{sT0}, s{sT0}, s{sT1}", f"s_lshl2_add_u32 s{sT0}, s{sT0}, s{sW4}", f"s_lshl_b32 s{sT0}, s{sT0}, 7",
                f"s_add_u32 s{bW}, s{pW}, s{sT0}", f"s_addc_u32 s{bW+1}, s{pW+1}, 0",
                f"s_lshr_b32 s{sT0}, s2, 3", f"s_andn2_b32 s{sT2}, 1, s2", f"s_lshl1_add_u32 s{sT0}, s{sT0}, s{sT2}",
                f"s_add_u32 s{sT0}, s{sT0}, {64*k0}", f"s_mul_i32 s{sT0}, s{sT0}, 12", f"s_add_u32 s{sT0}, s{sT0}, s{sT1}",
                f"s_min_u32 s{sT2}, s{sW4}, 2", f"s_lshl2_add_u32 s{sT0}, s{sT2}, s{sT0}", f"s_lshl_b32 s{sT0}, s{sT0}, 9",
                f"s_add_u32 s{bF}, s{pW}, s{sT0}", f"s_addc_u32 s{bF+1}, s{pW+1}, 0",
                f"s_lshl2_add_u32 s{sT0}, s2, s{sW4}", f"s_lshl_b32 s{sT0}, s{sT0}, 7",
                f"s_add_u32 s{bO}, s{pWo}, s{sT0}", f"s_addc_u32 s{bO+1}, s{pWo+1}, 0"])
        assert k0 == 8

        def sp_trip():
            ld = lambda b, off: f"s_load_dwordx2 s[16:17], {S(b,2)}, {off+60}"
            r = []
            for i in range(2):
                r += [ld(bW, i * 64 * 6144 + sec * 2048) for sec in range(3)] + [ld(bX, rr * 2048 + (k0 + i) * 128) for rr in range(2)]
                r.append(ld(bF, (i - 1) * 64 * 6144 + 384) if self.o("fixs", 1) else "")
            r[-1] += (f"\ns_add_u32 s{bW}, s{bW}, {128*6144}\ns_addc_u32 s{bW+1}, s{bW+1}, 0"
                      f"\ns_add_u32 s{bF}, s{bF}, {128*6144}\ns_addc_u32 s{bF+1}, s{bF+1}, 0"
                      f"\ns_add_u32 s{bX}, s{bX}, 256\ns_addc_u32 s{bX+1}, s{bX+1}, 0")
            return r

        sTrip, sUcnt = 30, 31

        def setup_rest():
            return setup_ring() + setup_touch() + setup_u() + setup_t() + setup_sp() + setup_rot() + once("rest", [
                srd(rO, pOut, 8 << 20), srd(rWo, pWo, 2 << 20),
                f"s_lshr_b32 s{sUcnt}, s2, 5", f"s_mul_i32 s{sUcnt}, s{sUcnt}, {CSTR}",
                f"s_add_u32 s{sUcnt}, s{sUcnt}, {WS_CNT+48*CSTR}", f"s_mov_b32 s{sTrip}, 0",
                "v_mov_b32 v4, 0", "v_mov_b32 v6, 1"]) + once("l16", [f"v_lshlrev_b32 v{vL16}, 4, v2"])

        def kwait():
            return once("k", ["s_waitcnt lgkmcnt(0)", srd(rX, pX, 4 << 20), srd(rW, pW, 6 << 20)])

        rot = self.o("rot", 0)
        assert not (rot and self.prof)
        sRL, sRG = 68, 78

        def setup_rot():
            r = [f"s_lshr_b32 s{sT1}, s2, 6", bfe(sT2, 2, 3, 3), f"s_cmp_ge_u32 s{sT2}, 6\ns_cselect_b32 s{sT0}, 4, 0",
                 f"s_sub_u32 s{sT2}, s{sT2}, s{sT0}"]
            for j in range(4):
                r += [f"s_add_u32 s{sT0}, s{sT1}, {j}", f"s_and_b32 s{sT0}, s{sT0}, 3",
                      f"s_lshl_b32 s{sRL+j}, s{sT0}, 12", f"s_add_u32 s{sRL+j}, s{sRL+j}, s{sLb}",
                      f"s_lshl_b32 s{sRG+j}, s{sT0}, 16", f"s_add_u32 s{sRG+j}, s{sRG+j}, s{sXo}"]
            for j in range(6):
                r += [f"s_lshl_b32 s{sRL+4+j}, s{sT2}, 12", f"s_add_u32 s{sRL+4+j}, s{sRL+4+j}, s{sLb}",
                      f"s_and_b32 s{sT0}, s{sT2}, 1", f"s_mul_i32 s{sT0}, s{sT0}, {32*6144}", f"s_add_u32 s{sRG+4+j}, s{sT0}, s{sWo_}",
                      f"s_lshr_b32 s{sT0}, s{sT2}, 1", f"s_lshl_b32 s{sT0}, s{sT0}, 11", f"s_add_u32 s{sRG+4+j}, s{sRG+4+j}, s{sT0}",
                      f"s_add_u32 s{sT2}, s{sT2}, 1", f"s_cmp_eq_u32 s{sT2}, 6\ns_cselect_b32 s{sT2}, 0, s{sT2}"]
            return once("rot", r) if rot else []

        def stage(k, kb=0):
            sl = SL(k % 3)
            tag, k = ("st", k), k - kb
            if rot and tag[1] >= 2:
                x = [[f"s_add_u32 m0, s{sRL+j}, {sl}", f"s_add_u32 s{sT0}, s{sRG+j}, {k*128}",
                      (f"buffer_load_dwordx4 v{vX}, {S(rX,4)}, s{sT0} offen lds", tag)] for j in range(4)]
                w = [[f"s_add_u32 m0, s{sRL+4+j}, {sl+16384}", f"s_add_u32 s{sT0}, s{sRG+4+j}, {k*64*6144}",
                      (f"buffer_load_dwordx4 v{vW}, {S(rW,4)}, s{sT0} offen lds", tag)] for j in range(6)]
                return {1: [x[0], w[0], w[1], x[1], w[2], x[2], w[3], w[4], x[3], w[5]], 2: x + w,
                        3: [x[0], w[0]] + x[1:] + w[1:]}[rot]
            r = []
            for j in range(4):
                r.append([f"s_add_u32 m0, s{sLb}, {sl+j*4096}", f"s_add_u32 s{sT0}, s{sXo}, {k*128+j*32*2048}",
                          (f"buffer_load_dwordx4 v{vX}, {S(rX,4)}, s{sT0} offen {self.o('fr', '').replace('+', ' ')} lds", tag)])
            for sec in range(3):
                for j in range(2):
                    r.append([f"s_add_u32 m0, s{sLb}, {sl+16384+sec*8192+j*4096}",
                              f"s_add_u32 s{sT0}, s{sWo_}, {(k*64+j*32)*6144+sec*2048}",
                              (f"buffer_load_dwordx4 v{vW}, {S(rW,4)}, s{sT0} offen {self.o('fr', '').replace('+', ' ')} lds", tag)])
            return r

        def tok(o):
            if "U" in self.o("abl", "") and (o == "U" or o[0] == "t"):
                return []
            if "U" in self.o("abl", "") and o == "T":
                return setup_u() + [x for x in tok0(o) if not isinstance(x, tuple) and "dpp" not in x and "ds_read" not in x]
            return tok0(o)

        def tok0(o):
            if o[0] == "A":
                return setup_touch() + kwait() + self.touch(int(o[1]), 16)
            if o[0] == "S":
                return setup_ring() + kwait() + stage(int(o[1:]))
            if o[0] == "H":
                return [f"s_setprio {o[1]}"]
            if o == "R":
                return setup_rest()
            if o == "F":
                return setup_rest() + [f"global_load_dword v5, v4, {S(pDbg,2)} sc1"]
            if o[0] == "a":
                n = int(o[1:])
                r = setup_t() + once("l16", [f"v_lshlrev_b32 v{vL16}, 4, v2"]) + adq[:n]
                del adq[:n]
                return r
            if o == "U":
                r = kwait() + setup_u() + [srd(rU, pU, 4 << 20)]
                for j in range(4):
                    r += [f"s_add_u32 m0, s{sLb}, {SL(2)+j*4096}" if uearly else f"s_add_u32 m0, s{sScr}, {USG+j*1024}",
                          f"s_add_u32 s{sT0}, s{sUo}, {j*16*2048}",
                          (f"buffer_load_dwordx4 v{vU}, {S(rU,4)}, s{sT0} offen lds", "ut")]
                return r
            if o == "T":
                r = setup_t() + [("WAIT", "ut")]
                r += [f"ds_read_b64_tr_b16 {V(UTR+4*k+2*t,2)}, v17 offset:{(k>>1)*UP+(k&1)*512+256*t}" for k in range(4) for t in range(2)]
                r += [
                      f"s_lshl_b32 s{sUo}, s{sU2}, 10", f"s_add_u32 s{sUo}, s{sUo}, s{sU1}", f"s_lshl_b32 s{sUo}, s{sUo}, 7"]
                return r + self.quad_t(UTR, UTR - 16)
            if o[0] == "t":
                k = int(o[1])
                return [f"s_add_u32 s{sT2}, s{sUo}, {WS_UT+k*4096}",
                        f"buffer_store_dwordx4 {V(UTR+4*k,4)}, v18, {S(rWS,4)}, s{sT2} offen sc1"]
            if o == "W":
                return ["v_and_b32 v4, 15, v2", "v_lshlrev_b32 v4, 7, v4", f"s_lshl_b32 s{sT1}, s{sD}, 11",
                        f"buffer_load_dword v16, v4, {S(rWo,4)}, s{sT1} offen"]
            raise ValueError(o)

        vKA, vUA, vMy, vOob = 30, 31, 27, 26
        WL, BK, BD, CA = 40, 72, 88, 96
        AS, A32, BS, BH, GT = [128, 148], 144, [164, 196], 228, 244
        ad = ["\n".join(self.ids2(sWB)), f"s_lshl_b32 s{sWB}, s{sCT}, 7",
              f"s_mul_i32 s{sUc}, s{sW4}, {UC}", f"s_add_u32 s{sUc}, s{sUc}, {L_UC}",
              f"v_add_u32 v20, s{sScr}, v{vL16}", f"v_lshl_add_u32 v19, v2, 3, s{sScr}",
              "v_min_u32 v32, 1, v2", "v_lshl_add_u32 v32, v32, 2, v19", "v_add_u32 v32, 1024, v32",
              f"v_mov_b32 v33, {TB+2044}", f"v_add_u32 v33, s{sScr}, v33",
              "v_and_b32 v28, 15, v2", "v_lshrrev_b32 v29, 4, v2", "v_lshlrev_b32 v34, 2, v29", "v_sub_u32 v34, v28, v34",
              f"v_lshl_add_u32 v35, v34, 3, s{sScr}", f"v_add_u32 v35, {TB+2048+4-24}, v35"]
        nad0 = len(ad)
        ad += ["v_and_b32 v21, 6, v3", "v_xor_b32 v21, v21, v2", "v_and_b32 v21, 7, v21", "v_lshlrev_b32 v21, 4, v21",
               f"v_lshl_add_u32 v{vWo}, v3, 11, v21",
               "v_mov_b32 v21, 1024", f"v_add_u32 v21, s{sScr}, v21", f"v_sub_u32 v22, v21, v{vL16}",
               "v_lshlrev_b32 v23, 3, v2", "v_sub_u32 v21, v21, v23",
               "v_min_u32 v23, 19, v2", "v_lshrrev_b32 v24, 2, v23", "v_and_b32 v25, 3, v23",
               f"v_mul_u32_u24 v23, {RCS}, v24", "v_lshl_add_u32 v23, v25, 4, v23", f"v_add_u32 v23, s{sScr}, v23",
               "v_lshlrev_b32 v36, 4, v24", "v_lshlrev_b64 v[36:37], v36, -1",
               "v_add_u32 v25, 1, v25", "v_bfe_i32 v38, v25, 2, 1", "v_and_b32 v36, v36, v38", "v_and_b32 v37, v37, v38",
               "v_and_b32 v15, 3, v2", f"v_mul_u32_u24 v{vKA}, {RCS}, v15", "v_and_b32 v15, 48, v2",
               f"v_add3_u32 v{vKA}, v{vKA}, v15, s{sScr}", f"v_lshl_add_u32 v{vUA}, v28, 5, v15", f"v_add_u32 v{vUA}, s{sUc}, v{vUA}",
               "v_and_b32 v15, 12, v2", "v_lshlrev_b32 v15, 1, v15", "v_sub_u32 v15, 24, v15", f"v_add_u32 v{vKA}, v{vKA}, v15",
               f"v_mov_b32 v{vOob}, 0x4000000", f"v_mov_b32 v15, {L_MISC-16}", f"v_lshl_add_u32 v{vMy}, v1, 2, v15",
               "v_mov_b32 v15, 1", "v_mov_b32 v25, 0", "v_lshlrev_b32 v29, 3, v29"]
        for b, w in enumerate((3, 4)):
            ad += [f"v_mov_b32 v39, {((1 << (2*w+1)) - 1) << (8-w)}", "v_lshlrev_b32 v39, v28, v39", "v_lshrrev_b32 v39, v29, v39"]
            for st_ in range(4):
                for j in range(4):
                    d = BD + 4 * b + j
                    ad.append([f"v_bfe_u32 v{d}, v39, {2*j}, 2", f"v_mul_u32_u24 v{d}, 0x8001, v{d}",
                               f"v_and_b32 v{d}, 0x10001, v{d}", f"v_mul_u32_u24 v{d}, 0x3f80, v{d}"][st_])
        P0, K0, X1, Y1, X2, Y2, HD, RB = 128, 132, 136, 140, 144, 228, 146, 164
        exr = [f"ds_read_b128 {V(P0,4)}, v20 offset:{TB-16}", f"ds_read_b128 {V(K0,4)}, v20 offset:{TB}",
               f"ds_read2_b32 {V(X1,2)}, v32 offset0:{(TB-12)//4} offset1:{(TB-8)//4}", f"ds_read_b32 v{X1+2}, v32 offset:{TB-4}",
               f"ds_read_b64 {V(Y1,2)}, v19 offset:{TB+1024}", f"ds_read_b32 v{Y1+2}, v19 offset:{TB+1024+8}",
               f"ds_read2_b32 {V(X2,2)}, v32 offset0:{(TB+512-8)//4} offset1:{(TB+512-4)//4}",
               f"ds_read_b64 {V(Y2,2)}, v19 offset:{TB+1536}", f"ds_read_b32 v{Y2+2}, v19 offset:{TB+1536+8}",
               f"ds_read2_b32 {V(HD,2)}, v33 offset0:0 offset1:1"]
        exr += [f"ds_read2_b32 {V(RB+8*kp+2*r,2)}, v35 offset0:{32*kp+2*(3-r)} offset1:{32*kp+2*(3-r)+1}"
                for kp in range(4) for r in range(4)]
        ex = [CVT(BK + 4 * kp + r, RB + 8 * kp + 2 * r, RB + 8 * kp + 2 * r + 1) for kp in range(4) for r in range(4)]
        for r in range(4):
            ex.append(f"v_cmp_gt_i32 vcc, {r}, v34\ns_nop 1\nv_cndmask_b32 v{BK+r}, v{BK+r}, v25, vcc")
        HO = 148
        ex += [f"v_cmp_eq_u32 vcc, 0, v24\n{CVT(HO+2, HD+1, HD+1)}\nv_and_b32 v{HO}, v{HO+2}, v36\n"
               f"v_cndmask_b32 v{HD}, v{HD+1}, v{HD}, vcc",
               "v_cmp_eq_u32 vcc, 0, v2", CVT(HO + 3, HD + 1, HD), f"v_and_b32 v{HO+1}, v{HO+2}, v37",
               f"v_and_b32 v{HO+2}, v{HO+2}, v38", f"v_and_b32 v{HO+3}, v{HO+3}, v38"]
        ex += [f"v_cndmask_b32 v{P0+i}, v{P0+i}, v25, vcc" for i in (1, 2, 3)]
        exw = [f"ds_write_b128 v23, {V(HO,4)}"]
        q0 = [P0 + 1, P0 + 2, P0 + 3, K0, K0 + 1, K0 + 2, K0 + 3]
        q1 = [X1, X1 + 1, X1 + 2, Y1, Y1, Y1 + 1, Y1 + 2]
        q2 = [X2, X2 + 1] + [Y2] * 4 + [Y2 + 1] * 3 + [Y2 + 2] * 2
        for dl in range(4):
            d, o = BS[1] + 8 * dl, dl * RCS
            for dd, q, n in ((d, q0, 4), (d + 2, q1, 4), (d + 4, q2, 8)):
                rv = q[dl:dl + n][::-1]
                ex += [CVT(dd + i, rv[2 * i], rv[2 * i + 1]) for i in range(n // 2)]
            exw += [f"ds_write_b64 v21, {V(d,2)} offset:{o+2104-1024}", f"ds_write_b64 v21, {V(d+2,2)} offset:{o+1592-1024}",
                    f"ds_write_b128 v22, {V(d+4,4)} offset:{o+1072-1024}"]
        adq = list(ad)
        a.label("L_helper")
        a(f"s_sub_u32 s{sW4}, s{sWave}, 4\ns_lshl_b32 s{sLb}, s{sW4}, 10\nv_lshrrev_b32 v3, 3, v2")
        flat = sched["p"] + sched.get(0, []) + ["S2"]
        assert "W" not in sched["p"]
        assert self.o("uhack", 0) or (flat.index("T") < flat.index("S2") if uearly else "U" not in flat)
        if self.o("uhack", 0):
            a(f"s_mul_i32 s{sScr}, s{sW4}, {SCR}")
        for o in sched["p"]:
            run(tok(o))
        run(setup_rest())
        self.prof_init()
        self.stamp(9)

        uc = [[f"s_lshl_b32 s{sT1}, s{sD}, 12", f"s_add_u32 s{sT1}, s{sT1}, {WS_UT}", f"s_mov_b32 m0, s{sUc}",
               (f"buffer_load_dwordx4 v{vOob}, {S(rWS,4)}, 0 offen lds", "uc"), f"s_add_u32 m0, s{sUc}, 480",
               f"s_lshl_b32 s{sPX}, s{sW4}, 16", f"s_add_u32 s{sPX}, s{sPX}, s{sWB}",
               f"s_lshl_b32 s{sPW}, s{sW4}, 14", f"s_add_u32 s{sPW}, s{sPW}, s{sWB}", f"v_mov_b32 v14, {L_MISC}"]]
        uc += [(f"buffer_load_dwordx4 v{vL16}, {S(rWS,4)}, s{sT1} offen offset:{1024*k} sc1 lds", "uc") for k in range(4)]
        wlate = [f"s_add_u32 s{sT0}, s{sPX}, {(NE+4*j)*65536+pc*16384}\n"
                 f"buffer_load_dwordx4 {V(WL+16*j+4*pc,4)}, v{vWo}, {S(rWo,4)}, s{sT0} offen"
                 for j in range(2) for pc in range(4)]

        def wo_dma(h):
            return (f"s_add_u32 m0, s{sLb}, {WO_SLOTS[h]}\ns_add_u32 s{sT0}, s{sPW}, {h*65536}\n"
                    f"buffer_load_dwordx4 v{vWo}, {S(rWo,4)}, s{sT0} offen {self.o('fr', '').replace('+', ' ')} lds")

        def barrier(k):
            if self.prof >= 20 and isinstance(k, int) and 0 <= k - 3 * (self.prof - 20) < 3:
                j = k - 3 * (self.prof - 20)
                a(f"s_memtime {S(72 + 4 * j, 2)}\ns_barrier\ns_memtime {S(74 + 4 * j, 2)}")
                return
            a("s_barrier")
            if self.prof in (6, 7, 8) and isinstance(k, int) and 0 <= k - 6 * (self.prof - 6) < 7:
                a(f"s_memtime {S(72 + 2 * (k - 6 * (self.prof - 6)), 2)}")

        assert explicit == {0, 1}
        kt = [k for k, v in sched.items() if "t3" in v][0]
        if kt == "p":
            assert sched["p"].index("t3") < sched["p"].index("S1")
            atrip = self.o('atrip', 1)
        else:
            atrip = (kt + 3) // 3
            assert atrip < 3 and all(o[0] == "t" for k, v in sched.items() if k != "p" for o in v)
        if self.o("hprio", 0):
            a(f"s_setprio {self.o('hprio', 0)}")
        usc = "u" in self.o("sat", "x")
        wait_tag(("st", 0))
        loop, wsc, wl = self.o("hloop", 1), self.o("wsc", 1), self.o("wl", 2)
        worder = [p for p in list(range(7)) + list(range(12, 16)) + list(range(7, 12)) if p >= 4 * wl] if wsc else []

        def wpf(st, n):
            ps = [worder.pop(0) for _ in range(min(n, len(worder)))]
            x = [f"s_load_dwordx2 s[16:17], {S(bO,2)}, {(p-8)*131072+60}" for p in ps]
            return interleave(st, x, 1, 2, 1)
        for trip in range(1 if loop else 4):
            if loop:
                a(".p2align 3")
                a.label("L_hloop")
            x = sp_trip()
            for i in range(3):
                if self.o("pre", 0):
                    self.out(stage(2 + i)[0][:2])
                barrier(None if loop else 3 * trip + i)
                if i == 0 and trip == 0:
                    self.stamp(1, 1 if not loop else 99)
                xi = x[4 * i:4 * i + 4]
                pos = (1, 3, 6, 8)
                if wsc and i >= 3 - wl:
                    xi.insert(2, f"s_load_dwordx2 s[16:17], {S(bO,2)}, 60"
                                 f"\ns_add_u32 s{bO}, s{bO}, 131072\ns_addc_u32 s{bO+1}, s{bO+1}, 0")
                    pos = (0, 2, 4, 6, 8)
                st = stage(2 + i)
                if self.o("pre", 0):
                    st[0] = st[0][2:]
                if rot and i == 2:
                    for d in st:
                        g = d[1].split(",")[1].strip()
                        d.append(f"s_add_u32 {g}, {g}, {3*128 if int(g[1:]) < sRG + 4 else 3*64*6144}")
                run([y for j, d in enumerate(st) for y in [d] + ([xi[pos.index(j)]] if j in pos else [])])
                for tr in range(4):
                    if 3 * tr + i in sched:
                        l = self.lab("ts")
                        a(f"s_cmp_lg_u32 s{sTrip}, {tr}\ns_cbranch_scc1 {l}")
                        for o in sched[3 * tr + i]:
                            self.out(tok(o))
                        a.label(l)
                if i == 0 or i == 2:
                    l = self.lab("ev")
                    if atrip:
                        a(f"s_xor_b32 s{sT0}, s{sTrip}, {atrip}\ns_or_b32 s{sT0}, s{sT0}, s{sW4}")
                    else:
                        a(f"s_or_b32 s{sT0}, s{sTrip}, s{sW4}")
                    a(f"s_cbranch_scc1 {l}")
                    if i == 0:
                        a(f"global_load_dword v5, v4, {S(pDbg,2)} sc1")
                    else:
                        l2, l3 = self.lab("evs"), self.lab("evd")
                        a(f"s_mov_b32 s{sT1}, {SPIN}")
                        a.label(l2)
                        a("v_cmp_ne_u32 vcc, 0, v5")
                        a(f"s_cbranch_vccnz {l3}")
                        a(f"global_load_dword v5, v4, {S(pDbg,2)} sc1")
                        a(f"s_sub_u32 s{sT1}, s{sT1}, 1")
                        a("s_waitcnt vmcnt(0)")
                        a(f"s_cbranch_scc0 {l2}")
                        a.label(l3)
                        if usc:
                            a(f"s_mov_b32 s39, 1 ; nowait\ns_atomic_add s39, {S(pWs,2)}, s{sUcnt} ; nowait")
                        else:
                            a(f"buffer_atomic_add v6, v{vFo}, {S(rWS,4)}, s{sUcnt} offen sc1")
                    a.label(l)
                if i == 2:
                    if not rot:
                        a(f"s_add_u32 s{sXo}, s{sXo}, {3*128}\ns_add_u32 s{sWo_}, s{sWo_}, {3*64*6144}")
                    a(f"s_add_u32 s{sTrip}, s{sTrip}, 1\ns_cmp_lt_u32 s{sTrip}, 4")
                a("s_waitcnt vmcnt(10)")
            if loop:
                a("s_cbranch_scc1 L_hloop")
        barrier(12)
        l = self.lab("ev")
        a(f"s_cmp_lg_u32 s{sW4}, 0\ns_cbranch_scc1 {l}")
        a(f"buffer_load_dword v5, v{vFo}, {S(rWS,4)}, s{sUcnt} offen sc1")
        a.label(l)
        a(f"s_load_dwordx2 s[16:17], {S(bF,2)}, {-64*6144+384+60}")
        n = -(-len(adq) // 20)
        if wsc and wl != 2:
            d_ = (8 - 4 * wl) * 131072
            a(f"s_add_u32 s{bO}, s{bO}, {d_}\ns_addc_u32 s{bO+1}, s{bO+1}, 0" if d_ > 0 else
              f"s_sub_u32 s{bO}, s{bO}, {-d_}\ns_subb_u32 s{bO+1}, s{bO+1}, 0")
        wn = self.o("wn", 4)
        st = wpf(stage(14, 12), wn)
        xe = self.o("xe", 0)
        n12, n13 = (self.o("n12", 8), self.o("n13", 8)) if xe else (0, 0)
        run(interleave(st, adq[:10 * n], 0, 1, n))
        run(exr[:n12])
        a("s_waitcnt vmcnt(10)")
        barrier(13)
        run(interleave(wpf(stage(15, 12), wn), adq[10 * n:], 0, 1, n))
        run(exr[n12:n12 + n13])
        exr = exr[n12 + n13:]
        if not wsc:
            run(tok("W"))
        wait_tag(("st", 14))
        l, l2 = self.lab("ev"), self.lab("evs")
        a(f"s_cmp_lg_u32 s{sW4}, 0\ns_cbranch_scc1 {l}")
        a(f"s_mov_b32 s{sT1}, {SPIN}")
        a.label(l2)
        a(f"v_readfirstlane_b32 s{sT0}, v5")
        a(f"s_cmp_ge_u32 s{sT0}, 32")
        a(f"s_cbranch_scc1 {l}")
        a("v_mov_b32 v5, 0")
        a(f"buffer_atomic_add v5, v{vFo}, {S(rWS,4)}, s{sUcnt} offen sc0 sc1")
        a(f"s_sub_u32 s{sT1}, s{sT1}, 1")
        a("s_waitcnt vmcnt(0)")
        a(f"s_cbranch_scc0 {l2}")
        a.label(l)
        barrier(14)
        self.stamp(7)
        ne0 = self.o("ne0", 4)
        run(wpf(uc + [wo_dma(h) for h in range(ne0)], wn))
        nr = self.o("nr", 0) if not xe else len(exr)
        run(exr[:nr])
        wait_tag(("st", 15))
        barrier(15)
        if xe:
            run(interleave([(wo_dma(h), "e1") for h in range(ne0, 14)], ex, 0, 1, 4))
            ex = []
        else:
            run(wpf([(wo_dma(h), "e1") for h in range(ne0, 14)], wn))
        assert not worder
        if self.o("hprio", 0):
            a("s_setprio 0")
        self.stamp(8)
        e2 = [wo_dma(h) for h in range(14, NE)]
        if xe:
            run(interleave(wlate, exw, 0, 1, 2) if xe == 1 else wlate + exw)
        else:
            run(interleave(wlate, exr[nr:], 0, 1, 3))
            run(ex + exw)
        paced = e2
        wait_tag("e1")
        self.lds_inc(14, 15, LF_W0)
        def creads(p0):
            s = p0 & 1
            ra = lambda d, p: [f"ds_read_b64 {V(d+2*t,2)}, v{vKA} offset:{2048-64*p+8*t}" for t in range(2)]
            rb = lambda d, off: [f"ds_read_b128 {V(d,4)}, v{vUA} offset:{off}"]
            r = []
            for i in range(8):
                x = ra(AS[s] + 4 * i, 8 * i + p0) if i < 4 else (ra(A32, 32) if i == 4 and p0 == 0 else [])
                y = rb(BS[s] + 4 * i, 512 * i + 448 - 64 * p0)
                r += (x + y) if i == 0 else (y + x)
                if p0 == 0 and i < 4:
                    r += rb(BH + 4 * i, 512 * i + 448 - 16)
            return r

        def cmf(p0):
            s = p0 & 1
            m = []
            for n in range(8):
                for p1 in range(min(n, 3) + 1):
                    m.append(MF(CA + 4 * n, AS[s] + 4 * p1, BS[s] + 4 * (n - p1), "0" if p0 == 0 and p1 == 0 else None))
                if p0 == 0 and n >= 4:
                    m.append(MF(CA + 4 * n, A32, BS[0] + 4 * (n - 4)))
                if p0 == 1 and n >= 4:
                    m += [MF(CA + 4 * n, BH + 4 * (n - 4 - kp), BK + 4 * kp) for kp in range(n - 3)]
            if p0 == 0:
                o = []
                for e in range(4):
                    o += [MF(GT, BS[0] + 4 * e, BD, "0"), MF(GT + 4, BH + 4 * e, BD + 4, "0")]
                    blk = m[7 * e:7 * e + 7]
                    blk[4] += "".join("\n" + CVT(BH + 4 * e + r, GT + r, GT + 4 + r) for r in (0, 1))
                    blk[5] += "".join("\n" + CVT(BH + 4 * e + r, GT + r, GT + 4 + r) for r in (2, 3))
                    o += blk
                m = o + m[28:]
            return m

        self.out(creads(0))
        cw = self.o("cwait", 1)
        self.stamp(2)
        a("v_and_b32 v4, 3, v2\nv_lshl_add_u32 v4, v4, 2, v14")
        self.poll_lds(4, LF_P1 if cw == 1 else LF_PQ, 1, 5)
        self.stamp(3)
        pause, dper = self.o("pause", 1), self.o("dper", 2)
        if "C" in self.o("abl", ""):
            self.out(paced)
            paced = []
        for p0 in range(8 if "C" not in self.o("abl", "") else 0):
            fill = creads(p0 + 1) if p0 < 7 else []
            d, paced = paced[:dper], paced[dper:]
            if d:
                fill = interleave(fill, d, 2, len(fill) // len(d), 1)
            mm = cmf(p0)
            if pause and p0 < 7:
                fill += [""] * (len(mm) - 5 - len(fill))
                fill.append(f"ds_read2_b32 v[4:5], v{vMy} offset0:{LF_PA//4} offset1:{LF_OD//4}")
            self.stamp(1 + p0, 4)
            self.out(interleave(mm, fill, 0, 1, 1))
            if p0 == 7:
                self.stamp(9, 4)
            if pause and p0 < 7:
                l = self.lab("cp")
                a("v_cmp_le_u32 vcc, v4, v5")
                a(f"s_cbranch_vccnz {l}")
                self.poll_lds(vMy, LF_OD, 1, 5)
                a.label(l)
        assert not paced
        self.stamp(4)
        YS = 128
        a("s_waitcnt vmcnt(0)")
        self.lds_inc(14, 15, LF_WA)
        ylay = self.o("ylay", 0)
        if ylay:
            a(f"s_lshl_b32 s{sT1}, s{sD}, 7\ns_add_u32 s{sT1}, s{sT1}, {WS_YT}")
            a("v_and_b32 v6, 7, v2\nv_lshlrev_b32 v6, 4, v6\nv_lshl_add_u32 v6, v3, 17, v6")
        else:
            a(f"s_lshl_b32 s{sT1}, s{sD}, 12\ns_add_u32 s{sT1}, s{sT1}, {WS_YT}")
        for k in range(4):
            for i in range(4):
                a(CVT(YS + 4 * k + i, CA + 8 * k + 2 * i, CA + 8 * k + 2 * i + 1))
            if ylay:
                a(f"buffer_store_dwordx4 {V(YS+4*k,4)}, v6, {S(rWS,4)}, s{sT1} offen sc1")
                a(f"s_add_u32 s{sT1}, s{sT1}, {1<<20}" if k < 3 else "")
            else:
                a(f"buffer_store_dwordx4 {V(YS+4*k,4)}, v{vL16}, {S(rWS,4)}, s{sT1} offen offset:{1024*k} sc1")
        for j in range(8):
            a(f"ds_write_b128 v20, {V(WL+4*j,4)} offset:{1024*j}")
        self.lds_inc(14, 15, LF_WB)
        if "Y" in self.o("abl", ""):
            a("s_endpgm")
        abl = self.o("abl", "")
        a(f"s_mul_i32 s{sT2}, s{sST}, {CSTR}\ns_add_u32 s{sT2}, s{sT2}, {WS_CNT+32*CSTR}")
        self.arrive(14, 15, vFo, LF_CY, sT2, 4, 70)
        self.stamp(5)
        vYi, vYr, vYo = 32, 34, 35
        a("v_lshrrev_b32 v4, 2, v2\nv_and_b32 v5, 3, v2\nv_lshlrev_b32 v6, 4, v5")
        a(f"v_lshl_add_u32 v{vYi}, v4, {7 if ylay else 12}, v6")
        a("v_and_b32 v6, 1, v2\nv_mul_u32_u24 v6, 2112, v6\nv_and_b32 v37, 3, v4\nv_lshl_add_u32 v6, v37, 6, v6")
        a("v_and_b32 v37, 48, v2\nv_and_b32 v38, 2, v2\nv_lshl_add_u32 v37, v38, 2, v37")
        a(f"v_add3_u32 v{vYr}, v6, v37, s{sUc}")
        a("v_and_b32 v6, 8, v2\nv_and_b32 v37, 48, v2\nv_lshl_add_u32 v6, v6, 5, v37")
        a(f"v_and_b32 v38, 7, v2\nv_lshlrev_b32 v38, 4, v38\nv_lshl_add_u32 v{vYo}, v6, 12, v38")
        if ylay:
            a(f"s_lshr_b32 s{sT1}, s{sW4}, 1\ns_lshl1_add_u32 s{sUo}, s{sST}, s{sT1}\ns_lshl4_add_u32 s{sUo}, s{sUo}, s{sDG}")
            a(f"s_lshl_b32 s{sUo}, s{sUo}, 7\ns_and_b32 s{sT1}, s{sW4}, 1\ns_add_u32 s{sUo}, s{sUo}, s{sT1}")
        else:
            a(f"s_lshl2_add_u32 s{sUo}, s{sST}, s{sW4}\ns_lshl_b32 s{sT1}, s{sDG}, 12\ns_add_u32 s{sUo}, s{sUo}, s{sT1}")
        a(f"s_lshl_b32 s{sUo}, s{sUo}, 6")
        a(f"s_mul_i32 s{sT1}, s{sDG}, {CSTR}\ns_add_u32 s{sT1}, s{sT1}, {WS_CNT+32*CSTR}")
        self.await_(14, 15, vFo, LF_GY, sT1, 4, 70, 96, 71)
        self.stamp(6)
        if self.o("yh", -1) >= 0:
            self.poll_lds(vMy, LF_YG, 1, 4)
        YT_ = 56
        if "y" in abl:
            a("s_endpgm")
        for k in range(4):
            a(f"s_add_u32 m0, s{sUc}, {k*1056}\ns_add_u32 s{sT1}, s{sUo}, {WS_YT+k*(2048 if ylay else 65536)}")
            if "l" not in abl:
                a(f"buffer_load_dwordx4 v{vYi}, {S(rWS,4)}, s{sT1} offen sc1 lds")
        a(f"s_lshr_b32 s{sT0}, s{sST}, 2\ns_lshl3_add_u32 s{sT0}, s{sT0}, s{sW4}\ns_and_b32 s{sT1}, s{sST}, 3")
        a(f"s_lshl4_add_u32 s{sT0}, s{sT0}, s{sT1}\ns_lshl_b32 s{sT0}, s{sT0}, 7\ns_add_u32 s{sT0}, s{sT0}, s{sDG}")
        a(f"s_lshl_b32 s{sT0}, s{sT0}, 7")
        a("s_waitcnt vmcnt(0)")
        if "w" in abl:
            a("s_endpgm")
        for k in range(4):
            for t in range(2):
                a(f"ds_read_b64_tr_b16 {V(YT_+4*k+2*t,2)}, v{vYr} offset:{(k>>1)*1056+(k&1)*512+256*t}")
        self.out(self.quad_t(YT_, YT_ + 16))
        if "z" in abl:
            a("s_endpgm")
        if self.o("ys", -1) >= 0:
            self.poll_lds(vMy, LF_YG, 1, 4)
        for k in range(4):
            a(f"s_add_u32 s{sT1}, s{sT0}, {k*4096}")
            a(f"buffer_store_dwordx4 {V(YT_+4*k,4)}, v{vYo}, {S(rO,4)}, s{sT1} offen offset:2048 {self.o('fy', 'nt').replace('+', ' ')}")
        self.dump_stamps()
        a("s_endpgm")

    def build(self):
        self.entry()
        self.helper()
        self.compute()
        self.a.finish()
        body = self.a.text()
        head = open("concat_heads__linear_attn_block__ssm_conv_s4__prompt.s.ref").read()
        cm = []
        for l in head.split("\n"):
            if l.startswith("; @launch"):
                cm.append(f"; @launch grid=(256,1,1) block=(512,1,1) lds={LDS_BYTES}")
                break
            cm.append(l)
        txt = "\n".join(cm) + "\n"
        txt += f""".amdgcn_target "amdgcn-amd-amdhsa--gfx950"
.text
.globl {NAME}
.p2align 8
.type {NAME},@function
{NAME}:
"""
        txt += body.replace("CODE_LEFT", str(self.opt.get("code_left", 0)))
        txt += f""".section .rodata,"a"
.p2align 6
.amdhsa_kernel {NAME}
  .amdhsa_next_free_vgpr 256
  .amdhsa_next_free_sgpr 102
  .amdhsa_accum_offset 256
  .amdhsa_group_segment_fixed_size 0
  .amdhsa_kernarg_size 120
  .amdhsa_user_sgpr_count 2
  .amdhsa_user_sgpr_kernarg_segment_ptr 1
  .amdhsa_system_sgpr_workgroup_id_x 1
.end_amdhsa_kernel
"""
        return txt


def code_size(txt):
    import subprocess, tempfile
    d = tempfile.mkdtemp()
    open(d + "/k.s", "w").write(txt)
    r = subprocess.run(["clang", "-x", "assembler", "-target", "amdgcn-amd-amdhsa", "-mcpu=gfx950",
                        "-c", d + "/k.s", "-o", d + "/k.o"], capture_output=True, text=True)
    if r.returncode:
        print(r.stderr[:3000])
        raise SystemExit("assemble failed")
    o = subprocess.run(["llvm-objdump", "-h", d + "/k.o"], capture_output=True, text=True).stdout
    for l in o.split("\n"):
        p = l.split()
        if len(p) > 2 and p[1] == ".text":
            return int(p[2], 16)


def make(prof=0, **opt):
    t = Gen(prof, code_left=1024, **opt).build()
    n = code_size(t)
    assert prof or n < 32768 + 128
    return Gen(prof, code_left=n - 128, **opt).build(), n


if __name__ == "__main__":
    t, n = make(0)
    out = sys.argv[1] if len(sys.argv) > 1 else "concat_heads__linear_attn_block__ssm_conv_s4__prompt.s"
    open(out, "w").write(t)
    print("wrote", out, "code bytes", n, "lines", t.count("\n"))
```
